```python
import torch

def _softmax(x, axis=-1):
    return torch.softmax(x, dim=axis)
def _gelu(x):
    return torch.nn.functional.gelu(x, approximate="tanh")
def _silu(x):
    return torch.nn.functional.silu(x)
def _sigmoid(x):
    return torch.sigmoid(x)
def _layernorm(x, axis=-1, eps=1e-5):
    m = x.mean(dim=axis, keepdim=True)
    v = x.var(dim=axis, keepdim=True, unbiased=False)
    return (x - m) / torch.sqrt(v + eps)
def _scatter_add(tgt, idx, src, axis=0):
    return tgt.clone().index_add_(axis, idx, src)
def _segment_sum(src, seg, n):
    out = torch.zeros((n,) + src.shape[1:], dtype=src.dtype)
    return out.index_add_(0, seg, src)
def _pad(x, pw):
    flat = tuple(v for pair in reversed(pw) for v in pair)
    return torch.nn.functional.pad(x, flat)

kernel_name = 'standalone__glu_gated_bilinear__prompt'

def setup_inputs():

    _w = (lambda a: (lambda t: t.to(torch.bfloat16) if t.is_floating_point() else t)(torch.as_tensor(a)))
    B, S, D, F = 1, 2048, 512, 1792
    return {
        "x": _w((lambda *s: torch.randn(*s, dtype=torch.bfloat16) * 0.05)(B, S, D)),
        "w_gate": _w((lambda *s: torch.randn(*s, dtype=torch.bfloat16) * 0.05)(D, F) * (D ** -0.5)),
        "w_up": _w((lambda *s: torch.randn(*s, dtype=torch.bfloat16) * 0.05)(D, F) * (D ** -0.5)),
        "w_down": _w((lambda *s: torch.randn(*s, dtype=torch.bfloat16) * 0.05)(F, D) * (F ** -0.5)),
    }

def reference(x, w_gate, w_up, w_down):
    g = torch.einsum("bsd,df->bsf", x, w_gate)
    u = torch.einsum("bsd,df->bsf", x, w_up)
    h = g * u
    return torch.einsum("bsf,fd->bsd", h, w_down)
```

```python
import sys, argparse

ap = argparse.ArgumentParser()
ap.add_argument("--stamps", action="store_true")
ap.add_argument("--la", type=int, default=4)
ap.add_argument("--epi", type=int, default=2)
ap.add_argument("--ha_first", type=int, default=12)
ap.add_argument("--flagA_at", type=int, default=16*11+8)
ap.add_argument("--outflags", default="")
ap.add_argument("--noprefetch", action="store_true")
args = ap.parse_args()

KN = "standalone__glu_gated_bilinear__prompt_kernel"
NP, NW = 4, 6
HFS = NW * 8192
PB = 2 * HFS
PWS = NP * 4096
LDS = PB + 4 * PWS
assert LDS == 163840
FBASE = 0x800000
HBYTES = 32 * 229376
STAMP_OFF = 0x8000000
LA = args.la
NBUF = 8

sX, sG, sU, sD, sH, sO, sB = 8, 12, 16, 20, 24, 28, 32
s_w, s_mb, s_fb, s_m64, s_n64 = 36, 37, 38, 39, 40
s_xoff, s_woff, s_doff = 41, 42, 43
s_mP, s_mW = 44, 45
s_t0, s_t1, s_t2, s_t3 = 46, 47, 48, 49
s_hst = 50
s_spin = 51
s_hld = 52
s_st = 60
vX, vW, vD = 1, 5, 9
vRW, vRX = 13, 17
vRD, vRD2 = 21, 23
vL16 = 25
vH0, vH1 = 26, 27
vFl, vMk, vT, vT2 = 28, 29, 30, 31
WBUF = 32
ACC0, ACC1 = 64, 128
HB = 128
EPI = 240
aX, aD = 0, 128

class G:
    def __init__(s):
        s.L = []; s.lg = []; s.vm = []; s.nst = 0
    def e(s, t): s.L.append("    " + t)
    def lab(s, t): s.L.append(t + ":")
    def ds(s, t, tag): s.e(t); s.lg.append(tag); assert len(s.lg) <= 15, ("lgkm overflow", len(s.lg))
    def vmem(s, t, tag): s.e(t); s.vm.append(tag); assert len(s.vm) <= 63, "vm overflow"
    def need_lg(s, tags):
        idx = max((i for i, t in enumerate(s.lg) if t in tags), default=-1)
        if idx >= 0:
            s.e(f"s_waitcnt lgkmcnt({len(s.lg)-1-idx})"); s.lg = s.lg[idx+1:]
    def need_vm(s, tags):
        idx = max((i for i, t in enumerate(s.vm) if t in tags), default=-1)
        if idx >= 0:
            s.e(f"s_waitcnt vmcnt({len(s.vm)-1-idx})"); s.vm = s.vm[idx+1:]
    def stamp(s, k):
        if args.stamps: s.e(f"s_memrealtime s[{s_st+2*k}:{s_st+2*k+1}]")

g = G()
e = g.e
def vr(b, n=4): return f"v[{b}:{b+n-1}]"
def ar(b, n=4): return f"a[{b}:{b+n-1}]"
def sr(b, n=4): return f"s[{b}:{b+n-1}]"

hdr = f"""; Fused bilinear GLU: out = ((x Wg) * (x Wu)) Wd   (generated by work/gen.py)
; @launch grid=(256,1,1) block=(256,1,1) lds={LDS}
.amdgcn_target "amdgcn-amd-amdhsa--gfx950"
.text
.globl {KN}
.p2align 8
.type {KN},@function
{KN}:"""

e("s_cmp_ge_u32 s2, 256")
e("s_cbranch_scc1 L_end")
if args.stamps:
    for i in range(1, 14): e(f"s_mov_b64 s[{s_st+2*i}:{s_st+2*i+1}], 0")
g.stamp(0)
e("s_load_dwordx8 s[88:95], s[0:1], 0")
e("s_load_dwordx4 s[96:99], s[0:1], 32")
e("s_load_dwordx2 s[100:101], s[0:1], 48")
if not args.noprefetch:
    e("s_getpc_b64 s[4:5]")
    e("s_and_b32 s4, s4, 0xffffff00")
    e(f"s_mov_b32 s6, L_codeend-{KN}")
    e("s_mov_b32 s7, 0x20000")
    e("v_lshlrev_b32 v30, 7, v0")
    g.vmem("buffer_load_dword v31, v30, s[4:7], 0 offen", "pf")
e("v_lshrrev_b32 v30, 6, v0")
e("v_and_b32 v0, 63, v0")
e(f"v_readfirstlane_b32 s{s_w}, v30")
e("s_and_b32 s46, s2, 7")
e("s_lshr_b32 s47, s2, 3")
e("s_and_b32 s48, s47, 3")
e("s_lshr_b32 s49, s47, 2")
e(f"s_lshl_b32 s{s_m64}, s46, 2")
e(f"s_add_u32 s{s_m64}, s{s_m64}, s48")
e(f"s_mov_b32 s{s_n64}, s49")
e(f"s_lshr_b32 s{s_mb}, s46, 1")
e(f"s_lshl_b32 s{s_mb}, s{s_mb}, 2")
e(f"s_add_u32 s{s_mb}, s{s_mb}, s48")
e(f"s_and_b32 s{s_fb}, s46, 1")
e(f"s_mul_i32 s{s_fb}, s{s_fb}, 7")
e(f"s_add_u32 s{s_fb}, s{s_fb}, s49")
e("v_lshrrev_b32 v240, 3, v0")
e("v_and_b32 v241, 7, v0")
e("v_lshrrev_b32 v242, 4, v0")
e(f"v_lshlrev_b32 v{vL16}, 4, v0")
e(f"s_lshl_b32 s46, s{s_w}, 15")
e("v_xor_b32 v243, v241, v242")
e("v_lshlrev_b32 v243, 4, v243")
e(f"v_lshl_add_u32 v{vX}, v240, 10, v243")
e(f"v_add_u32 v{vX}, s46, v{vX}")
e(f"v_xor_b32 v{vX+1}, 64, v{vX}")
e(f"v_add_u32 v{vX+1}, {7*1024}, v{vX+1}")
e(f"v_add_u32 v{vX+2}, {14*1024}, v{vX}")
e(f"v_add_u32 v{vX+3}, {14*1024}, v{vX+1}")
e(f"s_lshr_b32 s46, s{s_w}, 1")
e(f"s_lshl_b32 s46, s46, 5")
e(f"s_and_b32 s47, s{s_w}, 1")
e(f"s_lshl_b32 s48, s47, 3")
e(f"s_add_u32 s46, s46, s48")
e(f"s_mul_i32 s46, s46, 3584")
e(f"v_mul_u32_u24 v{vW}, 3584, v240")
e("v_and_b32 v244, 1, v242")
e("v_lshlrev_b32 v245, 4, v241")
e("v_lshlrev_b32 v246, 5, v244")
e("v_xor_b32 v246, v245, v246")
e(f"v_add3_u32 v{vW}, v{vW}, v246, s46")
e(f"v_xor_b32 v{vW+1}, 64, v{vW}")
e(f"v_add_u32 v{vW+2}, {16*3584-2048}, v{vW}")
e(f"v_add_u32 v{vW+3}, {16*3584-2048}, v{vW+1}")
e(f"s_lshl_b32 s46, s{s_w}, 14")
e("v_lshlrev_b32 v246, 6, v244")
e("v_xor_b32 v246, v245, v246")
e(f"v_lshl_add_u32 v{vD}, v240, 10, v246")
e(f"v_add_u32 v{vD}, s46, v{vD}")
e(f"v_add_u32 v{vD+1}, {8*1024-1024}, v{vD}")
e(f"v_add_u32 v{vD+2}, {128*1024-2048}, v{vD}")
e(f"v_add_u32 v{vD+3}, {136*1024-3072}, v{vD}")
e(f"s_mul_i32 s{s_mP}, s{s_w}, {PWS}")
e(f"s_add_u32 s{s_mP}, s{s_mP}, {PB}")
e(f"s_mul_i32 s{s_mW}, s47, {HFS}")
e(f"s_lshr_b32 s46, s{s_w}, 1")
e(f"s_lshl_b32 s46, s46, 12")
e(f"s_add_u32 s{s_mW}, s{s_mW}, s46")
e(f"s_lshl_b32 s{s_xoff}, s{s_mb}, 17")
e(f"s_lshl_b32 s{s_woff}, s{s_fb}, 8")
e(f"s_lshl_b32 s{s_doff}, s{s_n64}, 7")
for b, n in ((sX, 2048*1024), (sG, 512*3584), (sU, 512*3584+1024), (sD, 1792*1024), (sH, 0x10000000), (sO, 2048*1024), (sB, 256)):
    e(f"s_mov_b32 s{b+2}, {n}")
    e(f"s_mov_b32 s{b+3}, 0x20000")
e("s_waitcnt lgkmcnt(0)")
e(f"s_mov_b64 s[{sX}:{sX+1}], s[88:89]")
e(f"s_mov_b64 s[{sG}:{sG+1}], s[90:91]")
e(f"s_sub_u32 s{sU}, s92, 1024")
e(f"s_subb_u32 s{sU+1}, s93, 0")
e(f"s_mov_b64 s[{sD}:{sD+1}], s[94:95]")
e(f"s_mov_b64 s[{sO}:{sO+1}], s[96:97]")
e(f"s_mov_b64 s[{sB}:{sB+1}], s[98:99]")
e(f"s_mov_b64 s[{sH}:{sH+1}], s[100:101]")
g.stamp(1)

def dma_item(kind, n, where):
    ops = []
    if where[0] == 'P': m0 = (s_mP, where[1] * 4096)
    else: m0 = (s_mW, where[1] * 8192)
    if kind == 'X': so = (s_xoff, n * 128); srd = [sX]*4; vb = vX; st = s_t0
    elif kind == 'W': so = (s_woff, (n & 7) * 64 * 3584 + (n >> 3) * 128); srd = [sG, sU, sG, sU]; vb = vW; st = s_t1
    else: so = (s_doff, (256 * (n % 7) + 64 * (n // 7)) * 1024); srd = [sD]*4; vb = vD; st = s_t0 if where[0]=='P' else s_t1
    def mk(i):
        def f():
            if i == 0:
                e(f"s_add_u32 m0, s{m0[0]}, {m0[1]}")
                e(f"s_add_u32 s{st}, s{so[0]}, {so[1]}")
            off = f" offset:{1024*i}" if i else ""
            g.vmem(f"buffer_load_dwordx4 v{vb+i}, {sr(srd[i])}, s{st} offen{off} lds", (kind, n))
        return f
    return [mk(i) for i in range(4)]

def late_addr_setup():
    e("v_lshrrev_b32 v240, 5, v0")
    e("v_bfe_u32 v241, v0, 4, 1")
    e("v_bfe_u32 v242, v0, 2, 2")
    e("v_and_b32 v243, 3, v0")
    e("v_bfe_u32 v244, v0, 3, 1")
    e("v_lshlrev_b32 v243, 3, v243")
    e("v_lshl_add_u32 v243, v242, 7, v243")
    e(f"v_mul_u32_u24 v{vRW}, {HFS}, v240")
    e(f"v_lshl_add_u32 v{vRW}, v241, 10, v{vRW}")
    e(f"v_add_u32 v{vRW}, v{vRW}, v243")
    e("v_lshl_or_b32 v245, v241, 1, v244")
    e(f"v_lshl_add_u32 v{vRW}, v245, 5, v{vRW}")
    for q in range(1, 4): e(f"v_xor_b32 v{vRW+q}, {32*q}, v{vRW}")
    e("v_lshl_add_u32 v245, v240, 9, v243")
    e("v_lshl_or_b32 v246, v244, 1, v241")
    e("v_lshl_add_u32 v245, v246, 5, v245")
    e(f"s_lshr_b32 s46, s{s_w}, 1")
    e("s_lshl_b32 s46, s46, 6")
    e("v_xor_b32 v245, s46, v245")
    e(f"v_add_u32 v{vRD}, s{s_mP}, v245")
    e(f"v_xor_b32 v{vRD+1}, 64, v{vRD}")
    e(f"v_add_u32 v{vRD2}, s{s_mW}, v245")
    e(f"v_xor_b32 v{vRD2+1}, 64, v{vRD2}")
    e("v_and_b32 v245, 31, v0")
    e("v_bfe_u32 v246, v0, 1, 3")
    e("v_xor_b32 v246, v246, v240")
    e("v_lshlrev_b32 v246, 4, v246")
    e("v_lshl_add_u32 v245, v245, 7, v246")
    e(f"v_add_u32 v{vRX}, s{s_mP}, v245")
    for t in range(1, 4): e(f"v_xor_b32 v{vRX+t}, {32*t}, v{vRX}")
    e(f"s_and_b32 s46, s{s_w}, 1")
    e("s_lshl_b32 s46, s46, 10")
    e(f"v_add_u32 v{vH0}, s46, v{vL16}")
    e(f"v_xor_b32 v{vH1}, 0x400, v{vH0}")
    e(f"s_mul_i32 s{s_hld}, s{s_m64}, 229376")
    e(f"s_mul_i32 s46, s{s_w}, 57344")
    e(f"s_add_u32 s{s_hld}, s{s_hld}, s46")
    e(f"v_min_u32 v{vFl}, 27, v0")
    e(f"v_lshlrev_b32 v{vFl}, 2, v{vFl}")
    e(f"s_lshl_b32 s46, s{s_m64}, 8")
    e(f"s_add_u32 s46, s46, {FBASE}")
    e(f"v_add_u32 v{vFl}, s46, v{vFl}")

def d_reads(item, where, dstbase, dstfile):
    ops = []
    for ee in range(2):
        for nt in range(2):
            for p in range(2):
                def f(ee=ee, nt=nt, p=p):
                    if where[0] == 'P': va = vRD + nt; off = where[1]*4096
                    else: va = vRD2 + nt; off = where[1]*8192
                    off += ee*2048 + p*1024
                    r = dstbase + (ee*2 + nt)*4 + 2*p
                    g.ds(f"ds_read_b64_tr_b16 {dstfile}[{r}:{r+1}], v{va} offset:{off}", ('Dr', item))
                ops.append(f)
    return ops

dplace = {}
for j in range(8): dplace[j] = ('P', (8 + j) % NP)
dplace[8] = ('W', 16 % NW); dplace[9] = ('P', 16 % NP); dplace[10] = ('W', 17 % NW)
dplace[11] = ('P', 17 % NP); dplace[12] = ('P', 18 % NP); dplace[13] = ('P', 19 % NP)

def spin(label, vaddr, srd, off, sleep=0):
    e(f"s_mov_b32 s{s_spin}, 0x40000")
    g.lab(label)
    o = f" offset:{off}" if off else ""
    e(f"buffer_load_dword v{vT}, v{vaddr}, {sr(srd)}, 0 offen{o} sc1")
    e("s_waitcnt vmcnt(0)")
    e(f"v_cmp_ne_u32 vcc, 0, v{vT}")
    e("s_cmp_eq_u64 vcc, -1")
    e(f"s_cbranch_scc1 {label}_ok")
    if sleep: e(f"s_sleep {sleep}")
    e(f"s_sub_u32 s{s_spin}, s{s_spin}, 1")
    e(f"s_cmp_lg_u32 s{s_spin}, 0")
    e(f"s_cbranch_scc1 {label}")
    g.lab(label + "_ok")
    g.vm = []

e(f"s_cmp_ge_u32 s{s_n64}, 7")
e("s_cbranch_scc1 L_spare")

for n in range(4):
    for f in dma_item('X', n, ('P', n % NP)): f()
    for f in dma_item('W', n, ('W', n % NW)): f()
    if n == 0: late_addr_setup()
for n in (4, 5):
    for f in dma_item('W', n, ('W', n % NW)): f()
e(f"s_lshr_b32 s46, s{s_w}, 1")
e(f"s_lshl_b32 s47, s{s_mb}, 1")
e("s_add_u32 s46, s46, s47")
e(f"s_mul_i32 s{s_hst}, s46, 229376")
e(f"s_lshl_b32 s47, s{s_fb}, 1")
e(f"s_and_b32 s48, s{s_w}, 1")
e("s_add_u32 s47, s47, s48")
e("s_lshl_b32 s48, s47, 10")
e(f"s_add_u32 s{s_hst}, s{s_hst}, s48")
e("s_lshl_b32 s47, s47, 2")
e("s_lshl_b32 s48, s46, 8")
e("s_add_u32 s47, s47, s48")
e(f"s_add_u32 s53, s47, {FBASE}")
e("s_lshl_b32 s46, s46, 2")
e(f"s_lshl_b32 s47, s{s_m64}, 2")
e(f"v_mov_b32 v{vMk}, s46")
e("v_mov_b32 v240, s47")
e("v_cmp_lt_u32 vcc, 31, v0")
e("s_nop 1")
e(f"v_cndmask_b32 v{vMk}, v{vMk}, v240, vcc")
g.stamp(2)

after = {j: [] for j in range(-8, 300)}
def at(j, f): after[j].append(f)

def wread(j):
    n, t, q = j >> 4, (j >> 2) & 3, j & 3
    b = WBUF + (j % NBUF) * 4
    off = (n % NW) * 8192 + t * 2048
    g.ds(f"ds_read_b64_tr_b16 v[{b}:{b+1}], v{vRW+q} offset:{off}", ('w', j))
    g.ds(f"ds_read_b64_tr_b16 v[{b+2}:{b+3}], v{vRW+q} offset:{off+512}", ('w', j))
def xread(n, t):
    r = aX + (n*4 + t)*4
    g.ds(f"ds_read_b128 {ar(r)}, v{vRX+t} offset:{(n % NP)*4096}", ('x', n*4+t))
def barrier(n):
    tags = [('W', n), ('X', n) if n < 8 else ('D', n-8)]
    g.need_vm(tags)
    e("s_barrier")

for n in range(16):
    b = 16*n - LA
    if n > 0: at(b - 1, lambda n=n: barrier(n))
    if n < 8:
        for t in range(4): at(b + t, lambda n=n, t=t: xread(n, t))
    else:
        for i, f in enumerate(d_reads(n-8, dplace[n-8], aD + (n-8)*16, 'a')): at(b + i, f)
    m = n + 4
    if n >= 2:
        if m < 16: ops = dma_item('W', m, ('W', m % NW))
        elif m < 18: ops = dma_item('D', 8 + 2*(m-16), ('W', m % NW))
        else: ops = []
        for i, f in enumerate(ops): at(b + 2*i, f)
    if m < 8: ops = dma_item('X', m, ('P', m % NP))
    elif m < 16: ops = dma_item('D', m - 8, ('P', m % NP))
    else: ops = dma_item('D', {16: 9, 17: 11, 18: 12, 19: 13}[m], ('P', m % NP))
    ptag = [('x', n*4+3)] if n < 8 else [('Dr', n-8)]
    at(b + 9, lambda ptag=ptag: g.need_lg(ptag))
    for i, f in enumerate(ops): at(b + 9 + 2*i - (1 if i == 3 else 0), f)

def epi_ops(acc, s, packed):
    ops = []
    for q in range(4):
        a = acc + 16*q
        if packed:
            for i in range(4): ops.append(lambda a=a, i=i: e(f"v_pk_mul_f32 v[{a+2*i}:{a+2*i+1}], v[{a+2*i}:{a+2*i+1}], v[{a+8+2*i}:{a+9+2*i}]"))
        else:
            for i in range(8): ops.append(lambda a=a, i=i: e(f"v_mul_f32 v{a+i}, v{a+i}, v{a+8+i}"))
        for i in range(4): ops.append(lambda a=a, i=i, q=q: e(f"v_cvt_pk_bf16_f32 v{EPI+4*q+i}, v{a+2*i}, v{a+2*i+1}"))
        def st(q=q):
            e(f"s_add_u32 s{s_t2}, s{s_hst}, {q*57344 + s*28672}")
            g.vmem(f"buffer_store_dwordx4 {vr(EPI+4*q)}, v{vL16}, {sr(sH)}, s{s_t2} offen sc1", ('hs', s))
        ops.append(st)
    return ops

def flag_store(s):
    e(f"v_mov_b32 v{vT2}, s53")
    e(f"v_mov_b32 v{vT}, 1")
    e("s_mov_b64 exec, 1")
    g.vmem(f"buffer_store_dword v{vT}, v{vT2}, {sr(sH)}, 0 offen offset:{128*s} sc1", ('fl', s))
    e("s_mov_b64 exec, -1")

ops = epi_ops(ACC0, 0, False)
j = 131
while ops:
    for _ in range(args.epi):
        if ops: at(j, ops.pop(0))
    j += 1
assert j < args.flagA_at
at(16*7, lambda: g.vmem(f"buffer_load_dword v{vT2}, v{vMk}, {sr(sB)}, 0 offen sc1", 'mk'))
def flagA():
    g.need_vm([('hs', 0), 'mk'])
    e(f"v_cmp_ne_u32 vcc, 0, v{vT2}")
    e("s_cmp_eq_u64 vcc, -1")
    e("s_cbranch_scc1 L_mk_ok")
    save = list(g.vm)
    spin("L_mk", vMk, sB, 0)
    g.vm = save
    flag_store(0)
at(args.flagA_at, flagA)
at(250, lambda: g.vmem(f"buffer_load_dword v{vMk}, v{vFl}, {sr(sH)}, 0 offen sc1", 'pa'))

barrier(0)
g.stamp(3)
for j in range(-LA, 256):
    if j >= 0:
        n, t, q = j >> 4, (j >> 2) & 3, j & 3
        ks = (n & 7) * 4 + t
        g.need_lg([('w', j), ('x', ks)])
        acc = (ACC0 if n < 8 else ACC1) + 16*q
        c = "0" if ks == 0 else vr(acc, 16)
        e(f"v_mfma_f32_32x32x16_bf16 {vr(acc,16)}, {vr(WBUF + (j % NBUF)*4)}, {ar(aX + ks*4)}, {c}")
        if j in (127,): g.stamp(4)
    if j + LA < 256:
        wread(j + LA)
    for f in after[j]: f()
for j in range(256, 300):
    for f in after[j]: f()
g.stamp(5)
g.need_lg(g.lg[:])
e("s_barrier")
ops = epi_ops(ACC1, 1, True)
e("s_nop 7")
for f in ops: f()
g.stamp(6)

def h_loads(s, dstfile, dstbase):
    ops = []
    for fb in range(14):
        for mt in range(2):
            def f(fb=fb, mt=mt):
                if fb % 2 == 0 and mt == 0:
                    e(f"s_add_u32 s{s_t3}, s{s_hld}, {s*28672 + fb*2048}")
                r = dstbase + (fb*2 + mt)*4
                off = " offset:2048" if fb % 2 else ""
                g.vmem(f"buffer_load_dwordx4 {dstfile}[{r}:{r+3}], v{vH0+mt}, {sr(sH)}, s{s_t3} offen{off} sc1", ('h', s, fb, mt))
            ops.append(f)
    return ops

g.need_vm(['pa'])
e(f"v_cmp_ne_u32 vcc, 0, v{vMk}")
e("s_cmp_eq_u64 vcc, -1")
e("s_cbranch_scc1 L_pa_ok")
save = list(g.vm)
spin("L_pa", vFl, sH, 0)
g.vm = save
ha = h_loads(0, 'a', aX)
for f in ha[:args.ha_first]: f()
g.need_vm([('hs', 1)])
flag_store(1)
g.stamp(7)
vm_main = list(g.vm)
e("s_branch L_ph2")

g.lab("L_spare")
g.vm = []; g.lg = []
e(f"s_cmp_lg_u32 s{s_w}, 0")
e("s_cbranch_scc1 L_sp1")
e(f"s_lshl_b32 s46, s{s_m64}, 8")
e(f"s_add_u32 s46, s46, {FBASE}")
e("v_lshlrev_b32 v240, 2, v0")
e("v_mov_b32 v241, 0")
e(f"buffer_store_dword v241, v240, {sr(sH)}, s46 offen sc1")
e("s_waitcnt vmcnt(0)")
e(f"s_lshl_b32 s46, s{s_m64}, 2")
e("v_mov_b32 v240, s46")
e("v_mov_b32 v241, 1")
e("s_mov_b64 exec, 1")
e(f"buffer_store_dword v241, v240, {sr(sB)}, 0 offen sc1")
e("s_mov_b64 exec, -1")
g.lab("L_sp1")
for j in range(4):
    for f in dma_item('D', j, dplace[j]): f()
late_addr_setup()
for j in (8, 10):
    for f in dma_item('D', j, dplace[j]): f()
nxt = {0: 4, 1: 5, 2: 6, 3: 7, 4: 9, 5: 11, 6: 12, 7: 13}
for j in range(8):
    g.need_vm([('D', j)])
    for f in d_reads(j, dplace[j], aD + j*16, 'a'): f()
    g.need_lg([('Dr', j)])
    assert dplace[nxt[j]] == dplace[j]
    for f in dma_item('D', nxt[j], dplace[nxt[j]]): f()
e(f"s_lshl_b32 s46, s{s_m64}, 2")
e(f"v_mov_b32 v{vMk}, s46")
spin("L_smk", vMk, sB, 0, sleep=8)
spin("L_spa", vFl, sH, 0, sleep=8)
for f in h_loads(0, 'a', aX)[:args.ha_first]: f()
vm_spare = list(g.vm)

g.lab("L_ph2")
g.vm = vm_spare
assert [t for t in vm_main if t[0] == 'h'] == vm_spare
g.lg = []
for f in ha[args.ha_first:]: f()
ACC2 = ACC0
def mf2(fb, s, dreg, hfile, hbase, first):
    for mt in range(2):
        g.need_vm([('h', s, fb, mt)])
        for nt in range(2):
            acc = ACC2 + (2*nt + mt)*16
            c = "0" if first else vr(acc, 16)
            h = hbase + (fb*2 + mt)*4
            e(f"v_mfma_f32_32x32x16_bf16 {vr(acc,16)}, {ar(dreg + nt*4)}, {hfile}[{h}:{h+3}], {c}")
for fb in range(14):
    mf2(fb, 0, aD + fb*8, 'a', aX, fb == 0)
    if fb >= 3 and fb % 2 == 1:
        item = 8 + (fb - 3)//2
        g.need_lg(g.lg[:])
        for f in d_reads(item, dplace[item], aD + (item-8)*16, 'a'): f()
g.stamp(8)
spin("L_pb", vFl, sH, 128)
g.stamp(9)
for f in h_loads(1, 'v', HB): f()
g.need_lg(g.lg[:])
for fb in range(14):
    dreg = aD + 7*16 + fb*8 if fb < 2 else aD + (fb-2)*8
    mf2(fb, 1, dreg, 'v', HB, False)
g.stamp(10)
for lam in range(1, 4):
    e(f"s_xor_b32 s46, s{s_w}, {lam}")
    e("s_and_b32 s47, s46, 1")
    e(f"s_mul_i32 s47, s47, {HFS}")
    e("s_lshr_b32 s46, s46, 1")
    e("s_mul_i32 s46, s46, 12288")
    e("s_add_u32 s46, s46, s47")
    e(f"v_add_u32 v{lam}, s46, v{vL16}")
e(f"s_and_b32 s47, s{s_w}, 1")
e(f"s_mul_i32 s47, s47, {HFS}")
e(f"s_lshr_b32 s46, s{s_w}, 1")
e("s_mul_i32 s46, s46, 12288")
e("s_add_u32 s46, s46, s47")
e(f"v_add_u32 v4, s46, v{vL16}")
e("v_and_b32 v5, 31, v0")
e("v_lshrrev_b32 v6, 5, v0")
e("v_lshlrev_b32 v6, 4, v6")
e("v_lshl_add_u32 v5, v5, 10, v6")
e(f"s_lshl_b32 s46, s{s_m64}, 16")
e(f"s_and_b32 s47, s{s_w}, 1")
e("s_lshl_b32 s47, s47, 15")
e("s_add_u32 s46, s46, s47")
e(f"s_lshr_b32 s47, s{s_w}, 1")
e("s_lshl_b32 s47, s47, 6")
e("s_add_u32 s46, s46, s47")
e(f"s_add_u32 s46, s46, s{s_doff}")
for lam in range(1, 4):
    for a in range(4):
        r = ACC2 + lam*16 + a*4
        e(f"ds_write_b128 v{lam}, {vr(r)} offset:{(lam-1)*4096 + a*1024}")
e("s_waitcnt lgkmcnt(0)")
e("s_barrier")
for i in range(12):
    g.ds(f"ds_read_b128 {vr(HB + 4*i)}, v4 offset:{i*1024}", ('rd', i))
for sl in range(3):
    for a in range(4):
        g.need_lg([('rd', sl*4 + a)])
        r = ACC2 + a*4; t = HB + (sl*4 + a)*4
        e(f"v_pk_add_f32 v[{r}:{r+1}], v[{r}:{r+1}], v[{t}:{t+1}]")
        e(f"v_pk_add_f32 v[{r+2}:{r+3}], v[{r+2}:{r+3}], v[{t+2}:{t+3}]")
for i in range(8):
    e(f"v_cvt_pk_bf16_f32 v{EPI+i}, v{ACC2+2*i}, v{ACC2+2*i+1}")
e("s_nop 1")
e(f"v_permlane32_swap_b32 v{EPI}, v{EPI+2}")
e(f"v_permlane32_swap_b32 v{EPI+1}, v{EPI+3}")
e(f"v_permlane32_swap_b32 v{EPI+4}, v{EPI+6}")
e(f"v_permlane32_swap_b32 v{EPI+5}, v{EPI+7}")
e(f"buffer_store_dwordx4 {vr(EPI)}, v5, {sr(sO)}, s46 offen {args.outflags}")
e(f"buffer_store_dwordx4 {vr(EPI+4)}, v5, {sr(sO)}, s46 offen offset:32 {args.outflags}")
if args.stamps:
    g.stamp(11)
    e("s_waitcnt vmcnt(0)")
    g.stamp(12)
    e("s_waitcnt lgkmcnt(0)")
    NS = 14
    for i in range(2*NS): e(f"v_mov_b32 v{64+i}, s{s_st+i}")
    e(f"s_lshl_b32 s46, s2, 2")
    e(f"s_add_u32 s46, s46, s{s_w}")
    e(f"s_mul_i32 s46, s46, {NS*8}")
    e(f"s_add_u32 s46, s46, {STAMP_OFF}")
    e("v_mov_b32 v5, 0")
    e("s_mov_b64 exec, 1")
    for i in range(NS//2): e(f"buffer_store_dwordx4 {vr(64+4*i)}, v5, {sr(sH)}, s46 offen offset:{16*i}")
g.lab("L_end")
e("s_endpgm")
g.lab("L_codeend")

tail = f""".section .rodata,"a"
.p2align 6
.amdhsa_kernel {KN}
  .amdhsa_next_free_vgpr 512
  .amdhsa_next_free_sgpr 102
  .amdhsa_accum_offset 256
  .amdhsa_group_segment_fixed_size 0
  .amdhsa_kernarg_size 56
  .amdhsa_user_sgpr_count 2
  .amdhsa_user_sgpr_kernarg_segment_ptr 1
  .amdhsa_system_sgpr_workgroup_id_x 1
.end_amdhsa_kernel"""
print(hdr); print("\n".join(g.L)); print(tail)
```

```python
import sys, argparse

ap = argparse.ArgumentParser()
ap.add_argument("--stamps", action="store_true")
ap.add_argument("--stepstamps", action="store_true")
ap.add_argument("--la", type=int, default=4)
ap.add_argument("--epi", type=int, default=2)
ap.add_argument("--ha_first", type=int, default=12)
ap.add_argument("--flagA_at", type=int, default=16*11+8)
ap.add_argument("--outflags", default="")
ap.add_argument("--noprefetch", action="store_true")
ap.add_argument("--nomfma", action="store_true")
ap.add_argument("--flead", type=int, default=2)
ap.add_argument("--llead", type=int, default=4)
ap.add_argument("--nomall", action="store_true")
ap.add_argument("--noxor", action="store_true")
args = ap.parse_args()

KN = "standalone__glu_gated_bilinear__prompt_kernel"
NP, NW = 4, 6
HFS = NW * 8192
PB = 2 * HFS
PWS = NP * 4096
LDS = PB + 4 * PWS
assert LDS == 163840
FBASE = 0x800000
STAMP_OFF = 0x8000000
LA = args.la
NBUF = 8

sX, sG, sU, sD, sH, sO, sB = 8, 12, 16, 20, 24, 28, 32
s_w, s_mb, s_fb, s_m64, s_n64 = 36, 37, 38, 39, 40
s_xoff, s_woff, s_doff = 41, 42, 43
s_mP, s_mW = 44, 45
s_t0, s_t1, s_t2, s_t3 = 46, 47, 48, 49
s_hst, s_spin, s_hld, s_flag = 50, 51, 52, 53
s_wx, s_wc, s_col, s_c = 54, 55, 56, 57
s_a, s_b = 58, 59
s_st = 60
vX, vW, vD = 1, 5, 9
vRW, vRX = 13, 17
vRD, vRD2 = 21, 23
vL16 = 25
vH0, vH1 = 26, 27
vFl, vMk, vT, vT2 = 28, 29, 30, 31
WBUF = 32
ACC0, ACC1 = 64, 128
HB = 128
EPI = 240
aX, aD = 0, 128

class G:
    def __init__(s):
        s.L = []; s.lg = []; s.vm = []
    def e(s, t): s.L.append("    " + t)
    def lab(s, t): s.L.append(t + ":")
    def ds(s, t, tag): s.e(t); s.lg.append(tag); assert len(s.lg) <= 15, ("lgkm overflow", len(s.lg))
    def vmem(s, t, tag): s.e(t); s.vm.append(tag); assert len(s.vm) <= 63, "vm overflow"
    def need_lg(s, tags):
        idx = max((i for i, t in enumerate(s.lg) if t in tags), default=-1)
        if idx >= 0:
            s.e(f"s_waitcnt lgkmcnt({len(s.lg)-1-idx})"); s.lg = s.lg[idx+1:]
    def need_vm(s, tags):
        idx = max((i for i, t in enumerate(s.vm) if t in tags), default=-1)
        if idx >= 0:
            s.e(f"s_waitcnt vmcnt({len(s.vm)-1-idx})"); s.vm = s.vm[idx+1:]
    def stamp(s, k, force=False):
        if args.stepstamps and 4 <= k <= 11 and not force: return
        if args.stamps: s.e(f"s_memrealtime s[{s_st+2*k}:{s_st+2*k+1}]")

g = G()
e = g.e
def vr(b, n=4): return f"v[{b}:{b+n-1}]"
def ar(b, n=4): return f"a[{b}:{b+n-1}]"
def sr(b, n=4): return f"s[{b}:{b+n-1}]"

hdr = f"""; Fused bilinear GLU: out = ((x Wg) * (x Wu)) Wd   (generated)
; @launch grid=(256,1,1) block=(256,1,1) lds={LDS}
.amdgcn_target "amdgcn-amd-amdhsa--gfx950"
.text
.globl {KN}
.p2align 8
.type {KN},@function
{KN}:"""

e("s_cmp_ge_u32 s2, 256")
e("s_cbranch_scc1 L_end")
if args.stamps:
    for i in range(1, 14): e(f"s_mov_b64 s[{s_st+2*i}:{s_st+2*i+1}], 0")
g.stamp(0)
e("s_load_dwordx8 s[88:95], s[0:1], 0")
e("s_load_dwordx4 s[96:99], s[0:1], 32")
e("s_load_dwordx2 s[100:101], s[0:1], 48")
if not args.noprefetch:
    e("s_getpc_b64 s[4:5]")
    e("s_and_b32 s4, s4, 0xffffff00")
    e(f"s_mov_b32 s6, L_codeend-{KN}")
    e("s_mov_b32 s7, 0x20000")
    e("v_lshlrev_b32 v30, 7, v0")
    g.vmem("buffer_load_dword v31, v30, s[4:7], 0 offen", "pf")
e("v_lshrrev_b32 v30, 6, v0")
e("v_and_b32 v0, 63, v0")
e(f"v_readfirstlane_b32 s{s_w}, v30")
e(f"s_and_b32 s{s_a}, s2, 7")
e(f"s_bfe_u32 s{s_c}, s2, 0x20003")
e(f"s_lshr_b32 s{s_col}, s2, 5")
e(f"s_lshl_b32 s{s_m64}, s{s_a}, 2")
e(f"s_add_u32 s{s_m64}, s{s_m64}, s{s_c}")
e(f"s_lshr_b32 s{s_mb}, s{s_a}, 1")
e(f"s_lshl_b32 s{s_mb}, s{s_mb}, 2")
e(f"s_add_u32 s{s_mb}, s{s_mb}, s{s_c}")
e(f"s_and_b32 s{s_fb}, s{s_a}, 1")
e(f"s_mul_i32 s{s_fb}, s{s_fb}, 7")
e(f"s_add_u32 s{s_fb}, s{s_fb}, s{s_col}")
e(f"s_sub_u32 s{s_fb}, s{s_fb}, 1")
e(f"s_xor_b32 s{s_n64}, s{s_col}, 3")
if args.noxor:
    e(f"s_mov_b32 s{s_c}, 0")
    e(f"s_mov_b32 s{s_wx}, s{s_w}")
else:
    e(f"s_and_b32 s{s_wx}, s{s_col}, 3")
    e(f"s_xor_b32 s{s_wx}, s{s_wx}, s{s_w}")
e(f"s_xor_b32 s{s_wc}, s{s_c}, s{s_w}")
e("v_lshrrev_b32 v240, 3, v0")
e("v_and_b32 v241, 7, v0")
e("v_lshrrev_b32 v242, 4, v0")
e(f"v_lshlrev_b32 v{vL16}, 4, v0")
e(f"s_lshl_b32 s{s_a}, s{s_wx}, 15")
e("v_xor_b32 v243, v241, v242")
e("v_lshlrev_b32 v243, 4, v243")
e(f"v_lshl_add_u32 v{vX}, v240, 10, v243")
e(f"v_add_u32 v{vX}, s{s_a}, v{vX}")
e(f"v_xor_b32 v{vX+1}, 64, v{vX}")
e(f"v_add_u32 v{vX+1}, {7*1024}, v{vX+1}")
e(f"v_add_u32 v{vX+2}, {14*1024}, v{vX}")
e(f"v_add_u32 v{vX+3}, {14*1024}, v{vX+1}")
e(f"s_lshr_b32 s{s_a}, s{s_wc}, 1")
e(f"s_lshl_b32 s{s_a}, s{s_a}, 5")
e(f"s_and_b32 s{s_b}, s{s_wc}, 1")
e(f"s_lshl_b32 s{s_b}, s{s_b}, 3")
e(f"s_add_u32 s{s_a}, s{s_a}, s{s_b}")
e(f"s_mul_i32 s{s_a}, s{s_a}, 3584")
e(f"v_mul_u32_u24 v{vW}, 3584, v240")
e("v_and_b32 v244, 1, v242")
e("v_lshlrev_b32 v245, 4, v241")
e("v_lshlrev_b32 v246, 5, v244")
e("v_xor_b32 v246, v245, v246")
e(f"v_add3_u32 v{vW}, v{vW}, v246, s{s_a}")
e(f"v_xor_b32 v{vW+1}, 64, v{vW}")
e(f"v_add_u32 v{vW+2}, {16*3584-2048}, v{vW}")
e(f"v_add_u32 v{vW+3}, {16*3584-2048}, v{vW+1}")
e(f"s_lshl_b32 s{s_a}, s{s_wc}, 14")
e("v_lshlrev_b32 v246, 6, v244")
e("v_xor_b32 v246, v245, v246")
e(f"v_lshl_add_u32 v{vD}, v240, 10, v246")
e(f"v_add_u32 v{vD}, s{s_a}, v{vD}")
e(f"v_add_u32 v{vD+1}, {8*1024-1024}, v{vD}")
e(f"v_add_u32 v{vD+2}, {128*1024-2048}, v{vD}")
e(f"v_add_u32 v{vD+3}, {136*1024-3072}, v{vD}")
e(f"s_mul_i32 s{s_mP}, s{s_w}, {PWS}")
e(f"s_add_u32 s{s_mP}, s{s_mP}, {PB}")
e(f"s_and_b32 s{s_b}, s{s_w}, 1")
e(f"s_mul_i32 s{s_mW}, s{s_b}, {HFS}")
e(f"s_lshr_b32 s{s_a}, s{s_w}, 1")
e(f"s_lshl_b32 s{s_a}, s{s_a}, 12")
e(f"s_add_u32 s{s_mW}, s{s_mW}, s{s_a}")
e(f"s_lshl_b32 s{s_xoff}, s{s_mb}, 17")
e(f"s_lshl_b32 s{s_woff}, s{s_fb}, 8")
e(f"s_lshl_b32 s{s_doff}, s{s_n64}, 7")
for b, n in ((sX, 2048*1024), (sG, 512*3584), (sU, 512*3584+1024), (sD, 1792*1024), (sH, 0x10000000), (sO, 2048*1024), (sB, 256)):
    e(f"s_mov_b32 s{b+2}, {n}")
    e(f"s_mov_b32 s{b+3}, 0x20000")
e("s_waitcnt lgkmcnt(0)")
e(f"s_mov_b64 s[{sX}:{sX+1}], s[88:89]")
e(f"s_mov_b64 s[{sG}:{sG+1}], s[90:91]")
e(f"s_sub_u32 s{sU}, s92, 1024")
e(f"s_subb_u32 s{sU+1}, s93, 0")
e(f"s_mov_b64 s[{sD}:{sD+1}], s[94:95]")
e(f"s_mov_b64 s[{sO}:{sO+1}], s[96:97]")
e(f"s_mov_b64 s[{sB}:{sB+1}], s[98:99]")
e(f"s_mov_b64 s[{sH}:{sH+1}], s[100:101]")
g.stamp(1)

def dma_item(kind, n, where):
    if where[0] == 'P': m0 = (s_mP, where[1] * 4096)
    else: m0 = (s_mW, where[1] * 8192)
    if kind == 'X': so = (s_xoff, n * 128); srd = [sX]*4; vb = vX
    elif kind == 'W': so = (s_woff, (n & 7) * 64 * 3584 + (n >> 3) * 128); srd = [sG, sU, sG, sU]; vb = vW
    else: so = (s_doff, (256 * (n % 7) + 64 * (n // 7)) * 1024); srd = [sD]*4; vb = vD
    def mk(i):
        def f():
            if i == 0:
                e(f"s_add_u32 m0, s{m0[0]}, {m0[1]}")
                e(f"s_add_u32 s{s_t0}, s{so[0]}, {so[1]}")
            off = f" offset:{1024*i}" if i else ""
            g.vmem(f"buffer_load_dwordx4 v{vb+i}, {sr(srd[i])}, s{s_t0} offen{off} lds", (kind, n))
        return f
    return [mk(i) for i in range(4)]

def late_addr_setup():
    e("v_lshrrev_b32 v240, 5, v0")
    e("v_bfe_u32 v241, v0, 4, 1")
    e("v_bfe_u32 v242, v0, 2, 2")
    e("v_and_b32 v243, 3, v0")
    e("v_bfe_u32 v244, v0, 3, 1")
    e("v_lshlrev_b32 v243, 3, v243")
    e("v_lshl_add_u32 v243, v242, 7, v243")
    e(f"v_mul_u32_u24 v{vRW}, {HFS}, v240")
    e(f"v_lshl_add_u32 v{vRW}, v241, 10, v{vRW}")
    e(f"v_add_u32 v{vRW}, v{vRW}, v243")
    e("v_lshl_or_b32 v245, v241, 1, v244")
    e(f"v_lshl_add_u32 v{vRW}, v245, 5, v{vRW}")
    for q in range(1, 4): e(f"v_xor_b32 v{vRW+q}, {32*q}, v{vRW}")
    e("v_lshl_add_u32 v245, v240, 9, v243")
    e("v_lshl_or_b32 v246, v244, 1, v241")
    e("v_lshl_add_u32 v245, v246, 5, v245")
    e(f"s_lshr_b32 s{s_a}, s{s_w}, 1")
    e(f"s_lshl_b32 s{s_a}, s{s_a}, 6")
    e(f"v_xor_b32 v245, s{s_a}, v245")
    e(f"v_add_u32 v{vRD}, s{s_mP}, v245")
    e(f"v_xor_b32 v{vRD+1}, 64, v{vRD}")
    e(f"v_add_u32 v{vRD2}, s{s_mW}, v245")
    e(f"v_xor_b32 v{vRD2+1}, 64, v{vRD2}")
    e("v_and_b32 v245, 31, v0")
    e("v_bfe_u32 v246, v0, 1, 3")
    e("v_xor_b32 v246, v246, v240")
    e(f"s_lshr_b32 s{s_a}, s{s_c}, 1")
    e(f"s_lshl_b32 s{s_a}, s{s_a}, 2")
    e(f"s_and_b32 s{s_b}, s{s_c}, 1")
    e(f"s_or_b32 s{s_a}, s{s_a}, s{s_b}")
    e(f"v_xor_b32 v246, s{s_a}, v246")
    e("v_lshlrev_b32 v246, 4, v246")
    e("v_lshl_add_u32 v245, v245, 7, v246")
    e(f"v_add_u32 v{vRX}, s{s_mP}, v245")
    for t in range(1, 4): e(f"v_xor_b32 v{vRX+t}, {32*t}, v{vRX}")
    e(f"s_and_b32 s{s_a}, s{s_w}, 1")
    e(f"s_lshl_b32 s{s_a}, s{s_a}, 10")
    e(f"v_add_u32 v{vH0}, s{s_a}, v{vL16}")
    e(f"v_xor_b32 v{vH1}, 0x400, v{vH0}")
    e(f"s_mul_i32 s{s_hld}, s{s_m64}, 229376")
    e(f"s_mul_i32 s{s_a}, s{s_wc}, 57344")
    e(f"s_add_u32 s{s_hld}, s{s_hld}, s{s_a}")
    e(f"v_min_u32 v{vFl}, 27, v0")
    e(f"v_lshlrev_b32 v{vFl}, 2, v{vFl}")
    e(f"s_lshl_b32 s{s_a}, s{s_m64}, 8")
    e(f"s_add_u32 s{s_a}, s{s_a}, {FBASE}")
    e(f"v_add_u32 v{vFl}, s{s_a}, v{vFl}")

def d_reads(item, where, dstbase, dstfile):
    ops = []
    for ee in range(2):
        for nt in range(2):
            for p in range(2):
                def f(ee=ee, nt=nt, p=p):
                    if where[0] == 'P': va = vRD + nt; off = where[1]*4096
                    else: va = vRD2 + nt; off = where[1]*8192
                    off += ee*2048 + p*1024
                    r = dstbase + (ee*2 + nt)*4 + 2*p
                    g.ds(f"ds_read_b64_tr_b16 {dstfile}[{r}:{r+1}], v{va} offset:{off}", ('Dr', item))
                ops.append(f)
    return ops

dplace = {}
for j in range(8): dplace[j] = ('P', (8 + j) % NP)
dplace[8] = ('W', 16 % NW); dplace[9] = ('P', 16 % NP); dplace[10] = ('W', 17 % NW)
dplace[11] = ('P', 17 % NP); dplace[12] = ('P', 18 % NP); dplace[13] = ('P', 19 % NP)

def spin(label, vaddr, srd, off, sleep=0):
    e(f"s_mov_b32 s{s_spin}, 0x40000")
    g.lab(label)
    o = f" offset:{off}" if off else ""
    e(f"buffer_load_dword v{vT}, v{vaddr}, {sr(srd)}, 0 offen{o} sc1")
    e("s_waitcnt vmcnt(0)")
    e(f"v_cmp_ne_u32 vcc, 0, v{vT}")
    e("s_cmp_eq_u64 vcc, -1")
    e(f"s_cbranch_scc1 {label}_ok")
    if sleep: e(f"s_sleep {sleep}")
    e(f"s_sub_u32 s{s_spin}, s{s_spin}, 1")
    e(f"s_cmp_lg_u32 s{s_spin}, 0")
    e(f"s_cbranch_scc1 {label}")
    g.lab(label + "_ok")
    g.vm = []

def epi_ops(acc, s, packed):
    ops = []
    for q in range(4):
        a = acc + 16*q
        if packed:
            for i in range(4): ops.append(lambda a=a, i=i: e(f"v_pk_mul_f32 v[{a+2*i}:{a+2*i+1}], v[{a+2*i}:{a+2*i+1}], v[{a+8+2*i}:{a+9+2*i}]"))
        else:
            for i in range(8): ops.append(lambda a=a, i=i: e(f"v_mul_f32 v{a+i}, v{a+i}, v{a+8+i}"))
        for i in range(4): ops.append(lambda a=a, i=i, q=q: e(f"v_cvt_pk_bf16_f32 v{EPI+4*q+i}, v{a+2*i}, v{a+2*i+1}"))
        def st(q=q):
            e(f"s_add_u32 s{s_t2}, s{s_hst}, {q*57344 + s*28672}")
            g.vmem(f"buffer_store_dwordx4 {vr(EPI+4*q)}, v{vL16}, {sr(sH)}, s{s_t2} offen sc1", ('hs', s))
        ops.append(st)
    return ops

def flag_store(s):
    e(f"v_mov_b32 v{vT2}, s{s_flag}")
    e(f"v_mov_b32 v{vT}, 1")
    e("s_mov_b64 exec, 1")
    g.vmem(f"buffer_store_dword v{vT}, v{vT2}, {sr(sH)}, 0 offen offset:{128*s} sc1", ('fl', s))
    e("s_mov_b64 exec, -1")

def h_loads(s, dstfile, dstbase):
    ops = []
    for fb in range(14):
        for mt in range(2):
            def f(fb=fb, mt=mt):
                if fb % 2 == 0 and mt == 0:
                    e(f"s_add_u32 s{s_t3}, s{s_hld}, {s*28672 + fb*2048}")
                r = dstbase + (fb*2 + mt)*4
                off = " offset:2048" if fb % 2 else ""
                g.vmem(f"buffer_load_dwordx4 {dstfile}[{r}:{r+3}], v{vH0+mt}, {sr(sH)}, s{s_t3} offen{off} sc1", ('h', s, fb, mt))
            ops.append(f)
    return ops

e(f"s_cmp_eq_u32 s{s_col}, 0")
e("s_cbranch_scc1 L_spare")

for f in dma_item('X', 0, ('P', 0)): f()
for f in dma_item('W', 0, ('W', 0)): f()
late_addr_setup()
e(f"s_lshr_b32 s{s_a}, s{s_wx}, 1")
e(f"s_lshl_b32 s{s_b}, s{s_mb}, 1")
e(f"s_add_u32 s{s_a}, s{s_a}, s{s_b}")
e(f"s_mul_i32 s{s_hst}, s{s_a}, 229376")
e(f"s_lshl_b32 s{s_b}, s{s_fb}, 1")
e(f"s_and_b32 s{s_t1}, s{s_wx}, 1")
e(f"s_add_u32 s{s_b}, s{s_b}, s{s_t1}")
e(f"s_lshl_b32 s{s_t1}, s{s_b}, 10")
e(f"s_add_u32 s{s_hst}, s{s_hst}, s{s_t1}")
e(f"s_lshl_b32 s{s_b}, s{s_b}, 2")
e(f"s_lshl_b32 s{s_t1}, s{s_a}, 8")
e(f"s_add_u32 s{s_b}, s{s_b}, s{s_t1}")
e(f"s_add_u32 s{s_flag}, s{s_b}, {FBASE}")
e(f"s_lshl_b32 s{s_a}, s{s_a}, 2")
e(f"s_lshl_b32 s{s_b}, s{s_m64}, 2")
e(f"v_mov_b32 v{vMk}, s{s_a}")
e(f"v_mov_b32 v240, s{s_b}")
e("v_cmp_lt_u32 vcc, 31, v0")
e("s_nop 1")
e(f"v_cndmask_b32 v{vMk}, v{vMk}, v240, vcc")
g.stamp(2)
vm0 = list(g.vm)

def phase1(role, lead):
    g.vm = list(vm0); g.lg = []
    after = {j: [] for j in range(-8, 400)}
    def at(j, f): after[j].append(f)
    def wread(j):
        n, t, q = j >> 4, (j >> 2) & 3, j & 3
        b = WBUF + (j % NBUF) * 4
        off = (n % NW) * 8192 + t * 2048
        g.ds(f"ds_read_b64_tr_b16 v[{b}:{b+1}], v{vRW+q} offset:{off}", ('w', j))
        g.ds(f"ds_read_b64_tr_b16 v[{b+2}:{b+3}], v{vRW+q} offset:{off+512}", ('w', j))
    def xread(n, t):
        r = aX + (n*4 + t)*4
        g.ds(f"ds_read_b128 {ar(r)}, v{vRX+t} offset:{(n % NP)*4096}", ('x', n*4+t))
    issued = {('X', 0), ('W', 0)}
    def barrier(n):
        tags = [('W', n), ('X', n) if n < 8 else ('D', n-8)]
        assert all(t in issued for t in tags), (role, n)
        g.need_vm(tags)
        e("s_barrier")
    for n in range(16):
        b = 16*n - LA
        if n > 0: at(b - 1, lambda n=n: barrier(n))
        if n < 8:
            for t in range(4): at(b + t, lambda n=n, t=t: xread(n, t))
        else:
            for i, f in enumerate(d_reads(n-8, dplace[n-8], aD + (n-8)*16, 'a')): at(b + i, f)
    items = []
    for m in range(1, 20):
        if m < 18:
            kind, n = ('W', m) if m < 16 else ('D', 8 + 2*(m-16))
            ring = -LA if m < NW else 16*(m - NW + 2) - LA
            want = 16*(m - lead) - LA
            items.append((want, ring, kind, n, ('W', m % NW), None))
        kind, n = ('X', m) if m < 8 else (('D', m - 8) if m < 16 else ('D', {16: 9, 17: 11, 18: 12, 19: 13}[m]))
        pm = m - NP
        ring = -LA if pm < 0 else 16*pm - LA + 9
        ptag = None if pm < 0 else ([('x', pm*4+3)] if pm < 8 else [('Dr', pm-8)])
        want = 16*(m - lead) - LA + 8
        items.append((want, ring, kind, n, ('P', m % NP), ptag))
    cur = -LA
    for want, ring, kind, n, where, ptag in items:
        start = max(want, ring, cur)
        sp = 1 if start > want + 2 else 2
        if ptag: at(start, lambda ptag=ptag: g.need_lg(ptag))
        for i, f in enumerate(dma_item(kind, n, where)):
            at(start + sp*i, f)
        at(start + sp*3, lambda k=(kind, n): issued.add(k))
        cur = start + sp*4
    ops = epi_ops(ACC0, 0, False)
    j = 131
    while ops:
        for _ in range(args.epi):
            if ops: at(j, ops.pop(0))
        j += 1
    assert j < args.flagA_at
    at(16*7, lambda: g.vmem(f"buffer_load_dword v{vT2}, v{vMk}, {sr(sB)}, 0 offen sc1", 'mk'))
    def flagA():
        g.need_vm([('hs', 0), 'mk'])
        e(f"v_cmp_ne_u32 vcc, 0, v{vT2}")
        e("s_cmp_eq_u64 vcc, -1")
        e(f"s_cbranch_scc1 L_mk{role}_ok")
        save = list(g.vm)
        spin(f"L_mk{role}", vMk, sB, 0)
        g.vm = save
        flag_store(0)
    at(args.flagA_at, flagA)
    at(250, lambda: g.vmem(f"buffer_load_dword v{vMk}, v{vFl}, {sr(sH)}, 0 offen sc1", 'pa'))

    barrier(0)
    g.stamp(3)
    for j in range(-LA, 256):
        if j >= 0:
            n, t, q = j >> 4, (j >> 2) & 3, j & 3
            ks = (n & 7) * 4 + t
            g.need_lg([('w', j), ('x', ks)])
            acc = (ACC0 if n < 8 else ACC1) + 16*q
            c = "0" if ks == 0 else vr(acc, 16)
            if not args.nomfma: e(f"v_mfma_f32_32x32x16_bf16 {vr(acc,16)}, {vr(WBUF + (j % NBUF)*4)}, {ar(aX + ks*4)}, {c}")
            if j in (127,): g.stamp(4)
            if args.stepstamps and j % 32 == 31: g.stamp(4 + j // 32, True)
        if j + LA < 256: wread(j + LA)
        for f in after[j]: f()
    g.stamp(5)
    g.need_lg(g.lg[:])
    e("s_barrier")
    ops = epi_ops(ACC1, 1, True)
    e("s_nop 7")
    for f in ops: f()
    g.stamp(6)
    for j in range(256, 400):
        for f in after[j]: f()
    g.need_vm(['pa'])
    e(f"v_cmp_ne_u32 vcc, 0, v{vMk}")
    e("s_cmp_eq_u64 vcc, -1")
    e(f"s_cbranch_scc1 L_pa{role}_ok")
    save = list(g.vm)
    spin(f"L_pa{role}", vFl, sH, 0)
    g.vm = save
    for f in h_loads(0, 'a', aX)[:args.ha_first]: f()
    g.need_vm([('hs', 1)])
    flag_store(1)
    g.stamp(7)
    e("s_branch L_ph2")
    return list(g.vm)

if args.llead != args.flead:
    e(f"s_cmp_lg_u32 s{s_w}, 0")
    e("s_cbranch_scc1 L_follow")
    vmA = phase1("L", args.llead)
    g.lab("L_follow")
vmB = phase1("F", args.flead)

g.lab("L_spare")
g.vm = []; g.lg = []
e(f"s_cmp_lg_u32 s{s_w}, 0")
e("s_cbranch_scc1 L_sp1")
e(f"s_lshl_b32 s{s_a}, s{s_m64}, 8")
e(f"s_add_u32 s{s_a}, s{s_a}, {FBASE}")
e("v_lshlrev_b32 v240, 2, v0")
e("v_mov_b32 v241, 0")
e(f"buffer_store_dword v241, v240, {sr(sH)}, s{s_a} offen sc1")
e("s_waitcnt vmcnt(0)")
e(f"s_lshl_b32 s{s_a}, s{s_m64}, 2")
e(f"v_mov_b32 v240, s{s_a}")
e("v_mov_b32 v241, 1")
e("s_mov_b64 exec, 1")
e(f"buffer_store_dword v241, v240, {sr(sB)}, 0 offen sc1")
e("s_mov_b64 exec, -1")
g.lab("L_sp1")
if not args.nomall:
    e(f"s_mul_i32 s{s_a}, s{s_m64}, 57344")
    e(f"s_mul_i32 s{s_b}, s{s_w}, 14336")
    e(f"s_add_u32 s{s_a}, s{s_a}, s{s_b}")
    e("v_min_u32 v240, 55, v0")
    e("v_lshlrev_b32 v241, 8, v240")
    e("v_lshlrev_b32 v242, 7, v240")
    e(f"buffer_load_dword v243, v241, {sr(sG)}, s{s_a} offen offset:128")
    e(f"buffer_load_dword v244, v241, {sr(sU)}, s{s_a} offen offset:{128+1024}")
    e(f"buffer_load_dword v245, v242, {sr(sD)}, s{s_a} offen")
    e(f"s_add_u32 s{s_a}, s{s_a}, 7168")
    e(f"buffer_load_dword v246, v242, {sr(sD)}, s{s_a} offen")
    e("s_waitcnt vmcnt(0)")
for j in range(4):
    for f in dma_item('D', j, dplace[j]): f()
late_addr_setup()
for j in (8, 10):
    for f in dma_item('D', j, dplace[j]): f()
nxt = {0: 4, 1: 5, 2: 6, 3: 7, 4: 9, 5: 11, 6: 12, 7: 13}
for j in range(8):
    g.need_vm([('D', j)])
    for f in d_reads(j, dplace[j], aD + j*16, 'a'): f()
    g.need_lg([('Dr', j)])
    assert dplace[nxt[j]] == dplace[j]
    for f in dma_item('D', nxt[j], dplace[nxt[j]]): f()
e(f"s_lshl_b32 s{s_a}, s{s_m64}, 2")
e(f"v_mov_b32 v{vMk}, s{s_a}")
spin("L_smk", vMk, sB, 0, sleep=8)
spin("L_spa", vFl, sH, 0, sleep=8)
for f in h_loads(0, 'a', aX)[:args.ha_first]: f()
vm_spare = list(g.vm)

g.lab("L_ph2")
g.vm = vm_spare
assert [t for t in vmB if t[0] == 'h'] == vm_spare
g.lg = []
for f in h_loads(0, 'a', aX)[args.ha_first:]: f()
ACC2 = ACC0
def mf2(fb, s, dreg, hfile, hbase, first):
    for mt in range(2):
        g.need_vm([('h', s, fb, mt)])
        for nt in range(2):
            acc = ACC2 + (2*nt + mt)*16
            c = "0" if first else vr(acc, 16)
            h = hbase + (fb*2 + mt)*4
            e(f"v_mfma_f32_32x32x16_bf16 {vr(acc,16)}, {ar(dreg + nt*4)}, {hfile}[{h}:{h+3}], {c}")
for fb in range(14):
    mf2(fb, 0, aD + fb*8, 'a', aX, fb == 0)
    if fb >= 3 and fb % 2 == 1:
        item = 8 + (fb - 3)//2
        g.need_lg(g.lg[:])
        for f in d_reads(item, dplace[item], aD + (item-8)*16, 'a'): f()
for lam in range(1, 4):
    e(f"s_xor_b32 s{s_a}, s{s_w}, {lam}")
    e(f"s_and_b32 s{s_b}, s{s_a}, 1")
    e(f"s_mul_i32 s{s_b}, s{s_b}, {HFS}")
    e(f"s_lshr_b32 s{s_a}, s{s_a}, 1")
    e(f"s_mul_i32 s{s_a}, s{s_a}, 12288")
    e(f"s_add_u32 s{s_a}, s{s_a}, s{s_b}")
    e(f"v_add_u32 v{lam}, s{s_a}, v{vL16}")
e(f"s_and_b32 s{s_b}, s{s_w}, 1")
e(f"s_mul_i32 s{s_b}, s{s_b}, {HFS}")
e(f"s_lshr_b32 s{s_a}, s{s_w}, 1")
e(f"s_mul_i32 s{s_a}, s{s_a}, 12288")
e(f"s_add_u32 s{s_a}, s{s_a}, s{s_b}")
e(f"v_add_u32 v4, s{s_a}, v{vL16}")
e("v_and_b32 v5, 31, v0")
e("v_lshrrev_b32 v6, 5, v0")
e("v_lshlrev_b32 v6, 4, v6")
e("v_lshl_add_u32 v5, v5, 10, v6")
e(f"s_lshl_b32 s{s_a}, s{s_m64}, 16")
e(f"s_and_b32 s{s_b}, s{s_w}, 1")
e(f"s_lshl_b32 s{s_b}, s{s_b}, 15")
e(f"s_add_u32 s{s_a}, s{s_a}, s{s_b}")
e(f"s_lshr_b32 s{s_b}, s{s_w}, 1")
e(f"s_lshl_b32 s{s_b}, s{s_b}, 6")
e(f"s_add_u32 s{s_a}, s{s_a}, s{s_b}")
e(f"s_add_u32 s{s_a}, s{s_a}, s{s_doff}")
g.stamp(8)
spin("L_pb", vFl, sH, 128)
g.stamp(9)
for f in h_loads(1, 'v', HB): f()
g.need_lg(g.lg[:])
for fb in range(14):
    dreg = aD + 7*16 + fb*8 if fb < 2 else aD + (fb-2)*8
    mf2(fb, 1, dreg, 'v', HB, False)
g.stamp(10)
e("s_nop 7")
e("s_nop 3")
for lam in (2, 1, 3):
    for a in range(4):
        r = ACC2 + lam*16 + a*4
        e(f"ds_write_b128 v{lam}, {vr(r)} offset:{(lam-1)*4096 + a*1024}")
e("s_waitcnt lgkmcnt(0)")
e("s_barrier")
for i in range(12):
    g.ds(f"ds_read_b128 {vr(HB + 4*i)}, v4 offset:{i*1024}", ('rd', i))
for sl in range(3):
    for a in range(4):
        g.need_lg([('rd', sl*4 + a)])
        r = ACC2 + a*4; t = HB + (sl*4 + a)*4
        e(f"v_pk_add_f32 v[{r}:{r+1}], v[{r}:{r+1}], v[{t}:{t+1}]")
        e(f"v_pk_add_f32 v[{r+2}:{r+3}], v[{r+2}:{r+3}], v[{t+2}:{t+3}]")
for i in range(8):
    e(f"v_cvt_pk_bf16_f32 v{EPI+i}, v{ACC2+2*i}, v{ACC2+2*i+1}")
e("s_nop 1")
e(f"v_permlane32_swap_b32 v{EPI}, v{EPI+2}")
e(f"v_permlane32_swap_b32 v{EPI+1}, v{EPI+3}")
e(f"v_permlane32_swap_b32 v{EPI+4}, v{EPI+6}")
e(f"v_permlane32_swap_b32 v{EPI+5}, v{EPI+7}")
e(f"buffer_store_dwordx4 {vr(EPI)}, v5, {sr(sO)}, s{s_a} offen {args.outflags}")
e(f"buffer_store_dwordx4 {vr(EPI+4)}, v5, {sr(sO)}, s{s_a} offen offset:32 {args.outflags}")
if args.stamps:
    g.stamp(11)
    e("s_waitcnt vmcnt(0)")
    g.stamp(12)
    e("s_waitcnt lgkmcnt(0)")
    NS = 14
    for i in range(2*NS): e(f"v_mov_b32 v{64+i}, s{s_st+i}")
    e(f"s_lshl_b32 s46, s2, 2")
    e(f"s_add_u32 s46, s46, s{s_w}")
    e(f"s_mul_i32 s46, s46, {NS*8}")
    e(f"s_add_u32 s46, s46, {STAMP_OFF}")
    e("v_mov_b32 v5, 0")
    e("s_mov_b64 exec, 1")
    for i in range(NS//2): e(f"buffer_store_dwordx4 {vr(64+4*i)}, v5, {sr(sH)}, s46 offen offset:{16*i}")
g.lab("L_end")
e("s_endpgm")
g.lab("L_codeend")

tail = f""".section .rodata,"a"
.p2align 6
.amdhsa_kernel {KN}
  .amdhsa_next_free_vgpr 512
  .amdhsa_next_free_sgpr 102
  .amdhsa_accum_offset 256
  .amdhsa_group_segment_fixed_size 0
  .amdhsa_kernarg_size 56
  .amdhsa_user_sgpr_count 2
  .amdhsa_user_sgpr_kernarg_segment_ptr 1
  .amdhsa_system_sgpr_workgroup_id_x 1
.end_amdhsa_kernel"""
print(hdr); print("\n".join(g.L)); print(tail)
```

```python
import sys, argparse

ap = argparse.ArgumentParser()
ap.add_argument("--stamps", action="store_true")
ap.add_argument("--stepstamps", action="store_true")
ap.add_argument("--la", type=int, default=4)
ap.add_argument("--epi", type=int, default=2)
ap.add_argument("--ha_first", type=int, default=12)
ap.add_argument("--flagA_at", type=int, default=16*11+8)
ap.add_argument("--outflags", default="")
ap.add_argument("--noprefetch", action="store_true")
ap.add_argument("--nomfma", action="store_true")
ap.add_argument("--flead", type=int, default=2)
ap.add_argument("--llead", type=int, default=4)
ap.add_argument("--nomall", action="store_true")
ap.add_argument("--noxor", action="store_true")
ap.add_argument("--diag", default="")
args = ap.parse_args()
if args.diag: args.stamps = True

KN = "standalone__glu_gated_bilinear__prompt_kernel"
NP, NW = 4, 6
HFS = NW * 8192
PB = 2 * HFS
PWS = NP * 4096
LDS = PB + 4 * PWS
assert LDS == 163840
FBASE = 0x800000
STAMP_OFF = 0x8000000
LA = args.la
NBUF = 8

sX, sG, sU, sD, sH, sO, sB = 8, 12, 16, 20, 24, 28, 32
s_w, s_mb, s_fb, s_m64, s_n64 = 36, 37, 38, 39, 40
s_xoff, s_woff, s_doff = 41, 42, 43
s_mP, s_mW = 44, 45
s_t0, s_t1, s_t2, s_t3 = 46, 47, 48, 49
s_hst, s_spin, s_hld, s_flag = 50, 51, 52, 53
s_wx, s_wc, s_col, s_c = 54, 55, 56, 57
s_a, s_b = 58, 59
s_st = 60
vX, vW, vD = 1, 5, 9
vRW, vRX = 13, 17
vRD, vRD2 = 21, 23
vL16 = 25
vH0, vH1 = 26, 27
vFl, vMk, vT, vT2 = 28, 29, 30, 31
WBUF = 32
ACC0, ACC1 = 64, 128
HB = 128
EPI = 240
aX, aD = 0, 128

class G:
    def __init__(s):
        s.L = []; s.lg = []; s.vm = []
    def e(s, t): s.L.append("    " + t)
    def lab(s, t): s.L.append(t + ":")
    def ds(s, t, tag): s.e(t); s.lg.append(tag); assert len(s.lg) <= 15, ("lgkm overflow", len(s.lg))
    def vmem(s, t, tag): s.e(t); s.vm.append(tag); assert len(s.vm) <= 63, "vm overflow"
    def need_lg(s, tags):
        idx = max((i for i, t in enumerate(s.lg) if t in tags), default=-1)
        if idx >= 0:
            s.e(f"s_waitcnt lgkmcnt({len(s.lg)-1-idx})"); s.lg = s.lg[idx+1:]
    def need_vm(s, tags):
        idx = max((i for i, t in enumerate(s.vm) if t in tags), default=-1)
        if idx >= 0:
            s.e(f"s_waitcnt vmcnt({len(s.vm)-1-idx})"); s.vm = s.vm[idx+1:]
    def stamp(s, k, force=False):
        if args.stepstamps and 4 <= k <= 11 and not force: return
        if args.stamps: s.e(f"s_memrealtime s[{s_st+2*k}:{s_st+2*k+1}]")

g = G()
e = g.e
def vr(b, n=4): return f"v[{b}:{b+n-1}]"
def ar(b, n=4): return f"a[{b}:{b+n-1}]"
def sr(b, n=4): return f"s[{b}:{b+n-1}]"

hdr = f"""; Fused bilinear GLU: out = ((x Wg) * (x Wu)) Wd   (generated)
; @launch grid=(256,1,1) block=(256,1,1) lds={LDS}
.amdgcn_target "amdgcn-amd-amdhsa--gfx950"
.text
.globl {KN}
.p2align 8
.type {KN},@function
{KN}:"""

e("s_cmp_ge_u32 s2, 256")
e("s_cbranch_scc1 L_end")
if args.stamps:
    for i in range(1, 14): e(f"s_mov_b64 s[{s_st+2*i}:{s_st+2*i+1}], 0")
g.stamp(0)
e("s_load_dwordx8 s[88:95], s[0:1], 0")
e("s_load_dwordx4 s[96:99], s[0:1], 32")
e("s_load_dwordx2 s[100:101], s[0:1], 48")
if not args.noprefetch:
    e("s_getpc_b64 s[4:5]")
    e("s_and_b32 s4, s4, 0xffffff00")
    e(f"s_mov_b32 s6, L_codeend-{KN}")
    e("s_mov_b32 s7, 0x20000")
    e("v_lshlrev_b32 v30, 7, v0")
    g.vmem("buffer_load_dword v31, v30, s[4:7], 0 offen", "pf")
e("v_lshrrev_b32 v30, 6, v0")
e("v_and_b32 v0, 63, v0")
e(f"v_readfirstlane_b32 s{s_w}, v30")
e(f"s_and_b32 s{s_a}, s2, 7")
e(f"s_bfe_u32 s{s_c}, s2, 0x20003")
e(f"s_lshr_b32 s{s_col}, s2, 5")
e(f"s_lshl_b32 s{s_m64}, s{s_a}, 2")
e(f"s_add_u32 s{s_m64}, s{s_m64}, s{s_c}")
e(f"s_lshr_b32 s{s_mb}, s{s_a}, 1")
e(f"s_lshl_b32 s{s_mb}, s{s_mb}, 2")
e(f"s_add_u32 s{s_mb}, s{s_mb}, s{s_c}")
e(f"s_and_b32 s{s_fb}, s{s_a}, 1")
e(f"s_mul_i32 s{s_fb}, s{s_fb}, 7")
e(f"s_add_u32 s{s_fb}, s{s_fb}, s{s_col}")
e(f"s_sub_u32 s{s_fb}, s{s_fb}, 1")
e(f"s_xor_b32 s{s_n64}, s{s_col}, 3")
if args.noxor:
    e(f"s_mov_b32 s{s_c}, 0")
    e(f"s_mov_b32 s{s_wx}, s{s_w}")
else:
    e(f"s_and_b32 s{s_wx}, s{s_col}, 3")
    e(f"s_xor_b32 s{s_wx}, s{s_wx}, s{s_w}")
e(f"s_xor_b32 s{s_wc}, s{s_c}, s{s_w}")
e("v_lshrrev_b32 v240, 3, v0")
e("v_and_b32 v241, 7, v0")
e("v_lshrrev_b32 v242, 4, v0")
e(f"v_lshlrev_b32 v{vL16}, 4, v0")
e(f"s_lshl_b32 s{s_a}, s{s_wx}, 15")
e("v_xor_b32 v243, v241, v242")
e("v_lshlrev_b32 v243, 4, v243")
e(f"v_lshl_add_u32 v{vX}, v240, 10, v243")
e(f"v_add_u32 v{vX}, s{s_a}, v{vX}")
e(f"v_xor_b32 v{vX+1}, 64, v{vX}")
e(f"v_add_u32 v{vX+1}, {7*1024}, v{vX+1}")
e(f"v_add_u32 v{vX+2}, {14*1024}, v{vX}")
e(f"v_add_u32 v{vX+3}, {14*1024}, v{vX+1}")
e(f"s_lshr_b32 s{s_a}, s{s_wc}, 1")
e(f"s_lshl_b32 s{s_a}, s{s_a}, 5")
e(f"s_and_b32 s{s_b}, s{s_wc}, 1")
e(f"s_lshl_b32 s{s_b}, s{s_b}, 3")
e(f"s_add_u32 s{s_a}, s{s_a}, s{s_b}")
e(f"s_mul_i32 s{s_a}, s{s_a}, 3584")
e(f"v_mul_u32_u24 v{vW}, 3584, v240")
e("v_and_b32 v244, 1, v242")
e("v_lshlrev_b32 v245, 4, v241")
e("v_lshlrev_b32 v246, 5, v244")
e("v_xor_b32 v246, v245, v246")
e(f"v_add3_u32 v{vW}, v{vW}, v246, s{s_a}")
e(f"v_xor_b32 v{vW+1}, 64, v{vW}")
e(f"v_add_u32 v{vW+2}, {16*3584-2048}, v{vW}")
e(f"v_add_u32 v{vW+3}, {16*3584-2048}, v{vW+1}")
e(f"s_lshl_b32 s{s_a}, s{s_wc}, 14")
e("v_lshlrev_b32 v246, 6, v244")
e("v_xor_b32 v246, v245, v246")
e(f"v_lshl_add_u32 v{vD}, v240, 10, v246")
e(f"v_add_u32 v{vD}, s{s_a}, v{vD}")
e(f"v_add_u32 v{vD+1}, {8*1024-1024}, v{vD}")
e(f"v_add_u32 v{vD+2}, {128*1024-2048}, v{vD}")
e(f"v_add_u32 v{vD+3}, {136*1024-3072}, v{vD}")
e(f"s_mul_i32 s{s_mP}, s{s_w}, {PWS}")
e(f"s_add_u32 s{s_mP}, s{s_mP}, {PB}")
e(f"s_and_b32 s{s_b}, s{s_w}, 1")
e(f"s_mul_i32 s{s_mW}, s{s_b}, {HFS}")
e(f"s_lshr_b32 s{s_a}, s{s_w}, 1")
e(f"s_lshl_b32 s{s_a}, s{s_a}, 12")
e(f"s_add_u32 s{s_mW}, s{s_mW}, s{s_a}")
e(f"s_lshl_b32 s{s_xoff}, s{s_mb}, 17")
e(f"s_lshl_b32 s{s_woff}, s{s_fb}, 8")
e(f"s_lshl_b32 s{s_doff}, s{s_n64}, 7")
for b, n in ((sX, 2048*1024), (sG, 512*3584), (sU, 512*3584+1024), (sD, 1792*1024), (sH, 0x10000000), (sO, 2048*1024), (sB, 256)):
    e(f"s_mov_b32 s{b+2}, {n}")
    e(f"s_mov_b32 s{b+3}, 0x20000")
e("s_waitcnt lgkmcnt(0)")
e(f"s_mov_b64 s[{sX}:{sX+1}], s[88:89]")
e(f"s_mov_b64 s[{sG}:{sG+1}], s[90:91]")
e(f"s_sub_u32 s{sU}, s92, 1024")
e(f"s_subb_u32 s{sU+1}, s93, 0")
e(f"s_mov_b64 s[{sD}:{sD+1}], s[94:95]")
e(f"s_mov_b64 s[{sO}:{sO+1}], s[96:97]")
e(f"s_mov_b64 s[{sB}:{sB+1}], s[98:99]")
e(f"s_mov_b64 s[{sH}:{sH+1}], s[100:101]")
g.stamp(1)

def dma_item(kind, n, where):
    if where[0] == 'P': m0 = (s_mP, where[1] * 4096)
    else: m0 = (s_mW, where[1] * 8192)
    if kind == 'X': so = (s_xoff, n * 128); srd = [sX]*4; vb = vX
    elif kind == 'W': so = (s_woff, (n & 7) * 64 * 3584 + (n >> 3) * 128); srd = [sG, sU, sG, sU]; vb = vW
    else: so = (s_doff, (256 * (n % 7) + 64 * (n // 7)) * 1024); srd = [sD]*4; vb = vD
    def mk(i):
        def f():
            if i == 0:
                e(f"s_add_u32 m0, s{m0[0]}, {m0[1]}")
                e(f"s_add_u32 s{s_t0}, s{so[0]}, {so[1]}")
            off = f" offset:{1024*i}" if i else ""
            g.vmem(f"buffer_load_dwordx4 v{vb+i}, {sr(srd[i])}, s{s_t0} offen{off} lds", (kind, n))
        return f
    return [mk(i) for i in range(4)]

def late_addr_setup():
    e("v_lshrrev_b32 v240, 5, v0")
    e("v_bfe_u32 v241, v0, 4, 1")
    e("v_bfe_u32 v242, v0, 2, 2")
    e("v_and_b32 v243, 3, v0")
    e("v_bfe_u32 v244, v0, 3, 1")
    e("v_lshlrev_b32 v243, 3, v243")
    e("v_lshl_add_u32 v243, v242, 7, v243")
    e(f"v_mul_u32_u24 v{vRW}, {HFS}, v240")
    e(f"v_lshl_add_u32 v{vRW}, v241, 10, v{vRW}")
    e(f"v_add_u32 v{vRW}, v{vRW}, v243")
    e("v_lshl_or_b32 v245, v241, 1, v244")
    e(f"v_lshl_add_u32 v{vRW}, v245, 5, v{vRW}")
    for q in range(1, 4): e(f"v_xor_b32 v{vRW+q}, {32*q}, v{vRW}")
    e("v_lshl_add_u32 v245, v240, 9, v243")
    e("v_lshl_or_b32 v246, v244, 1, v241")
    e("v_lshl_add_u32 v245, v246, 5, v245")
    e(f"s_lshr_b32 s{s_a}, s{s_w}, 1")
    e(f"s_lshl_b32 s{s_a}, s{s_a}, 6")
    e(f"v_xor_b32 v245, s{s_a}, v245")
    e(f"v_add_u32 v{vRD}, s{s_mP}, v245")
    e(f"v_xor_b32 v{vRD+1}, 64, v{vRD}")
    e(f"v_add_u32 v{vRD2}, s{s_mW}, v245")
    e(f"v_xor_b32 v{vRD2+1}, 64, v{vRD2}")
    e("v_and_b32 v245, 31, v0")
    e("v_bfe_u32 v246, v0, 1, 3")
    e("v_xor_b32 v246, v246, v240")
    e(f"s_lshr_b32 s{s_a}, s{s_c}, 1")
    e(f"s_lshl_b32 s{s_a}, s{s_a}, 2")
    e(f"s_and_b32 s{s_b}, s{s_c}, 1")
    e(f"s_or_b32 s{s_a}, s{s_a}, s{s_b}")
    e(f"v_xor_b32 v246, s{s_a}, v246")
    e("v_lshlrev_b32 v246, 4, v246")
    e("v_lshl_add_u32 v245, v245, 7, v246")
    e(f"v_add_u32 v{vRX}, s{s_mP}, v245")
    for t in range(1, 4): e(f"v_xor_b32 v{vRX+t}, {32*t}, v{vRX}")
    e(f"s_and_b32 s{s_a}, s{s_w}, 1")
    e(f"s_lshl_b32 s{s_a}, s{s_a}, 10")
    e(f"v_add_u32 v{vH0}, s{s_a}, v{vL16}")
    e(f"v_xor_b32 v{vH1}, 0x400, v{vH0}")
    e(f"s_mul_i32 s{s_hld}, s{s_m64}, 229376")
    e(f"s_mul_i32 s{s_a}, s{s_wc}, 57344")
    e(f"s_add_u32 s{s_hld}, s{s_hld}, s{s_a}")
    e(f"v_min_u32 v{vFl}, 27, v0")
    e(f"v_lshlrev_b32 v{vFl}, 2, v{vFl}")
    e(f"s_lshl_b32 s{s_a}, s{s_m64}, 8")
    e(f"s_add_u32 s{s_a}, s{s_a}, {FBASE}")
    e(f"v_add_u32 v{vFl}, s{s_a}, v{vFl}")

def d_reads(item, where, dstbase, dstfile):
    ops = []
    for ee in range(2):
        for nt in range(2):
            for p in range(2):
                def f(ee=ee, nt=nt, p=p):
                    if where[0] == 'P': va = vRD + nt; off = where[1]*4096
                    else: va = vRD2 + nt; off = where[1]*8192
                    off += ee*2048 + p*1024
                    r = dstbase + (ee*2 + nt)*4 + 2*p
                    g.ds(f"ds_read_b64_tr_b16 {dstfile}[{r}:{r+1}], v{va} offset:{off}", ('Dr', item))
                ops.append(f)
    return ops

dplace = {}
for j in range(8): dplace[j] = ('P', (8 + j) % NP)
dplace[8] = ('W', 16 % NW); dplace[9] = ('P', 16 % NP); dplace[10] = ('W', 17 % NW)
dplace[11] = ('P', 17 % NP); dplace[12] = ('P', 18 % NP); dplace[13] = ('P', 19 % NP)

def spin(label, vaddr, srd, off, sleep=0):
    e(f"s_mov_b32 s{s_spin}, 0x40000")
    g.lab(label)
    o = f" offset:{off}" if off else ""
    e(f"buffer_load_dword v{vT}, v{vaddr}, {sr(srd)}, 0 offen{o} sc1")
    e("s_waitcnt vmcnt(0)")
    e(f"v_cmp_ne_u32 vcc, 0, v{vT}")
    e("s_cmp_eq_u64 vcc, -1")
    e(f"s_cbranch_scc1 {label}_ok")
    if sleep: e(f"s_sleep {sleep}")
    e(f"s_sub_u32 s{s_spin}, s{s_spin}, 1")
    e(f"s_cmp_lg_u32 s{s_spin}, 0")
    e(f"s_cbranch_scc1 {label}")
    g.lab(label + "_ok")
    g.vm = []

def epi_ops(acc, s, packed):
    ops = []
    for q in range(4):
        a = acc + 16*q
        if packed:
            for i in range(4): ops.append(lambda a=a, i=i: e(f"v_pk_mul_f32 v[{a+2*i}:{a+2*i+1}], v[{a+2*i}:{a+2*i+1}], v[{a+8+2*i}:{a+9+2*i}]"))
        else:
            for i in range(8): ops.append(lambda a=a, i=i: e(f"v_mul_f32 v{a+i}, v{a+i}, v{a+8+i}"))
        for i in range(4): ops.append(lambda a=a, i=i, q=q: e(f"v_cvt_pk_bf16_f32 v{EPI+4*q+i}, v{a+2*i}, v{a+2*i+1}"))
        def st(q=q):
            e(f"s_add_u32 s{s_t2}, s{s_hst}, {q*57344 + s*28672}")
            g.vmem(f"buffer_store_dwordx4 {vr(EPI+4*q)}, v{vL16}, {sr(sH)}, s{s_t2} offen sc1", ('hs', s))
        ops.append(st)
    return ops

def flag_store(s):
    e(f"v_mov_b32 v{vT2}, s{s_flag}")
    e(f"v_mov_b32 v{vT}, 1")
    e("s_mov_b64 exec, 1")
    g.vmem(f"buffer_store_dword v{vT}, v{vT2}, {sr(sH)}, 0 offen offset:{128*s} sc1", ('fl', s))
    e("s_mov_b64 exec, -1")

def h_loads(s, dstfile, dstbase):
    ops = []
    for fb in range(14):
        for mt in range(2):
            def f(fb=fb, mt=mt):
                if fb % 2 == 0 and mt == 0:
                    e(f"s_add_u32 s{s_t3}, s{s_hld}, {s*28672 + fb*2048}")
                r = dstbase + (fb*2 + mt)*4
                off = " offset:2048" if fb % 2 else ""
                g.vmem(f"buffer_load_dwordx4 {dstfile}[{r}:{r+3}], v{vH0+mt}, {sr(sH)}, s{s_t3} offen{off} sc1", ('h', s, fb, mt))
            ops.append(f)
    return ops

e(f"s_cmp_eq_u32 s{s_col}, 0")
e("s_cbranch_scc1 L_spare")

for f in dma_item('X', 0, ('P', 0)): f()
for f in dma_item('W', 0, ('W', 0)): f()
late_addr_setup()
e(f"s_lshr_b32 s{s_a}, s{s_wx}, 1")
e(f"s_lshl_b32 s{s_b}, s{s_mb}, 1")
e(f"s_add_u32 s{s_a}, s{s_a}, s{s_b}")
e(f"s_mul_i32 s{s_hst}, s{s_a}, 229376")
e(f"s_lshl_b32 s{s_b}, s{s_fb}, 1")
e(f"s_and_b32 s{s_t1}, s{s_wx}, 1")
e(f"s_add_u32 s{s_b}, s{s_b}, s{s_t1}")
e(f"s_lshl_b32 s{s_t1}, s{s_b}, 10")
e(f"s_add_u32 s{s_hst}, s{s_hst}, s{s_t1}")
e(f"s_lshl_b32 s{s_b}, s{s_b}, 2")
e(f"s_lshl_b32 s{s_t1}, s{s_a}, 8")
e(f"s_add_u32 s{s_b}, s{s_b}, s{s_t1}")
e(f"s_add_u32 s{s_flag}, s{s_b}, {FBASE}")
e(f"s_lshl_b32 s{s_a}, s{s_a}, 2")
e(f"s_lshl_b32 s{s_b}, s{s_m64}, 2")
e(f"v_mov_b32 v{vMk}, s{s_a}")
e(f"v_mov_b32 v240, s{s_b}")
e("v_cmp_lt_u32 vcc, 31, v0")
e("s_nop 1")
e(f"v_cndmask_b32 v{vMk}, v{vMk}, v240, vcc")
g.stamp(2)
vm0 = list(g.vm)

def phase1(role, lead):
    g.vm = list(vm0); g.lg = []
    after = {j: [] for j in range(-8, 400)}
    def at(j, f): after[j].append(f)
    def wread(j):
        n, t, q = j >> 4, (j >> 2) & 3, j & 3
        b = WBUF + (j % NBUF) * 4
        off = (n % NW) * 8192 + t * 2048
        g.ds(f"ds_read_b64_tr_b16 v[{b}:{b+1}], v{vRW+q} offset:{off}", ('w', j))
        g.ds(f"ds_read_b64_tr_b16 v[{b+2}:{b+3}], v{vRW+q} offset:{off+512}", ('w', j))
    def xread(n, t):
        r = aX + (n*4 + t)*4
        g.ds(f"ds_read_b128 {ar(r)}, v{vRX+t} offset:{(n % NP)*4096}", ('x', n*4+t))
    issued = {('X', 0), ('W', 0)}
    def barrier(n):
        tags = [('W', n), ('X', n) if n < 8 else ('D', n-8)]
        assert all(t in issued for t in tags), (role, n)
        g.need_vm(tags)
        e("s_barrier")
    for n in range(16):
        b = 16*n - LA
        if n > 0: at(b - 1, lambda n=n: barrier(n))
        if n < 8:
            for t in range(4): at(b + t, lambda n=n, t=t: xread(n, t))
        else:
            for i, f in enumerate(d_reads(n-8, dplace[n-8], aD + (n-8)*16, 'a')): at(b + i, f)
    items = []
    for m in range(1, 20):
        if m < 18:
            kind, n = ('W', m) if m < 16 else ('D', 8 + 2*(m-16))
            ring = -LA if m < NW else 16*(m - NW + 2) - LA
            want = 16*(m - lead) - LA
            items.append((want, ring, kind, n, ('W', m % NW), None))
        kind, n = ('X', m) if m < 8 else (('D', m - 8) if m < 16 else ('D', {16: 9, 17: 11, 18: 12, 19: 13}[m]))
        pm = m - NP
        ring = -LA if pm < 0 else 16*pm - LA + 9
        ptag = None if pm < 0 else ([('x', pm*4+3)] if pm < 8 else [('Dr', pm-8)])
        want = 16*(m - lead) - LA + 8
        items.append((want, ring, kind, n, ('P', m % NP), ptag))
    cur = -LA
    for want, ring, kind, n, where, ptag in items:
        start = max(want, ring, cur)
        sp = 1 if start > want + 2 else 2
        if ptag: at(start, lambda ptag=ptag: g.need_lg(ptag))
        for i, f in enumerate(dma_item(kind, n, where)):
            at(start + sp*i, f)
        at(start + sp*3, lambda k=(kind, n): issued.add(k))
        cur = start + sp*4
    ops = epi_ops(ACC0, 0, False)
    j = 131
    while ops:
        for _ in range(args.epi):
            if ops: at(j, ops.pop(0))
        j += 1
    assert j < args.flagA_at
    at(16*7, lambda: g.vmem(f"buffer_load_dword v{vT2}, v{vMk}, {sr(sB)}, 0 offen sc1", 'mk'))
    def flagA():
        g.need_vm([('hs', 0), 'mk'])
        e(f"v_cmp_ne_u32 vcc, 0, v{vT2}")
        e("s_cmp_eq_u64 vcc, -1")
        e(f"s_cbranch_scc1 L_mk{role}_ok")
        save = list(g.vm)
        spin(f"L_mk{role}", vMk, sB, 0)
        g.vm = save
        flag_store(0)
    at(args.flagA_at, flagA)
    at(250, lambda: g.vmem(f"buffer_load_dword v{vMk}, v{vFl}, {sr(sH)}, 0 offen sc1", 'pa'))

    barrier(0)
    g.stamp(3)
    for j in range(-LA, 256):
        if j >= 0:
            n, t, q = j >> 4, (j >> 2) & 3, j & 3
            ks = (n & 7) * 4 + t
            g.need_lg([('w', j), ('x', ks)])
            acc = (ACC0 if n < 8 else ACC1) + 16*q
            c = "0" if ks == 0 else vr(acc, 16)
            if not args.nomfma: e(f"v_mfma_f32_32x32x16_bf16 {vr(acc,16)}, {vr(WBUF + (j % NBUF)*4)}, {ar(aX + ks*4)}, {c}")
            if j in (127,): g.stamp(4)
            if args.stepstamps and j % 32 == 31: g.stamp(4 + j // 32, True)
        if j + LA < 256: wread(j + LA)
        for f in after[j]: f()
    g.stamp(5)
    g.need_lg(g.lg[:])
    e("s_barrier")
    ops = epi_ops(ACC1, 1, True)
    e("s_nop 7")
    for f in ops: f()
    g.stamp(6)
    for j in range(256, 400):
        for f in after[j]: f()
    g.need_vm(['pa'])
    e(f"v_cmp_ne_u32 vcc, 0, v{vMk}")
    e("s_cmp_eq_u64 vcc, -1")
    e(f"s_cbranch_scc1 L_pa{role}_ok")
    save = list(g.vm)
    spin(f"L_pa{role}", vFl, sH, 0)
    g.vm = save
    for f in h_loads(0, 'a', aX)[:args.ha_first]: f()
    g.need_vm([('hs', 1)])
    flag_store(1)
    g.stamp(7)
    e("s_branch L_ph2")
    return list(g.vm)

if args.llead != args.flead:
    e(f"s_cmp_lg_u32 s{s_w}, 0")
    e("s_cbranch_scc1 L_follow")
    vmA = phase1("L", args.llead)
    g.lab("L_follow")
vmB = phase1("F", args.flead)

g.lab("L_spare")
g.vm = []; g.lg = []
e(f"s_cmp_lg_u32 s{s_w}, 0")
e("s_cbranch_scc1 L_sp1")
e(f"s_lshl_b32 s{s_a}, s{s_m64}, 8")
e(f"s_add_u32 s{s_a}, s{s_a}, {FBASE}")
e("v_lshlrev_b32 v240, 2, v0")
e("v_mov_b32 v241, 0")
e(f"buffer_store_dword v241, v240, {sr(sH)}, s{s_a} offen sc1")
e("s_waitcnt vmcnt(0)")
e(f"s_lshl_b32 s{s_a}, s{s_m64}, 2")
e(f"v_mov_b32 v240, s{s_a}")
e("v_mov_b32 v241, 1")
e("s_mov_b64 exec, 1")
e(f"buffer_store_dword v241, v240, {sr(sB)}, 0 offen sc1")
e("s_mov_b64 exec, -1")
g.lab("L_sp1")
if not args.nomall:
    e(f"s_mul_i32 s{s_a}, s{s_m64}, 57344")
    e(f"s_mul_i32 s{s_b}, s{s_w}, 14336")
    e(f"s_add_u32 s{s_a}, s{s_a}, s{s_b}")
    e("v_min_u32 v240, 55, v0")
    e("v_lshlrev_b32 v241, 8, v240")
    e("v_lshlrev_b32 v242, 7, v240")
    e(f"buffer_load_dword v243, v241, {sr(sG)}, s{s_a} offen offset:128")
    e(f"buffer_load_dword v244, v241, {sr(sU)}, s{s_a} offen offset:{128+1024}")
    e(f"buffer_load_dword v245, v242, {sr(sD)}, s{s_a} offen")
    e(f"s_add_u32 s{s_a}, s{s_a}, 7168")
    e(f"buffer_load_dword v246, v242, {sr(sD)}, s{s_a} offen")
    e("s_waitcnt vmcnt(0)")
for j in range(4):
    for f in dma_item('D', j, dplace[j]): f()
late_addr_setup()
for j in (8, 10):
    for f in dma_item('D', j, dplace[j]): f()
nxt = {0: 4, 1: 5, 2: 6, 3: 7, 4: 9, 5: 11, 6: 12, 7: 13}
for j in range(8):
    g.need_vm([('D', j)])
    for f in d_reads(j, dplace[j], aD + j*16, 'a'): f()
    g.need_lg([('Dr', j)])
    assert dplace[nxt[j]] == dplace[j]
    for f in dma_item('D', nxt[j], dplace[nxt[j]]): f()
e(f"s_lshl_b32 s{s_a}, s{s_m64}, 2")
e(f"v_mov_b32 v{vMk}, s{s_a}")
spin("L_smk", vMk, sB, 0, sleep=8)
spin("L_spa", vFl, sH, 0, sleep=8)
for f in h_loads(0, 'a', aX)[:args.ha_first]: f()
vm_spare = list(g.vm)

g.lab("L_ph2")
g.vm = vm_spare
assert [t for t in vmB if t[0] == 'h'] == vm_spare
g.lg = []
for f in h_loads(0, 'a', aX)[args.ha_first:]: f()
ACC2 = ACC0
def mf2(fb, s, dreg, hfile, hbase, first):
    for mt in range(2):
        g.need_vm([('h', s, fb, mt)])
        for nt in range(2):
            acc = ACC2 + (2*nt + mt)*16
            c = "0" if first else vr(acc, 16)
            h = hbase + (fb*2 + mt)*4
            e(f"v_mfma_f32_32x32x16_bf16 {vr(acc,16)}, {ar(dreg + nt*4)}, {hfile}[{h}:{h+3}], {c}")
for fb in range(14):
    mf2(fb, 0, aD + fb*8, 'a', aX, fb == 0)
    if fb >= 3 and fb % 2 == 1:
        item = 8 + (fb - 3)//2
        g.need_lg(g.lg[:])
        for f in d_reads(item, dplace[item], aD + (item-8)*16, 'a'): f()
for lam in range(1, 4):
    e(f"s_xor_b32 s{s_a}, s{s_w}, {lam}")
    e(f"s_and_b32 s{s_b}, s{s_a}, 1")
    e(f"s_mul_i32 s{s_b}, s{s_b}, {HFS}")
    e(f"s_lshr_b32 s{s_a}, s{s_a}, 1")
    e(f"s_mul_i32 s{s_a}, s{s_a}, 12288")
    e(f"s_add_u32 s{s_a}, s{s_a}, s{s_b}")
    e(f"v_add_u32 v{lam}, s{s_a}, v{vL16}")
e(f"s_and_b32 s{s_b}, s{s_w}, 1")
e(f"s_mul_i32 s{s_b}, s{s_b}, {HFS}")
e(f"s_lshr_b32 s{s_a}, s{s_w}, 1")
e(f"s_mul_i32 s{s_a}, s{s_a}, 12288")
e(f"s_add_u32 s{s_a}, s{s_a}, s{s_b}")
e(f"v_add_u32 v4, s{s_a}, v{vL16}")
e("v_and_b32 v5, 31, v0")
e("v_lshrrev_b32 v6, 5, v0")
e("v_lshlrev_b32 v6, 4, v6")
e("v_lshl_add_u32 v5, v5, 10, v6")
e(f"s_lshl_b32 s{s_a}, s{s_m64}, 16")
e(f"s_and_b32 s{s_b}, s{s_w}, 1")
e(f"s_lshl_b32 s{s_b}, s{s_b}, 15")
e(f"s_add_u32 s{s_a}, s{s_a}, s{s_b}")
e(f"s_lshr_b32 s{s_b}, s{s_w}, 1")
e(f"s_lshl_b32 s{s_b}, s{s_b}, 6")
e(f"s_add_u32 s{s_a}, s{s_a}, s{s_b}")
e(f"s_add_u32 s{s_a}, s{s_a}, s{s_doff}")
g.stamp(8)
spin("L_pb", vFl, sH, 128)
g.stamp(9)
for f in h_loads(1, 'v', HB): f()
g.need_lg(g.lg[:])
for fb in range(14):
    dreg = aD + 7*16 + fb*8 if fb < 2 else aD + (fb-2)*8
    mf2(fb, 1, dreg, 'v', HB, False)
g.stamp(10)
e("s_nop 7")
e("s_nop 3")
for lam in (2, 1, 3):
    for a in range(4):
        r = ACC2 + lam*16 + a*4
        e(f"ds_write_b128 v{lam}, {vr(r)} offset:{(lam-1)*4096 + a*1024}")
e("s_waitcnt lgkmcnt(0)")
e("s_barrier")
for i in range(12):
    g.ds(f"ds_read_b128 {vr(HB + 4*i)}, v4 offset:{i*1024}", ('rd', i))
for sl in range(3):
    for a in range(4):
        g.need_lg([('rd', sl*4 + a)])
        r = ACC2 + a*4; t = HB + (sl*4 + a)*4
        e(f"v_pk_add_f32 v[{r}:{r+1}], v[{r}:{r+1}], v[{t}:{t+1}]")
        e(f"v_pk_add_f32 v[{r+2}:{r+3}], v[{r+2}:{r+3}], v[{t+2}:{t+3}]")
for i in range(8):
    e(f"v_cvt_pk_bf16_f32 v{EPI+i}, v{ACC2+2*i}, v{ACC2+2*i+1}")
e("s_nop 1")
e(f"v_permlane32_swap_b32 v{EPI}, v{EPI+2}")
e(f"v_permlane32_swap_b32 v{EPI+1}, v{EPI+3}")
e(f"v_permlane32_swap_b32 v{EPI+4}, v{EPI+6}")
e(f"v_permlane32_swap_b32 v{EPI+5}, v{EPI+7}")
e(f"buffer_store_dwordx4 {vr(EPI)}, v5, {sr(sO)}, s{s_a} offen {args.outflags}")
e(f"buffer_store_dwordx4 {vr(EPI+4)}, v5, {sr(sO)}, s{s_a} offen offset:32 {args.outflags}")
if args.stamps:
    g.stamp(11)
    e("s_waitcnt vmcnt(0)")
    g.stamp(12)
    e("s_waitcnt lgkmcnt(0)")
if args.diag:
    a_, b_, K_, wg_ = map(int, args.diag.split(","))
    if wg_ >= 0:
        e(f"s_cmp_lg_u32 s2, {wg_}")
    else:
        e(f"s_cmp_eq_u32 s{s_col}, 0")
    e("s_cbranch_scc1 L_end")
    e(f"s_sub_u32 s46, s{s_st+2*b_}, s{s_st+2*a_}")
    e(f"s_mul_i32 s46, s46, {K_}")
    e(f"s_add_u32 s46, s46, 5000")
    e(f"s_min_u32 s46, s46, 100000")
    g.lab("L_diag")
    e("s_memrealtime s[48:49]")
    e("s_waitcnt lgkmcnt(0)")
    e(f"s_sub_u32 s47, s48, s{s_st}")
    e("s_cmp_lt_u32 s47, s46")
    e("s_cbranch_scc1 L_diag")
elif args.stamps:
    NS = 14
    for i in range(2*NS): e(f"v_mov_b32 v{64+i}, s{s_st+i}")
    e(f"s_lshl_b32 s46, s2, 2")
    e(f"s_add_u32 s46, s46, s{s_w}")
    e(f"s_mul_i32 s46, s46, {NS*8}")
    e(f"s_add_u32 s46, s46, {STAMP_OFF}")
    e("v_mov_b32 v5, 0")
    e("s_mov_b64 exec, 1")
    for i in range(NS//2): e(f"buffer_store_dwordx4 {vr(64+4*i)}, v5, {sr(sH)}, s46 offen offset:{16*i}")
g.lab("L_end")
e("s_endpgm")
g.lab("L_codeend")

tail = f""".section .rodata,"a"
.p2align 6
.amdhsa_kernel {KN}
  .amdhsa_next_free_vgpr 512
  .amdhsa_next_free_sgpr 102
  .amdhsa_accum_offset 256
  .amdhsa_group_segment_fixed_size 0
  .amdhsa_kernarg_size 56
  .amdhsa_user_sgpr_count 2
  .amdhsa_user_sgpr_kernarg_segment_ptr 1
  .amdhsa_system_sgpr_workgroup_id_x 1
.end_amdhsa_kernel"""
print(hdr); print("\n".join(g.L)); print(tail)
```

```python
import sys, argparse

ap = argparse.ArgumentParser()
ap.add_argument("--stamps", action="store_true")
ap.add_argument("--stepstamps", action="store_true")
ap.add_argument("--cycstamps", action="store_true")
ap.add_argument("--la", type=int, default=3)
ap.add_argument("--epi", type=int, default=5)
ap.add_argument("--outflags", default="")
ap.add_argument("--noprefetch", action="store_true")
ap.add_argument("--nomall", action="store_true")
ap.add_argument("--order", default="0101001001001111")
ap.add_argument("--dsteps", default="9,12,13,14")
ap.add_argument("--rates", default="7,7,7,8,8,8,8,8,8,8,8,8,6,5,5,5")
ap.add_argument("--merge", type=int, default=3)
ap.add_argument("--hdepth", type=int, default=8)
ap.add_argument("--pre", type=int, default=4)
ap.add_argument("--flagA_post", type=int, default=4)
ap.add_argument("--flagB_post", type=int, default=10)
ap.add_argument("--dprio", type=int, default=24)
ap.add_argument("--mkat", type=int, default=128)
ap.add_argument("--spsleep", type=int, default=8)
ap.add_argument("--touchk", type=int, default=2)
ap.add_argument("--nostore", action="store_true")
ap.add_argument("--hsflags", default="sc1")
ap.add_argument("--cap", type=int, default=4)
ap.add_argument("--dlat", type=int, default=16)
ap.add_argument("--flagA_at", type=int, default=228)
ap.add_argument("--pollA_at", type=int, default=250)
ap.add_argument("--dstart", type=int, default=48)
ap.add_argument("--minlead", type=int, default=30)
ap.add_argument("--touchmask", type=int, default=15)
ap.add_argument("--tailM", type=int, default=4)
ap.add_argument("--nol2d", action="store_true")
ap.add_argument("--st2", action="store_true")
ap.add_argument("--touch2at", type=int, default=20)
ap.add_argument("--l2d", action="store_true")
ap.add_argument("--mtm", type=int, default=8)
ap.add_argument("--tsites", default="-99,-99,4,24,44,64")
ap.add_argument("--pollA_post", type=int, default=14)
ap.add_argument("--norot", action="store_true")
ap.add_argument("--notouch", action="store_true")
ap.add_argument("--defer", type=int, default=0)
ap.add_argument("--pollB", type=int, default=6)
ap.add_argument("--diag", default="")
args = ap.parse_args()
if args.diag: args.stamps = True

KN = "standalone__glu_gated_bilinear__prompt_kernel"
NP, NW = 5, 5
NXB = 3
HFS = NW * 8192
PB = 2 * HFS
PWS = NP * 4096
LDS = PB + 4 * PWS
assert LDS == 163840
FBASE = 0x800000
STAMP_OFF = 0x8000000
LA = args.la
NBUF = 8

sX, sG, sU, sD, sH, sO, sB = 8, 12, 16, 20, 24, 28, 32
s_w, s_mb, s_fb, s_m64, s_n64 = 36, 37, 38, 39, 40
s_xoff, s_woff, s_doff = 41, 42, 43
s_mP, s_mW = 44, 45
s_t0, s_t1, s_t2, s_t3 = 46, 47, 48, 49
s_hst, s_spin, s_hld, s_flag = 50, 51, 52, 53
s_oadr, s_xcd, s_col, s_c = 54, 55, 56, 57
s_a, s_b = 58, 59
s_st = 60
s_rh, s_rd = 88, 95
s_tw, s_tx = 4, 5
FS = 2048
vX, vW, vD = 1, 5, 9
vRW, vRX = 13, 17
vP1, vP2 = 15, 16
vRD, vRD2 = 21, 23
vL16 = 25
vH0, vH1 = 26, 27
vFl, vMk, vT, vT2 = 28, 29, 30, 31
WBUF = 32
ACC0, ACC1 = 64, 128
HB = 128
EPI = 240
aX, aD = 0, 128

class G:
    def __init__(s):
        s.L = []; s.lg = []; s.vm = []
    def e(s, t): s.L.append("    " + t)
    def lab(s, t): s.L.append(t + ":")
    def ds(s, t, tag):
        if len(s.lg) >= 14:
            s.e("s_waitcnt lgkmcnt(12)"); s.lg = s.lg[-12:]
        s.e(t); s.lg.append(tag)
    def vmem(s, t, tag): s.e(t); s.vm.append(tag); assert len(s.vm) <= 63, "vm overflow"
    def need_lg(s, tags):
        idx = max((i for i, t in enumerate(s.lg) if t in tags), default=-1)
        if idx >= 0:
            s.e(f"s_waitcnt lgkmcnt({len(s.lg)-1-idx})"); s.lg = s.lg[idx+1:]
    def need_vm(s, tags):
        idx = max((i for i, t in enumerate(s.vm) if t in tags), default=-1)
        if idx >= 0:
            s.e(f"s_waitcnt vmcnt({len(s.vm)-1-idx})"); s.vm = s.vm[idx+1:]
    def stamp(s, k, force=False):
        if args.stepstamps and 4 <= k <= 11 and not force: return
        if args.stamps: s.e(("s_memtime" if args.cycstamps else "s_memrealtime") + f" s[{s_st+2*k}:{s_st+2*k+1}]")

g = G()
e = g.e
def vr(b, n=4): return f"v[{b}:{b+n-1}]"
def ar(b, n=4): return f"a[{b}:{b+n-1}]"
def sr(b, n=4): return f"s[{b}:{b+n-1}]"

hdr = f"""; Fused bilinear GLU: out = ((x Wg) * (x Wu)) Wd   (generated)
; @launch grid=(256,1,1) block=(256,1,1) lds={LDS}
.amdgcn_target "amdgcn-amd-amdhsa--gfx950"
.text
.globl {KN}
.p2align 8
.type {KN},@function
{KN}:"""

order = [int(c) for c in args.order]
assert len(order) == 16 and sum(order) == 8
steps = []; cnt = [0, 0]
for s_ in order:
    steps.append((s_, cnt[s_])); cnt[s_] += 1
first_k = {}
for n, (s_, k) in enumerate(steps): first_k.setdefault(k, n)
last_k = {k: max(n for n, (s_, kk) in enumerate(steps) if kk == k) for k in range(8)}
for k in range(4): assert last_k[k] < first_k[k+4] - 0, "x register reuse"
rates = [int(x) for x in args.rates.split(",")]
NREG = 11
def dhome(j): return ("v", 192 + 16*j) if j < 3 else (("a", aD + 16*(j-3)) if j < NREG else ("a", aD + 16*(j-NREG)))
frags = []
nm = 16 - args.merge
for n in range(nm):
    for t in range(4):
        for ql in range(2): frags.append((n, t, ql))
for ql in range(2):
    for n in range(nm, 16):
        assert steps[n][0] == 1
        for t in range(4): frags.append((n, t, ql))
mseq = [(i, mt) for i in range(128 - args.mtm) for mt in range(2)] + [(i, mt) for mt in range(2) for i in range(128 - args.mtm, 128)]
assert args.mtm <= NBUF and all(frags[i][2] == 1 for i in range(128 - args.mtm, 128))
first_use = {}
for j_, (i_, mt_) in enumerate(mseq): first_use.setdefault(i_, j_)
last_use = {i_: j_ for j_, (i_, mt_) in enumerate(mseq)}
rsched = {}
for i_ in range(128):
    p_ = first_use[i_] - 2*LA
    two = first_use.get(i_+1, 999) - first_use[i_] >= 2
    rsched.setdefault(p_, []).append((i_, 0)); rsched.setdefault(p_ + (1 if two else 0), []).append((i_, 1))
    if i_ >= NBUF: assert last_use[i_ - NBUF] < p_, ("wbuf reuse", i_)
first_frag = {n: min(i for i, f in enumerate(frags) if f[0] == n) for n in range(16)}
last_frag = {n: max(i for i, f in enumerate(frags) if f[0] == n) for n in range(16)}
bpos = {n: first_use[first_frag[n]] - 2*LA - 1 for n in range(16)}
def first_barrier_after(p):
    c = [b for b in bpos.values() if b >= p]
    return min(c) if c else 256

e("s_cmp_ge_u32 s2, 256")
e("s_cbranch_scc1 L_end")
if args.stamps:
    for i in range(1, 14): e(f"s_mov_b64 s[{s_st+2*i}:{s_st+2*i+1}], 0")
g.stamp(0)
e("s_load_dwordx8 s[88:95], s[0:1], 0")
e("s_load_dwordx4 s[96:99], s[0:1], 32")
e("s_load_dwordx2 s[100:101], s[0:1], 48")
if not args.noprefetch:
    e("s_getpc_b64 s[4:5]")
    e("s_and_b32 s4, s4, 0xffffff00")
    e(f"s_mov_b32 s6, L_codeend-{KN}")
    e("s_mov_b32 s7, 0x20000")
    e("v_lshlrev_b32 v30, 7, v0")
    g.vmem("buffer_load_dword v31, v30, s[4:7], 0 offen", "pf")
e("v_lshrrev_b32 v30, 6, v0")
e("v_and_b32 v0, 63, v0")
e(f"v_readfirstlane_b32 s{s_w}, v30")
e(f"s_and_b32 s{s_xcd}, s2, 7")
e(f"s_bfe_u32 s{s_c}, s2, 0x20003")
e(f"s_lshr_b32 s{s_col}, s2, 5")
e(f"s_lshl_b32 s{s_m64}, s{s_xcd}, 2")
e(f"s_add_u32 s{s_m64}, s{s_m64}, s{s_c}")
e(f"s_lshr_b32 s{s_mb}, s{s_xcd}, 1")
e(f"s_lshl_b32 s{s_mb}, s{s_mb}, 2")
e(f"s_add_u32 s{s_mb}, s{s_mb}, s{s_c}")
e(f"s_and_b32 s{s_fb}, s{s_xcd}, 1")
e(f"s_mul_i32 s{s_fb}, s{s_fb}, 7")
e(f"s_add_u32 s{s_fb}, s{s_fb}, s{s_col}")
e(f"s_sub_u32 s{s_fb}, s{s_fb}, 1")
e(f"s_xor_b32 s{s_n64}, s{s_col}, 3")
e("v_lshrrev_b32 v240, 3, v0")
e("v_and_b32 v241, 7, v0")
e("v_lshrrev_b32 v242, 4, v0")
e(f"v_lshlrev_b32 v{vL16}, 4, v0")
e(f"s_lshl_b32 s{s_a}, s{s_w}, 15")
e("v_xor_b32 v243, v241, v242")
e("v_lshlrev_b32 v243, 4, v243")
e(f"v_lshl_add_u32 v{vX}, v240, 10, v243")
e(f"v_add_u32 v{vX}, s{s_a}, v{vX}")
e(f"v_xor_b32 v{vX+1}, 64, v{vX}")
e(f"v_add_u32 v{vX+1}, {7*1024}, v{vX+1}")
e(f"v_add_u32 v{vX+2}, {14*1024}, v{vX}")
e(f"v_add_u32 v{vX+3}, {14*1024}, v{vX+1}")
e(f"s_lshr_b32 s{s_a}, s{s_w}, 1")
e(f"s_lshl_b32 s{s_a}, s{s_a}, 5")
e(f"s_and_b32 s{s_b}, s{s_w}, 1")
e(f"s_lshl_b32 s{s_b}, s{s_b}, 3")
e(f"s_add_u32 s{s_a}, s{s_a}, s{s_b}")
e(f"s_mul_i32 s{s_a}, s{s_a}, 3584")
e(f"v_mul_u32_u24 v{vW}, 3584, v240")
e("v_and_b32 v244, 1, v242")
e("v_lshlrev_b32 v245, 4, v241")
e("v_lshlrev_b32 v246, 5, v244")
e("v_xor_b32 v246, v245, v246")
e(f"v_add3_u32 v{vW}, v{vW}, v246, s{s_a}")
e(f"v_xor_b32 v{vW+1}, 64, v{vW}")
e(f"v_add_u32 v{vW+2}, {16*3584-2048}, v{vW}")
e(f"v_add_u32 v{vW+3}, {16*3584-2048}, v{vW+1}")
e(f"s_lshl_b32 s{s_a}, s{s_w}, 14")
e("v_lshlrev_b32 v246, 6, v244")
e("v_xor_b32 v246, v245, v246")
e(f"v_lshl_add_u32 v{vD}, v240, 10, v246")
e(f"v_add_u32 v{vD}, s{s_a}, v{vD}")
e(f"v_add_u32 v{vD+1}, {8*1024-1024}, v{vD}")
e(f"v_add_u32 v{vD+2}, {128*1024-2048}, v{vD}")
e(f"v_add_u32 v{vD+3}, {136*1024-3072}, v{vD}")
e(f"s_mul_i32 s{s_mP}, s{s_w}, {PWS}")
e(f"s_add_u32 s{s_mP}, s{s_mP}, {PB}")
e(f"s_and_b32 s{s_b}, s{s_w}, 1")
e(f"s_mul_i32 s{s_mW}, s{s_b}, {HFS}")
e(f"s_lshr_b32 s{s_a}, s{s_w}, 1")
e(f"s_lshl_b32 s{s_a}, s{s_a}, 12")
e(f"s_add_u32 s{s_mW}, s{s_mW}, s{s_a}")
e(f"s_lshl_b32 s{s_xoff}, s{s_mb}, 17")
e(f"s_lshl_b32 s{s_woff}, s{s_fb}, 8")
e(f"s_lshl_b32 s{s_doff}, s{s_n64}, 7")
for b, n in ((sX, 2048*1024), (sG, 512*3584), (sU, 512*3584+1024), (sD, 1792*1024), (sH, 0x10000000), (sO, 2048*1024), (sB, 256)):
    e(f"s_mov_b32 s{b+2}, {n}")
    e(f"s_mov_b32 s{b+3}, 0x20000")
e("s_waitcnt lgkmcnt(0)")
e(f"s_mov_b64 s[{sX}:{sX+1}], s[88:89]")
e(f"s_mov_b64 s[{sG}:{sG+1}], s[90:91]")
e(f"s_sub_u32 s{sU}, s92, 1024")
e(f"s_subb_u32 s{sU+1}, s93, 0")
e(f"s_mov_b64 s[{sD}:{sD+1}], s[94:95]")
e(f"s_mov_b64 s[{sO}:{sO+1}], s[96:97]")
e(f"s_mov_b64 s[{sB}:{sB+1}], s[98:99]")
e(f"s_mov_b64 s[{sH}:{sH+1}], s[100:101]")
g.stamp(1)

def dma_item(kind, n, where):
    if where[0] == 'P': m0 = (s_mP, where[1] * 4096)
    else: m0 = (s_mW, where[1] * 8192)
    if kind == 'X': so = (s_xoff, n * 128); srd = [sX]*4; vb = vX
    elif kind == 'W': so = (s_woff, steps[n][1] * 64 * 3584 + steps[n][0] * 128); srd = [sG, sU, sG, sU]; vb = vW
    else: so = (s_rd + n % 7, 64 * (n // 7) * 1024); srd = [sD]*4; vb = vD
    def mk(i):
        def f():
            if i == 0:
                e(f"s_add_u32 m0, s{m0[0]}, {m0[1]}")
                e(f"s_add_u32 s{s_t0}, s{so[0]}, {so[1]}")
            off = f" offset:{1024*i}" if i else ""
            g.vmem(f"buffer_load_dwordx4 v{vb+i}, {sr(srd[i])}, s{s_t0} offen{off} lds", (kind, n))
        return f
    return [mk(i) for i in range(4)]

def late_addr_setup():
    e("v_lshrrev_b32 v240, 5, v0")
    e("v_bfe_u32 v241, v0, 4, 1")
    e("v_bfe_u32 v242, v0, 2, 2")
    e("v_and_b32 v243, 3, v0")
    e("v_bfe_u32 v244, v0, 3, 1")
    e("v_lshlrev_b32 v243, 3, v243")
    e("v_lshl_add_u32 v243, v242, 7, v243")
    e(f"v_mul_u32_u24 v{vRW}, {HFS}, v240")
    e(f"v_lshl_add_u32 v{vRW}, v241, 10, v{vRW}")
    e(f"v_add_u32 v{vRW}, v{vRW}, v243")
    e("v_lshl_or_b32 v245, v241, 1, v244")
    e(f"v_lshl_add_u32 v{vRW}, v245, 5, v{vRW}")
    e(f"s_and_b32 s{s_a}, s{s_w}, 1")
    e(f"s_lshl_b32 s{s_a}, s{s_a}, 6")
    e(f"v_xor_b32 v{vRW}, s{s_a}, v{vRW}")
    e(f"v_xor_b32 v{vRW+1}, 32, v{vRW}")
    e("v_lshl_add_u32 v245, v240, 9, v243")
    e("v_lshl_or_b32 v246, v244, 1, v241")
    e("v_lshl_add_u32 v245, v246, 5, v245")
    e(f"s_lshr_b32 s{s_a}, s{s_w}, 1")
    e(f"s_lshl_b32 s{s_a}, s{s_a}, 6")
    e(f"v_xor_b32 v245, s{s_a}, v245")
    e(f"v_add_u32 v{vRD}, s{s_mP}, v245")
    e(f"v_xor_b32 v{vRD+1}, 64, v{vRD}")
    e(f"v_add_u32 v{vRD2}, s{s_mW}, v245")
    e(f"v_xor_b32 v{vRD2+1}, 64, v{vRD2}")
    e("v_and_b32 v245, 31, v0")
    e("v_bfe_u32 v246, v0, 1, 3")
    e("v_xor_b32 v246, v246, v240")
    e("v_lshlrev_b32 v246, 4, v246")
    e("v_lshl_add_u32 v245, v245, 7, v246")
    e(f"s_lshr_b32 s{s_a}, s{s_w}, 1")
    e(f"s_mul_i32 s{s_a}, s{s_a}, {2*PWS}")
    e(f"s_add_u32 s{s_a}, s{s_a}, {PB}")
    e(f"v_add_u32 v{vRX}, s{s_a}, v245")
    for t in range(1, 4): e(f"v_xor_b32 v{vRX+t}, {32*t}, v{vRX}")
    e(f"s_and_b32 s{s_a}, s{s_w}, 1")
    e(f"s_lshl_b32 s{s_a}, s{s_a}, 10")
    e(f"v_add_u32 v{vH0}, s{s_a}, v{vL16}")
    e(f"v_xor_b32 v{vH1}, 0x400, v{vH0}")
    e(f"s_mul_i32 s{s_hld}, s{s_m64}, 229376")
    e(f"s_mul_i32 s{s_a}, s{s_w}, 57344")
    e(f"s_add_u32 s{s_hld}, s{s_hld}, s{s_a}")
    e(f"v_min_u32 v{vFl}, 13, v0")
    e(f"v_lshlrev_b32 v{vFl}, 7, v{vFl}")
    e(f"s_lshl_b32 s{s_a}, s{s_m64}, 13")
    e(f"s_lshr_b32 s{s_b}, s{s_w}, 1")
    e(f"s_lshl_b32 s{s_b}, s{s_b}, 12")
    e(f"s_add_u32 s{s_a}, s{s_a}, s{s_b}")
    e(f"s_add_u32 s{s_a}, s{s_a}, {FBASE}")
    e(f"v_add_u32 v{vFl}, s{s_a}, v{vFl}")
    if args.norot: e(f"s_mov_b32 s{s_a}, 0")
    else:
        e(f"s_cmp_eq_u32 s{s_col}, 7")
        e(f"s_cselect_b32 s{s_a}, 0, s{s_col}")
    for jj in range(7):
        e(f"s_lshl_b32 s{s_b}, s{s_a}, 12")
        e(f"s_add_u32 s{s_rh+jj}, s{s_b}, s{s_hld}")
        e(f"s_lshl_b32 s{s_b}, s{s_a}, 18")
        e(f"s_add_u32 s{s_rd+jj}, s{s_b}, s{s_doff}")
        if jj < 6:
            e(f"s_add_u32 s{s_a}, s{s_a}, 1")
            e(f"s_cmp_eq_u32 s{s_a}, 7")
            e(f"s_cselect_b32 s{s_a}, 0, s{s_a}")
    e(f"s_lshl_b32 s{s_a}, s{s_m64}, 16")
    e(f"s_and_b32 s{s_b}, s{s_w}, 1")
    e(f"s_lshl_b32 s{s_b}, s{s_b}, 15")
    e(f"s_add_u32 s{s_a}, s{s_a}, s{s_b}")
    e(f"s_lshr_b32 s{s_b}, s{s_w}, 1")
    e(f"s_lshl_b32 s{s_b}, s{s_b}, 6")
    e(f"s_add_u32 s{s_a}, s{s_a}, s{s_b}")
    e(f"s_add_u32 s{s_oadr}, s{s_a}, s{s_doff}")

def d_reads(item, where):
    dfile, dstbase = dhome(item)
    ops = []
    for ee in range(2):
        for nt in range(2):
            for p in range(2):
                def f(ee=ee, nt=nt, p=p):
                    if where[0] == 'P': va = vRD + nt; off = where[1]*4096
                    else: va = vRD2 + nt; off = where[1]*8192
                    off += ee*2048 + p*1024
                    r = dstbase + (ee*2 + nt)*4 + 2*p
                    g.ds(f"ds_read_b64_tr_b16 {dfile}[{r}:{r+1}], v{va} offset:{off}", ('Dr', item))
                ops.append(f)
    return ops

def spin(label, vaddr, srd, off, sleep=0):
    e(f"s_mov_b32 s{s_spin}, 0x40000")
    g.lab(label)
    o = f" offset:{off}" if off else ""
    e(f"buffer_load_dword v{vT}, v{vaddr}, {sr(srd)}, 0 offen{o} sc1")
    e("s_waitcnt vmcnt(0)")
    e(f"v_cmp_ne_u32 vcc, 0, v{vT}")
    e("s_cmp_eq_u64 vcc, -1")
    e(f"s_cbranch_scc1 {label}_ok")
    if sleep: e(f"s_sleep {sleep}")
    e(f"s_sub_u32 s{s_spin}, s{s_spin}, 1")
    e(f"s_cmp_lg_u32 s{s_spin}, 0")
    e(f"s_cbranch_scc1 {label}")
    g.lab(label + "_ok")
    g.vm = []

def check_or_spin(label, vres, tag, vaddr, srd, off, pre=None):
    g.need_vm([tag])
    e(f"v_cmp_ne_u32 vcc, 0, v{vres}")
    e("s_cmp_eq_u64 vcc, -1")
    e(f"s_cbranch_scc1 {label}_ok")
    save = list(g.vm)
    if pre: pre()
    spin(label, vaddr, srd, off)
    g.vm = save

def epi_ops(acc, s, ql, packed, mts=(0, 1)):
    ops = []
    for mt in mts:
        a = acc + 16*(2*ql + mt); d = EPI + 4*(2*ql + mt)
        if packed:
            for i in range(4): ops.append(lambda a=a, i=i: e(f"v_pk_mul_f32 v[{a+2*i}:{a+2*i+1}], v[{a+2*i}:{a+2*i+1}], v[{a+8+2*i}:{a+9+2*i}]"))
        else:
            for i in range(8): ops.append(lambda a=a, i=i: e(f"v_mul_f32 v{a+i}, v{a+i}, v{a+8+i}"))
        for i in range(4): ops.append(lambda a=a, i=i, d=d: e(f"v_cvt_pk_bf16_f32 v{d+i}, v{a+2*i}, v{a+2*i+1}"))
        def st(d=d, mt=mt):
            if mt == 0: e(f"s_add_u32 s{s_t2}, s{s_hst}, {ql*57344 + s*28672}")
            off = " offset:1024" if mt else ""
            if not args.nostore: g.vmem(f"buffer_store_dwordx4 {vr(d)}, v{vL16}, {sr(sH)}, s{s_t2} offen{off} {args.hsflags}", ('hs', s))
        ops.append(st)
    return ops

def flag_store(s):
    e(f"v_mov_b32 v{vT2}, s{s_flag}")
    e(f"v_mov_b32 v{vT}, 1")
    e("s_mov_b64 exec, 1")
    g.vmem(f"buffer_store_dword v{vT}, v{vT2}, {sr(sH)}, 0 offen offset:{FS*s} sc1", ('fl', s))
    e("s_mov_b64 exec, -1")

def hidx(i):
    s, r_ = divmod(i, 28)
    if s == 0 or not args.tailM: fb, mt = divmod(r_, 2)
    else: fb, mt = r_ % 14, 1 - r_ // 14
    return s, fb, mt, r_
def h_load(i):
    s, fb, mt, r_ = hidx(i)
    if i == 0 or hidx(i-1)[0] != s or hidx(i-1)[1]//2 != fb//2:
        e(f"s_add_u32 s{s_t3}, s{s_rh + fb//2}, {s*28672}")
    dst = ar(aX + r_*4) if s == 0 else vr(HB + r_*4)
    off = " offset:2048" if fb % 2 else ""
    g.vmem(f"buffer_load_dwordx4 {dst}, v{vH0+mt}, {sr(sH)}, s{s_t3} offen{off} sc1", ('h', i))

e(f"s_cmp_eq_u32 s{s_col}, 0")
e("s_cbranch_scc1 L_spare")

mand = []
for n in range(16):
    for k in range(8):
        if first_k[k] == n: mand.append((n, 'X', k, ('P', k % NXB)))
    mand.append((n, 'W', n, ('W', n % NW)))
START = -2*LA
issued = set()
pre = mand[:args.pre]; rest = mand[args.pre:]
for (_, kind, n, where) in pre[:2]:
    for f in dma_item(kind, n, where): f()
    issued.add((kind, n))
tsites = [int(x) for x in args.tsites.split(",")] if not args.notouch else []
assert args.touchk + len(tsites) <= 8
def touch():
    g.vmem("global_load_dword v250, v[252:253], off", "pf")
    e("v_add_co_u32 v252, vcc, v252, v254")
    e("v_addc_co_u32 v253, vcc, 0, v253, vcc")
if tsites:
    e(f"s_lshl_b32 s{s_a}, s{s_mb}, 2")
    e(f"s_add_u32 s{s_a}, s{s_a}, s{s_w}")
    e(f"s_add_u32 s{s_a}, s{s_a}, {64*args.touchk}")
    e(f"s_mul_i32 s{s_a}, s{s_a}, 3584")
    e(f"s_add_u32 s{s_a}, s{s_a}, s{s_woff}")
    e("v_and_b32 v240, 1, v0")
    e("v_lshlrev_b32 v240, 7, v240")
    e(f"v_add_u32 v240, s{s_a}, v240")
    e(f"s_lshl_b32 s{s_a}, s{s_fb}, 2")
    e(f"s_add_u32 s{s_a}, s{s_a}, s{s_w}")
    e(f"s_mul_i32 s{s_a}, s{s_a}, 3")
    e(f"s_sub_u32 s{s_a}, s{s_a}, 4")
    e("v_min_u32 v241, 6, v0")
    e("v_max_u32 v241, 4, v241")
    e(f"v_add_u32 v241, s{s_a}, v241")
    e("v_min_u32 v241, 127, v241")
    e("v_lshlrev_b32 v241, 10, v241")
    e(f"s_add_u32 s{s_a}, s{s_xoff}, {128*args.touchk}")
    e(f"v_add_u32 v241, s{s_a}, v241")
    e(f"v_mov_b32 v252, s{sX}")
    e(f"v_mov_b32 v253, s{sX+1}")
    e("v_mov_b32 v254, 128")
    e("s_mov_b64 exec, 0xf")
    e("v_mov_b32 v241, v240")
    e(f"v_mov_b32 v254, {64*3584}")
    e("v_mov_b32 v252, s92")
    e("v_mov_b32 v253, s93")
    e("s_mov_b64 exec, 0x3")
    e(f"v_mov_b32 v252, s{sG}")
    e(f"v_mov_b32 v253, s{sG+1}")
    e("s_mov_b64 exec, -1")
    e("v_add_co_u32 v252, vcc, v252, v241")
    e("v_addc_co_u32 v253, vcc, 0, v253, vcc")
    for p_ in tsites:
        if p_ == -99: touch()
late_addr_setup()
e(f"s_lshr_b32 s{s_a}, s{s_w}, 1")
e(f"s_lshl_b32 s{s_b}, s{s_mb}, 1")
e(f"s_add_u32 s{s_a}, s{s_a}, s{s_b}")
e(f"s_mul_i32 s{s_hst}, s{s_a}, 229376")
e(f"s_lshl_b32 s{s_t1}, s{s_fb}, 11")
e(f"s_add_u32 s{s_hst}, s{s_hst}, s{s_t1}")
e(f"s_and_b32 s{s_b}, s{s_w}, 1")
e(f"s_mul_i32 s{s_t1}, s{s_b}, {2*57344}")
e(f"s_add_u32 s{s_hst}, s{s_hst}, s{s_t1}")
e(f"s_lshl_b32 s{s_b}, s{s_b}, 12")
e(f"s_lshl_b32 s{s_t1}, s{s_fb}, 7")
e(f"s_add_u32 s{s_b}, s{s_b}, s{s_t1}")
e(f"s_lshl_b32 s{s_t1}, s{s_a}, 13")
e(f"s_add_u32 s{s_b}, s{s_b}, s{s_t1}")
e(f"s_add_u32 s{s_flag}, s{s_b}, {FBASE}")
e(f"s_lshl_b32 s{s_a}, s{s_a}, 2")
e(f"s_lshl_b32 s{s_b}, s{s_m64}, 2")
e(f"v_mov_b32 v{vMk}, s{s_a}")
e(f"v_mov_b32 v240, s{s_b}")
e("v_cmp_lt_u32 vcc, 31, v0")
e("s_nop 1")
e(f"v_cndmask_b32 v{vMk}, v{vMk}, v240, vcc")
for (_, kind, n, where) in pre[2:]:
    for f in dma_item(kind, n, where): f()
    issued.add((kind, n))
g.stamp(2)


slotset = set()
for n in range(16):
    r = rates[n]
    slotset |= {16*n + START + (16*i)//r for i in range(r)} if r else set()
credit = 0
dma_q = []
lds_q = []
epi_q = []
wfree = {n: n < NW for n in range(16)}
xfree = {k: k < NXB for k in range(8)}
dblocks = [('P', b_) for b_ in range(NXB, NP)]
pending_release = []
dnext = 0; dplace = {}; dland = []
dread_done = []
log = []
lastA = max(n for n in range(16) if steps[n][0] == 0)
jA = 2*last_frag[lastA] + 1 + 5
for f in epi_ops(ACC0, 0, 0, False) + epi_ops(ACC0, 0, 1, False): epi_q.append((jA, f))
jB0 = 2*max(i for i, f in enumerate(frags) if f[2] == 0) + 1 + 6
for f in epi_ops(ACC1, 1, 0, False): epi_q.append((jB0, f))
if args.mtm:
    jB1 = 256 - args.mtm + 1
    epi_q.append((jB1, lambda: e("s_nop 7")))
    for f in epi_ops(ACC1, 1, 1, False, (0,)): epi_q.append((jB1 + 1, f))
bar_at = {p: n for n, p in bpos.items()}

def barrier(n):
    tags = [('W', n)] + [('X', k) for k in range(8) if first_k[k] == n]
    assert all(t in issued for t in tags), n
    g.need_vm(tags)
    e("s_barrier")
    for kind, i in pending_release:
        if kind == 'W':
            if i + NW < 16: wfree[i + NW] = True
            else: dblocks.append(('W', i % NW))
        else:
            if i + NXB < 8: xfree[i + NXB] = True
            else: dblocks.append(('P', i % NXB))
    pending_release.clear()
    for k in range(8):
        if first_k[k] == n:
            for t in range(4):
                for mt in range(2):
                    def f(k=k, t=t, mt=mt):
                        r = aX + ((k % 4)*8 + t*2 + mt)*4
                        g.ds(f"ds_read_b128 {ar(r)}, v{vRX+t} offset:{mt*PWS + (k % NXB)*4096}", ('x', k, t, mt))
                        xdone.add((k, t, mt))
                    lds_q.append(('x', f))
            lds_q.sort(key=lambda o: o[0] != 'x')
xdone = set()
def wread(i, half):
    n, t, ql = frags[i]
    b = WBUF + (i % NBUF) * 4 + 2*half
    off = (n % NW) * 8192 + t * 2048 + 512*half
    g.ds(f"ds_read_b64_tr_b16 v[{b}:{b+1}], v{vRW+ql} offset:{off}", ('w', i))

def pick(j):
    global dnext
    for it in rest:
        dl, kind, n, where = it
        ok = wfree[n] if kind == 'W' else xfree[n]
        lead = bpos[dl] - j
        want_d = dnext < 14 and dblocks and j >= args.dstart and lead >= args.minlead + 8
        if ok and not want_d:
            rest.remove(it); log.append(f"{kind}{n}@{j}(-{lead})")
            assert lead > 10, ("late", kind, n, j)
            return kind, n, where
        if lead < args.minlead + 8 and not ok: return None
        break
    if dnext < 14 and dblocks and j >= args.dstart:
        blk = dblocks.pop(0); n = dnext; dnext += 1; dplace[n] = blk; log.append(f"D{n}@{j}")
        return 'D', n, blk
    return None

barrier(0)
g.stamp(3)
for j in range(START, 256):
    n0 = len(g.L)
    if j >= 0:
        i, mt = mseq[j]
        n, t, ql = frags[i]
        s_, k = steps[n]
        assert (k, t, mt) in xdone, ("x read late", j)
        g.need_lg([('w', i), ('x', k, t, mt)])
        acc = (ACC0 if s_ == 0 else ACC1) + 16*(2*ql + mt)
        c = "0" if (k == 0 and t == 0) else vr(acc, 16)
        e(f"v_mfma_f32_32x32x16_bf16 {vr(acc,16)}, {vr(WBUF + (i % NBUF)*4)}, {ar(aX + ((k % 4)*8 + t*2 + mt)*4)}, {c}")
        if i == last_frag[n] and mt == 0: pending_release.append(('W', n))
        if i == last_frag[n] and mt == 1 and first_k[k] == n: pending_release.append(('X', k))
        if args.stepstamps and j % 32 == 31: g.stamp(4 + j // 32, True)
        n0 = len(g.L) - (1 if j % 2 == 1 else 0)
    used = lambda: len(g.L) - n0
    for i_, h_ in rsched.get(j, []): wread(i_, h_)
    if j in bar_at and bar_at[j] > 0: barrier(bar_at[j])
    if j in tsites: touch()
    if j == args.mkat: g.vmem(f"buffer_load_dword v{vP1}, v{vMk}, {sr(sB)}, 0 offen sc1", 'mk')
    if j == args.flagA_at:
        assert not any(p_ == jA for p_, _ in epi_q)
        check_or_spin("L_mk", vP1, 'mk', vMk, sB, 0)
        g.need_vm([('hs', 0)])
        flag_store(0)
        g.stamp(4)
    if j == args.pollA_at and args.pollA_post < 0: g.vmem(f"buffer_load_dword v{vP1}, v{vFl}, {sr(sH)}, 0 offen sc1", 'pa')
    while dland and dland[0][0] <= j and not any(o[0] == 'd' for o in lds_q):
        _, it = dland.pop(0)
        ops = d_reads(it, dplace[it])
        lds_q.append(('d', lambda it=it, f=ops[0]: (g.need_vm([('D', it)]), f())))
        for f in ops[1:-1]: lds_q.append(('d', f))
        lds_q.append(('d', lambda it=it, f=ops[-1]: (f(), dread_done.append((cur[0] + 4, it)))))
    cur = [j]
    while dread_done and dread_done[0][0] <= j:
        _, it = dread_done.pop(0)
        g.need_lg([('Dr', it)]); dblocks.append(dplace[it])
    if j in slotset: credit = min(credit + 1, 2)
    if credit and j < 254:
        if not dma_q and j < 246:
            p_ = pick(j)
            if p_:
                dma_q = dma_item(*p_); curitem = p_
        if dma_q:
            dma_q.pop(0)(); credit -= 1
            if not dma_q:
                issued.add(curitem[:2])
                if curitem[0] == 'D' and curitem[1] < NREG: dland.append((j + args.dlat, curitem[1]))
    nl = 0
    while lds_q and len(g.lg) < 13 and (used() < args.cap or (lds_q[0][0] == 'x' and nl < 1)) and nl < 2:
        lds_q.pop(0)[1](); nl += 1
    while epi_q and epi_q[0][0] <= j and used() < args.cap + args.epi - 3:
        epi_q.pop(0)[1]()
g.stamp(5)
while dma_q:
    dma_q.pop(0)()
    if not dma_q and curitem[0] == 'D' and curitem[1] < NREG: dland.append((0, curitem[1]))
assert not rest
for _, f in lds_q:
    if len(g.lg) >= 14: g.need_lg(g.lg[:1])
    f()
g.need_lg(g.lg[:])
inreg = [j for j in range(min(dnext, NREG)) if j not in [it for _, it in dland]]
for _, it in dread_done: dblocks.append(dplace[it])
for _, f in epi_q: f()
e("s_barrier")
for kind, i in pending_release: dblocks.append(('W', i % NW) if kind == 'W' else ('P', i % NXB))
e("s_nop 7")
e("s_nop 2")
for f in epi_ops(ACC1, 1, 1, True, (1,) if args.mtm else (0, 1)): f()
g.stamp(6)
post = list(range(dnext, 14))
sys.stderr.write("sched: " + " ".join(log) + f"\ninreg {inreg} post {post}\n")
postops = []
for n in post:
    dplace[n] = dblocks.pop(0)
    postops += dma_item('D', n, dplace[n])
def do_flagB():
    g.need_vm([('hs', 1)])
    flag_store(1)
    g.stamp(7)
fb_done = False
for i_, f in enumerate(postops):
    if i_ == args.flagB_post: do_flagB(); fb_done = True
    if i_ == args.pollA_post: g.vmem(f"buffer_load_dword v{vP1}, v{vFl}, {sr(sH)}, 0 offen sc1", 'pa')
    f()
assert args.pollA_post < len(postops) or args.pollA_post < 0
stay = [j for j in range(14) if j not in inreg]
assert len(set(dplace[j] for j in stay)) == len(stay)
check_or_spin("L_pa", vP1, 'pa', vFl, sH, 0, pre=None if fb_done else (lambda: (g.need_vm([('hs', 1)]), flag_store(1))))
g.stamp(8)
HD = args.hdepth
for i in range(HD): h_load(i)
if not fb_done: do_flagB()
vm_main = list(g.vm)
e("s_branch L_ph2")

g.lab("L_spare")
g.vm = []; g.lg = []
e(f"s_cmp_lg_u32 s{s_w}, 0")
e("s_cbranch_scc1 L_sp1")
e(f"s_lshl_b32 s{s_a}, s{s_m64}, 13")
e(f"s_add_u32 s{s_a}, s{s_a}, {FBASE}")
e("v_lshlrev_b32 v240, 7, v0")
e("v_mov_b32 v241, 0")
e(f"buffer_store_dword v241, v240, {sr(sH)}, s{s_a} offen sc1")
g.lab("L_sp1")
if not args.nomall:
    e("v_min_u32 v240, 55, v0")
    e("v_mul_u32_u24 v241, 147, v240")
    e("v_lshrrev_b32 v241, 11, v241")
    e("v_mul_u32_u24 v242, 14, v241")
    e("v_sub_u32 v242, v240, v242")
    e("v_mul_u32_u24 v241, 3584, v241")
    e("v_lshl_add_u32 v241, v242, 7, v241")
    e("v_lshlrev_b32 v242, 10, v0")
    e(f"s_mul_i32 s{s_a}, s{s_mb}, {4*3584}")
    e(f"s_and_b32 s{s_b}, s{s_xcd}, 1")
    e(f"s_mul_i32 s{s_t1}, s{s_b}, 1792")
    e(f"s_add_u32 s{s_a}, s{s_a}, s{s_t1}")
    e(f"s_mul_i32 s{s_t1}, s{s_w}, {64*3584}")
    e(f"s_add_u32 s{s_a}, s{s_a}, s{s_t1}")
    e(f"s_lshl_b32 s{s_b}, s{s_m64}, 16")
    e(f"s_lshl_b32 s{s_t1}, s{s_w}, 7")
    e(f"s_add_u32 s{s_b}, s{s_b}, s{s_t1}")
    for rnd in (range(2) if args.notouch else ()):
        add = 1 + 4*rnd if args.notouch else 4
        e(f"s_add_u32 s{s_t1}, s{s_a}, {add*64*3584}")
        e(f"buffer_load_dword v243, v242, {sr(sX)}, s{s_b} offen offset:{add*128}")
        e(f"buffer_load_dword v244, v241, {sr(sG)}, s{s_t1} offen")
        e(f"buffer_load_dword v245, v241, {sr(sU)}, s{s_t1} offen offset:1024")
    e(f"s_lshl_b32 s{s_a}, s{s_m64}, 2")
    e(f"s_add_u32 s{s_a}, s{s_a}, s{s_w}")
    e(f"s_and_b32 s{s_b}, s{s_a}, 63")
    e(f"s_lshr_b32 s{s_a}, s{s_a}, 6")
    e(f"s_lshl_b32 s{s_a}, s{s_a}, 7")
    e(f"s_add_u32 s{s_a}, s{s_a}, s{s_b}")
    e(f"s_lshl_b32 s{s_a}, s{s_a}, 10")
    e("v_lshrrev_b32 v242, 3, v240")
    e("v_lshlrev_b32 v242, 18, v242")
    e("v_and_b32 v243, 7, v240")
    e("v_lshl_add_u32 v242, v243, 7, v242")
    e(f"buffer_load_dword v245, v242, {sr(sD)}, s{s_a} offen")
    e(f"s_add_u32 s{s_a}, s{s_a}, 65536")
    e(f"buffer_load_dword v246, v242, {sr(sD)}, s{s_a} offen")
    e(f"s_waitcnt vmcnt({8 if args.notouch else 2})")
else:
    e("s_waitcnt vmcnt(0)")
e(f"s_cmp_lg_u32 s{s_w}, 0")
e("s_cbranch_scc1 L_sp2")
e(f"s_lshl_b32 s{s_a}, s{s_m64}, 2")
e(f"v_mov_b32 v247, s{s_a}")
e("v_mov_b32 v248, 1")
e("s_mov_b64 exec, 1")
e(f"buffer_store_dword v248, v247, {sr(sB)}, 0 offen sc1")
e("s_mov_b64 exec, -1")
g.lab("L_sp2")
if args.l2d:
    e("v_and_b32 v240, 31, v0")
    e("v_lshlrev_b32 v240, 7, v240")
    e("v_lshrrev_b32 v241, 5, v0")
    e("v_lshl_add_u32 v240, v241, 17, v240")
    e(f"s_lshl_b32 s{s_a}, s{s_c}, 2")
    e(f"s_add_u32 s{s_a}, s{s_a}, s{s_w}")
    e(f"s_lshl_b32 s{s_a}, s{s_a}, 12")
    e(f"s_add_u32 s{s_a}, s{s_a}, 65536")
    for jj in range(7):
        e(f"buffer_load_dword v{242+jj}, v240, {sr(sD)}, s{s_a} offen")
        if jj < 6: e(f"s_add_u32 s{s_a}, s{s_a}, 262144")
e("s_waitcnt vmcnt(0)")
g.stamp(4)
late_addr_setup()
tmpblk = [('W', i) for i in range(NW)] + [('P', i) for i in range(NP)]
for c0 in range(0, len(inreg), 10):
    chunk = inreg[c0:c0+10]
    for j, blk in zip(chunk, tmpblk):
        for f in dma_item('D', j, blk): f()
    for j, blk in zip(chunk, tmpblk):
        g.need_vm([('D', j)])
        for f in d_reads(j, blk): f()
        g.need_lg([('Dr', j)])
for j in stay:
    for f in dma_item('D', j, dplace[j]): f()
e(f"s_lshl_b32 s{s_a}, s{s_m64}, 2")
e(f"v_mov_b32 v{vMk}, s{s_a}")
spin("L_smk", vMk, sB, 0, sleep=8)
g.stamp(5)
spin("L_spa", vFl, sH, 0, sleep=args.spsleep)
g.stamp(8)
for i in range(HD): h_load(i)
vm_spare = list(g.vm)

g.lab("L_ph2")
g.vm = vm_spare; g.lg = []
ACC2 = ACC0
M = args.tailM
def dop(s, fb, nt):
    f_, base = dhome(s*7 + fb//2)
    r = base + (fb % 2)*8 + nt*4
    return f"{f_}[{r}:{r+3}]"
def mtext(i, nt):
    s, fb, mt, r_ = hidx(i)
    acc = ACC2 + (2*nt + mt)*16
    c = "0" if i < 2 else vr(acc, 16)
    h = ar(aX + r_*4) if s == 0 else vr(HB + r_*4)
    return f"v_mfma_f32_32x32x16_bf16 {vr(acc,16)}, {dop(s, fb, nt)}, {h}, {c}"
def mf(i, nt):
    s, fb, mt, r_ = hidx(i)
    g.need_vm([('h', i)])
    g.need_lg([('Dr', s*7 + fb//2)])
    e(mtext(i, nt))
def mf2(i):
    for nt in range(2):
        mf(i, nt)
dmove = {}
slot_ = 0
for j in stay:
    p_ = slot_ if j < NREG else max(4*(j - NREG + 3) + 3 + 2, slot_)
    dmove.setdefault(p_, []).append(j); slot_ = p_ + 2
    assert p_ < min(i for i in range(56) if hidx(i)[0]*7 + hidx(i)[1]//2 == j), ("D move too late", j, p_)
def moves(i):
    for j in dmove.get(i, []):
        g.need_lg(g.lg[:])
        for f in d_reads(j, dplace[j]): f()
def tail_setup():
    for lam in range(1, 4):
        e(f"s_xor_b32 s{s_a}, s{s_w}, {lam}")
        e(f"s_mul_i32 s{s_a}, s{s_a}, {PWS}")
        e(f"s_add_u32 s{s_a}, s{s_a}, {PB + (lam-1)*4096}")
        e(f"v_add_u32 v{lam}, s{s_a}, v{vL16}")
    e(f"v_add_u32 v4, s{s_mP}, v{vL16}")
    e("v_and_b32 v5, 31, v0")
    e("v_lshrrev_b32 v6, 5, v0")
    e("v_lshlrev_b32 v6, 4, v6")
    e("v_lshl_add_u32 v5, v5, 10, v6")
tail_setup()
POLLB = 28 - HD - args.pollB
for i in range(28 - HD):
    mf2(i); h_load(i + HD); moves(i)
    if i == POLLB: g.vmem(f"buffer_load_dword v{vP2}, v{vFl}, {sr(sH)}, 0 offen offset:{FS} sc1", 'pb')
if args.st2: g.stamp(1)
g.need_vm(['pb'])
if args.st2: g.stamp(2)
e(f"v_cmp_ne_u32 vcc, 0, v{vP2}")
e("s_cmp_eq_u64 vcc, -1")
e("s_cbranch_scc1 L_fastB")
sv_vm, sv_lg = list(g.vm), list(g.lg)
for i in range(28 - HD, 28):
    mf2(i); moves(i)
spin("L_pb", vFl, sH, FS)
g.stamp(13)
for i in range(28, 28 + HD): h_load(i)
vm_slow, lg_slow = list(g.vm), list(g.lg)
e("s_branch L_B")
g.lab("L_fastB")
g.vm, g.lg = sv_vm, sv_lg
for i in range(28 - HD, 28):
    mf2(i); h_load(i + HD); moves(i)
assert g.vm == vm_slow and g.lg == lg_slow, (g.vm, vm_slow)
g.lab("L_B")
g.stamp(9)
def wr(lam, a):
    r = ACC2 + lam*16 + a*4
    g.ds(f"ds_write_b128 v4, {vr(r)} offset:{(lam-1)*4096 + a*1024}", ('wr', lam))
def rd(sl, a):
    g.ds(f"ds_read_b128 {vr(ACC2 + 16 + 4*(sl*4+a))}, v{sl+1} offset:{a*1024}", ('rd', sl*4+a))
def padd(d, t):
    e(f"v_pk_add_f32 v[{d}:{d+1}], v[{d}:{d+1}], v[{t}:{t+1}]")
    e(f"v_pk_add_f32 v[{d+2}:{d+3}], v[{d+2}:{d+3}], v[{t+2}:{t+3}]")
nxt = 28 + HD
if M:
    side = [lambda a=a: wr(1, a) for a in range(4)] + [lambda a=a: wr(3, a) for a in range(4)]
    for i in range(28, 56):
        defer0 = i >= 56 - M
        if i < 42: mf2(i)
        else:
            mf(i, 1)
            if not defer0: mf(i, 0)
        if nxt < 56: h_load(nxt); nxt += 1
        moves(i)
        if i == 43: e("s_nop 7")
        if i >= 43 and side: side.pop(0)()
    assert not side
    g.stamp(10)
    dfr = [(i, 0) for i in range(56 - M, 56)]
    def dm():
        if dfr: mf(*dfr.pop(0))
    dm(); e("s_nop 7"); dm(); e("s_nop 1")
    for a in range(4): wr(2, a); (dm() if a % 2 else None)
    g.need_lg(g.lg[:]); e("s_barrier")
    for a in range(4):
        for sl in range(3): rd(sl, a)
    while dfr: dm()
    for a in range(4):
        g.need_lg([('rd', 8 + a)])
        padd(ACC2 + 16 + 4*a, ACC2 + 32 + 4*a); padd(ACC2 + 16 + 4*a, ACC2 + 48 + 4*a)
    for a in range(4): padd(ACC2 + 4*a, ACC2 + 16 + 4*a)
else:
    for i in range(28, 56):
        mf2(i)
        if nxt < 56: h_load(nxt); nxt += 1
        moves(i)
    g.stamp(10)
    e("s_nop 7")
    e("s_nop 3")
    for lam in (2, 1, 3):
        for a in range(4): wr(lam, a)
    g.need_lg(g.lg[:])
    e("s_barrier")
    for sl in range(3):
        for a in range(4): rd(sl, a)
    for sl in range(3):
        for a in range(4):
            g.need_lg([('rd', sl*4 + a)])
            padd(ACC2 + a*4, ACC2 + 16 + (sl*4 + a)*4)
for i in range(8):
    e(f"v_cvt_pk_bf16_f32 v{EPI+i}, v{ACC2+2*i}, v{ACC2+2*i+1}")
e("s_nop 1")
e(f"v_permlane32_swap_b32 v{EPI}, v{EPI+2}")
e(f"v_permlane32_swap_b32 v{EPI+1}, v{EPI+3}")
e(f"v_permlane32_swap_b32 v{EPI+4}, v{EPI+6}")
e(f"v_permlane32_swap_b32 v{EPI+5}, v{EPI+7}")
e(f"buffer_store_dwordx4 {vr(EPI)}, v5, {sr(sO)}, s{s_oadr} offen {args.outflags}")
e(f"buffer_store_dwordx4 {vr(EPI+4)}, v5, {sr(sO)}, s{s_oadr} offen offset:32 {args.outflags}")
if args.stamps:
    g.stamp(11)
    e("s_waitcnt vmcnt(0)")
    g.stamp(12)
    e("s_waitcnt lgkmcnt(0)")
if args.diag:
    a_, b_, K_, wg_ = map(int, args.diag.split(","))
    if wg_ >= 0: e(f"s_cmp_lg_u32 s2, {wg_}")
    else: e(f"s_cmp_eq_u32 s{s_col}, 0")
    e("s_cbranch_scc1 L_end")
    e(f"s_sub_u32 s46, s{s_st+2*b_}, s{s_st+2*a_}")
    e(f"s_mul_i32 s46, s46, {K_}")
    e(f"s_add_u32 s46, s46, 5000")
    e(f"s_min_u32 s46, s46, 100000")
    g.lab("L_diag")
    e("s_memrealtime s[48:49]")
    e("s_waitcnt lgkmcnt(0)")
    e(f"s_sub_u32 s47, s48, s{s_st}")
    e("s_cmp_lt_u32 s47, s46")
    e("s_cbranch_scc1 L_diag")
elif args.stamps:
    NS = 14
    for i in range(2*NS): e(f"v_mov_b32 v{64+i}, s{s_st+i}")
    e(f"s_lshl_b32 s46, s2, 2")
    e(f"s_add_u32 s46, s46, s{s_w}")
    e(f"s_mul_i32 s46, s46, {NS*8}")
    e(f"s_add_u32 s46, s46, {STAMP_OFF}")
    e("v_mov_b32 v5, 0")
    e("s_mov_b64 exec, 1")
    for i in range(NS//2): e(f"buffer_store_dwordx4 {vr(64+4*i)}, v5, {sr(sH)}, s46 offen offset:{16*i}")
g.lab("L_end")
e("s_endpgm")
g.lab("L_codeend")

tail = f""".section .rodata,"a"
.p2align 6
.amdhsa_kernel {KN}
  .amdhsa_next_free_vgpr 512
  .amdhsa_next_free_sgpr 102
  .amdhsa_accum_offset 256
  .amdhsa_group_segment_fixed_size 0
  .amdhsa_kernarg_size 56
  .amdhsa_user_sgpr_count 2
  .amdhsa_user_sgpr_kernarg_segment_ptr 1
  .amdhsa_system_sgpr_workgroup_id_x 1
.end_amdhsa_kernel"""
print(hdr); print("\n".join(g.L)); print(tail)
```

```python
import sys, argparse

ap = argparse.ArgumentParser()
A = ap.add_argument
A("--stamps", action="store_true"); A("--stepstamps", action="store_true"); A("--cycstamps", action="store_true")
A("--st2", action="store_true"); A("--diag", default="")
A("--la", type=int, default=12)
A("--cap", type=int, default=2); A("--ecap", type=int, default=3)
A("--outflags", default=""); A("--noprefetch", action="store_true"); A("--nomall", action="store_true")
A("--order", default="0101001001001111"); A("--nxk", type=int, default=4)
A("--merge", type=int, default=2); A("--mtm", type=int, default=8)
A("--hdepth", type=int, default=12); A("--pollB", type=int, default=12); A("--chkB_i", type=int, default=18)
A("--mkat", type=int, default=256); A("--spsleep", type=int, default=8); A("--sppace", type=int, default=4)
A("--flagA_at", type=int, default=452); A("--pollA_at", type=int, default=508); A("--chkA_at", type=int, default=512)
A("--hpre", type=int, default=12); A("--dfirst", type=int, default=5); A("--flagB_i", type=int, default=-12)
A("--quiet", type=int, default=0); A("--dstop", type=int, default=480); A("--npoll", type=int, default=3); A("--per", type=int, default=2)
A("--nw", type=int, default=5); A("--nxb", type=int, default=3)
A("--rates", default="7,7,7,8,8,8,8,8,8,8,8,8,6,5,5,5"); A("--pre", type=int, default=4)
A("--minlead", type=int, default=56); A("--dstart", type=int, default=120); A("--dlat", type=int, default=36)
A("--latelead", type=int, default=80); A("--latefrom", type=int, default=13)
A("--pollmode", default="atomic"); A("--krot", type=int, default=1); A("--nos3", action="store_true")
args = ap.parse_args()
if args.diag: args.stamps = True

KN = "standalone__glu_gated_bilinear__prompt_kernel"
NW = args.nw; NP = 10 - NW; NXB = args.nxb
HFS = NW * 8192; PB = 2 * HFS; PWS = NP * 4096; LDS = PB + 4 * PWS
assert LDS == 163840 and NP >= 3
FBASE = 0x1000000; STAMP_OFF = 0x8000000; FS = 1024
HM, HQ, HS, HP = 458752, 114688, 57344, 8192
LA = args.la; NBUF = 8; NM = 512

sX, sG, sU, sD, sH, sO, sB = 8, 12, 16, 20, 24, 28, 32
s_w, s_mb, s_fb, s_m64, s_n64 = 36, 37, 38, 39, 40
s_xoff, s_woff, s_doff = 41, 42, 43
s_mP, s_mW = 44, 45
s_t0, s_t1, s_t2, s_t3 = 46, 47, 48, 49
s_hst, s_spin, s_hld, s_flag = 50, 51, 52, 53
s_oadr, s_xcd, s_col, s_c = 54, 55, 56, 57
s_a, s_b = 58, 59
s_st = 60
s_rh, s_rd = 88, 95
s_kr = 6
vX, vW, vD = 1, 5, 9
vRW, vRX, vRD, vH = 13, 15, 17, 21
vL16, vFl, vMk, vT, vT2, vP1, vP2 = 25, 26, 27, 28, 29, 30, 31
vRD2 = 1
vTR, vTW, vTO = 5, 8, 13
WBUF = 32
ACC0, ACC1 = 64, 128
ACC2 = ACC0
HB = 128
EPI = 240
NXK = args.nxk
NREG = 3 + (256 - 32*NXK)//16

class G:
    def __init__(s): s.L = []; s.lg = []; s.vm = []
    def e(s, t): s.L.append("    " + t)
    def lab(s, t): s.L.append(t + ":")
    def ds(s, t, tag):
        if len(s.lg) >= 14:
            s.e("s_waitcnt lgkmcnt(12)"); s.lg = s.lg[-12:]
        s.e(t); s.lg.append(tag)
    def vmem(s, t, tag): s.e(t); s.vm.append(tag); assert len(s.vm) <= 63, "vm overflow"
    def need_lg(s, tags):
        idx = max((i for i, t in enumerate(s.lg) if t in tags), default=-1)
        if idx >= 0:
            s.e(f"s_waitcnt lgkmcnt({len(s.lg)-1-idx})"); s.lg = s.lg[idx+1:]
    def need_vm(s, tags):
        idx = max((i for i, t in enumerate(s.vm) if t in tags), default=-1)
        if idx >= 0:
            s.e(f"s_waitcnt vmcnt({len(s.vm)-1-idx})"); s.vm = s.vm[idx+1:]
    def stamp(s, k, force=False):
        if args.stepstamps and 4 <= k <= 11 and not force: return
        if args.stamps: s.e(("s_memtime" if args.cycstamps else "s_memrealtime") + f" s[{s_st+2*k}:{s_st+2*k+1}]")
g = G(); e = g.e
def vr(b, n=4): return f"v[{b}:{b+n-1}]"
def ar(b, n=4): return f"a[{b}:{b+n-1}]"
def sr(b, n=4): return f"s[{b}:{b+n-1}]"
MF = "v_mfma_f32_16x16x32_bf16"

order = [int(c) for c in args.order]
assert len(order) == 16 and sum(order) == 8
steps = []; cnt = [0, 0]
for s_ in order: steps.append((s_, cnt[s_])); cnt[s_] += 1
first_k = {}
for n, (s_, k) in enumerate(steps): first_k.setdefault(k, n)
last_k = {k: max(n for n, (s_, kk) in enumerate(steps) if kk == k) for k in range(8)}
for k in range(8 - NXK): assert last_k[k] < first_k[k+NXK] - 1, "x register reuse"
uses = []
mseq = []
nm = 16 - args.merge
for n in range(nm):
    for T in range(2):
        for c in range(4):
            uses.append((n, T, c)); mseq += [(len(uses)-1, mt) for mt in range(4)]
reg_ = [(n, T, c) for n in range(nm, 16) for T in range(2) for c in range(4)]
for n in range(nm, 16): assert steps[n][0] == 1
for u in reg_:
    uses.append(u); mseq += [(len(uses)-1, mt) for mt in (0, 1)]
for u in reg_[:len(reg_) - args.mtm]:
    uses.append(u); mseq += [(len(uses)-1, mt) for mt in (2, 3)]
b0 = len(uses)
for u in reg_[len(reg_) - args.mtm:]: uses.append(u)
mseq += [(i, mt) for mt in (2, 3) for i in range(b0, len(uses))]
assert len(mseq) == NM and args.mtm <= NBUF
NU = len(uses)
first_use = {}
for j_, (i_, mt_) in enumerate(mseq): first_use.setdefault(i_, j_)
last_use = {i_: j_ for j_, (i_, mt_) in enumerate(mseq)}
rsched = {}; rpos = {}; prevp = -999
for i_ in range(NU):
    p_ = first_use[i_] - LA
    if i_ >= NBUF: p_ = max(p_, last_use[i_ - NBUF] + 1)
    gap = first_use.get(i_+1, 9999) - first_use[i_]
    p2 = p_ + (2 if gap >= 4 else (1 if gap >= 2 else 0))
    assert p2 <= first_use[i_] - 5, ("w read late", i_)
    rsched.setdefault(p_, []).append((i_, 0)); rsched.setdefault(p2, []).append((i_, 1)); rpos[i_] = p_
first_u = {n: min(i for i, u in enumerate(uses) if u[0] == n) for n in range(16)}
last_u = {n: max(i for i, u in enumerate(uses) if u[0] == n) for n in range(16)}
bpos = {n: rpos[first_u[n]] - 1 for n in range(16)}
START = -LA
def done_at(s_, mt): return max(j for j, (i, m_) in enumerate(mseq) if m_ == mt and steps[uses[i][0]][0] == s_)
busy = sorted({steps[uses[i][0]][1] % NXK for j_, (i, mt) in enumerate(mseq) if j_ >= min(args.chkA_at, NM - 1) - 4})
slots_order = [s_ for s_ in range(NXK) if s_ not in busy] + busy
xregs = [32*s_ + 4*q for s_ in slots_order for q in range(8)]
hreg = xregs[:28]
NFREE = 8*(NXK - len(busy))
spare16 = xregs[28:]
homes = [("v", 192 + 16*j) for j in range(3)] + [("a", 32*NXK + 16*j) for j in range(NREG - 3)]
for j in range(len(spare16)//4):
    grp = spare16[4*j:4*j+4]
    assert grp == [grp[0] + 4*q for q in range(4)]
    homes.append(("a", grp[0]))
NPOST = len(homes)
reuse = {}
for j in range(NPOST, 14): reuse[j] = 3 + (j - NPOST); homes.append(homes[reuse[j]])
assert args.hpre <= NFREE or args.chkA_at >= NM

e("s_cmp_ge_u32 s2, 256")
e("s_cbranch_scc1 L_end")
if args.stamps:
    for i in range(1, 14): e(f"s_mov_b64 s[{s_st+2*i}:{s_st+2*i+1}], 0")
g.stamp(0)
e("s_load_dwordx8 s[88:95], s[0:1], 0")
e("s_load_dwordx4 s[96:99], s[0:1], 32")
e("s_load_dwordx2 s[100:101], s[0:1], 48")
if not args.noprefetch:
    e("s_getpc_b64 s[4:5]")
    e("s_and_b32 s4, s4, 0xffffff00")
    e(f"s_mov_b32 s6, L_codeend-{KN}")
    e("s_mov_b32 s7, 0x20000")
    e("v_lshlrev_b32 v30, 7, v0")
    g.vmem("buffer_load_dword v31, v30, s[4:7], 0 offen", "pf")
e("v_lshrrev_b32 v30, 6, v0")
e("v_and_b32 v0, 63, v0")
e(f"v_readfirstlane_b32 s{s_w}, v30")
e(f"s_and_b32 s{s_xcd}, s2, 7")
e(f"s_bfe_u32 s{s_c}, s2, 0x20003")
e(f"s_lshr_b32 s{s_col}, s2, 5")
e(f"s_lshl_b32 s{s_m64}, s{s_xcd}, 2")
e(f"s_add_u32 s{s_m64}, s{s_m64}, s{s_c}")
e(f"s_lshr_b32 s{s_mb}, s{s_xcd}, 1")
e(f"s_lshl_b32 s{s_mb}, s{s_mb}, 2")
e(f"s_add_u32 s{s_mb}, s{s_mb}, s{s_c}")
e(f"s_and_b32 s{s_fb}, s{s_xcd}, 1")
e(f"s_mul_i32 s{s_fb}, s{s_fb}, 7")
e(f"s_add_u32 s{s_fb}, s{s_fb}, s{s_col}")
e(f"s_sub_u32 s{s_fb}, s{s_fb}, 1")
e(f"s_xor_b32 s{s_n64}, s{s_col}, 3")
e("v_lshrrev_b32 v240, 3, v0")
e("v_and_b32 v241, 7, v0")
e("v_lshrrev_b32 v242, 4, v0")
e(f"s_lshl_b32 s{s_a}, s{s_w}, 15")
e("v_xor_b32 v243, v241, v242")
e("v_lshlrev_b32 v243, 4, v243")
e(f"v_lshl_add_u32 v{vX}, v240, 10, v243")
e(f"v_add_u32 v{vX}, s{s_a}, v{vX}")
e(f"v_xor_b32 v{vX+1}, 64, v{vX}")
e(f"v_add_u32 v{vX+1}, {7*1024}, v{vX+1}")
e(f"v_add_u32 v{vX+2}, {14*1024}, v{vX}")
e(f"v_add_u32 v{vX+3}, {14*1024}, v{vX+1}")
e(f"s_lshr_b32 s{s_a}, s{s_w}, 1")
e(f"s_lshl_b32 s{s_a}, s{s_a}, 5")
e(f"s_and_b32 s{s_b}, s{s_w}, 1")
e(f"s_lshl_b32 s{s_t0}, s{s_b}, 3")
e(f"s_add_u32 s{s_a}, s{s_a}, s{s_t0}")
e(f"s_mul_i32 s{s_a}, s{s_a}, 3584")
e(f"s_lshl_b32 s{s_b}, s{s_b}, 6")
e(f"v_mul_u32_u24 v{vW}, 3584, v240")
e("v_and_b32 v244, 1, v242")
e("v_lshlrev_b32 v245, 4, v241")
e("v_lshlrev_b32 v246, 5, v244")
e("v_xor_b32 v246, v245, v246")
e(f"v_xor_b32 v246, s{s_b}, v246")
e(f"v_add3_u32 v{vW}, v{vW}, v246, s{s_a}")
e(f"v_add_u32 v{vW+2}, {16*3584-2048}, v{vW}")
e(f"s_lshr_b32 s{s_a}, s{s_w}, 1")
e(f"s_lshl_b32 s{s_a}, s{s_a}, 17")
e(f"s_and_b32 s{s_b}, s{s_w}, 1")
e(f"s_lshl_b32 s{s_b}, s{s_b}, 15")
e(f"s_add_u32 s{s_a}, s{s_a}, s{s_b}")
e("v_lshlrev_b32 v246, 5, v242")
e("v_xor_b32 v246, v245, v246")
e(f"v_lshl_add_u32 v{vD}, v240, 10, v246")
e(f"v_add_u32 v{vD}, s{s_a}, v{vD}")
for i in range(1, 4): e(f"v_add_u32 v{vD+i}, {7*1024*i}, v{vD}")
e(f"s_mul_i32 s{s_mP}, s{s_w}, {PWS}")
e(f"s_add_u32 s{s_mP}, s{s_mP}, {PB}")
e(f"s_and_b32 s{s_b}, s{s_w}, 1")
e(f"s_mul_i32 s{s_mW}, s{s_b}, {HFS}")
e(f"s_lshr_b32 s{s_a}, s{s_w}, 1")
e(f"s_lshl_b32 s{s_a}, s{s_a}, 12")
e(f"s_add_u32 s{s_mW}, s{s_mW}, s{s_a}")
if args.krot:
    e(f"s_and_b32 s{s_kr}, s{s_xcd}, 6")
    e(f"s_and_b32 s{s_a}, s{s_xcd}, 1")
    e(f"s_lshl_b32 s{s_a}, s{s_a}, 2")
    e(f"s_add_u32 s{s_kr}, s{s_kr}, s{s_a}")
    e(f"s_lshl_b32 s{s_kr}, s{s_kr}, 7")
e(f"s_lshl_b32 s{s_xoff}, s{s_mb}, 17")
e(f"s_lshl_b32 s{s_woff}, s{s_fb}, 8")
e(f"s_lshl_b32 s{s_doff}, s{s_n64}, 7")
for b, n in ((sX, 2048*1024), (sG, 512*3584), (sU, 512*3584+1024), (sD, 1792*1024), (sH, 0x10000000), (sO, 2048*1024), (sB, 256)):
    e(f"s_mov_b32 s{b+2}, {n}")
    e(f"s_mov_b32 s{b+3}, 0x20000")
e("s_waitcnt lgkmcnt(0)")
e(f"s_mov_b64 s[{sX}:{sX+1}], s[88:89]")
e(f"s_mov_b64 s[{sG}:{sG+1}], s[90:91]")
e(f"s_sub_u32 s{sU}, s92, 1024")
e(f"s_subb_u32 s{sU+1}, s93, 0")
e(f"s_mov_b64 s[{sD}:{sD+1}], s[94:95]")
e(f"s_mov_b64 s[{sO}:{sO+1}], s[96:97]")
e(f"s_mov_b64 s[{sB}:{sB+1}], s[98:99]")
e(f"s_mov_b64 s[{sH}:{sH+1}], s[100:101]")
g.stamp(1)

def dma_item(kind, n, where):
    m0 = (s_mP, where[1] * 4096) if where[0] == 'P' else (s_mW, where[1] * 8192)
    ops = []
    if kind == 'X': so = (s_xoff, n * 128); srd = [sX]*4; vb = [vX, vX+1, vX+2, vX+3]
    elif kind == 'W': so = (s_woff, steps[n][1] * 64 * 3584 + steps[n][0] * 128); srd = [sG, sU, sG, sU]; vb = [vW, vW, vW+2, vW+2]
    else: so = (s_rd + n % 7, 64 * (n // 7) * 1024); srd = [sD]*4; vb = [vD, vD+1, vD+2, vD+3]
    sc = []
    if args.krot and kind != 'D':
        kb = n if kind == 'X' else steps[n][1]
        sc += [f"s_add_u32 s{s_t0}, s{s_kr}, {kb*128}", f"s_and_b32 s{s_t0}, s{s_t0}, 1023"]
        if kind == 'W':
            sc.append(f"s_mul_i32 s{s_t0}, s{s_t0}, 1792")
            if steps[n][0]: sc.append(f"s_add_u32 s{s_t0}, s{s_t0}, 128")
        sc += [f"s_add_u32 m0, s{m0[0]}, {m0[1]}", f"s_add_u32 s{s_t0}, s{s_t0}, s{so[0]}"]
    else:
        sc += [f"s_add_u32 m0, s{m0[0]}, {m0[1]}", f"s_add_u32 s{s_t0}, s{so[0]}, {so[1]}"]
    for t in sc: ops.append(('s', lambda t=t: e(t)))
    for i in range(4):
        off = f" offset:{1024*i}" if i else ""
        ops.append(('v', lambda i=i, off=off: g.vmem(f"buffer_load_dwordx4 v{vb[i]}, {sr(srd[i])}, s{s_t0} offen{off} lds", (kind, n))))
    return ops
def dma4(kind, n, where):
    ops = dma_item(kind, n, where); pre = [f for k, f in ops if k == 's']; ld = [f for k, f in ops if k == 'v']
    return [lambda: ([f() for f in pre], ld[0]())] + ld[1:]

def h_pattern(vdst, s_idx):
    e(f"v_lshlrev_b32 v{vdst}, 4, v0")
    if args.nos3: return
    e(f"s_and_b32 s{s_idx}, s{s_idx}, 3")
    e(f"s_cmp_eq_u32 s{s_idx}, 3")
    e(f"s_cselect_b32 s{s_idx}, 4, s{s_idx}")
    e(f"s_lshl_b32 s{s_idx}, s{s_idx}, 7")
    e(f"s_add_u32 s{s_idx}, s{s_idx}, {4096 - 384}")
    e("s_mov_b32 exec_lo, 0xff000000")
    e("s_mov_b32 exec_hi, 0")
    e(f"v_add_u32 v{vdst}, s{s_idx}, v{vdst}")
    e("s_mov_b64 exec, -1")

def late_addr_setup():
    e("v_lshrrev_b32 v240, 5, v0")
    e("v_bfe_u32 v241, v0, 4, 1")
    e("v_bfe_u32 v242, v0, 2, 2")
    e("v_and_b32 v243, 3, v0")
    e("v_bfe_u32 v244, v0, 3, 1")
    e("v_lshlrev_b32 v243, 3, v243")
    e("v_lshl_add_u32 v243, v242, 7, v243")
    e("v_lshl_or_b32 v245, v241, 1, v244")
    e("v_lshl_add_u32 v243, v245, 5, v243")
    e(f"v_mul_u32_u24 v{vRW}, {HFS}, v241")
    e(f"v_lshl_add_u32 v{vRW}, v240, 11, v{vRW}")
    e(f"v_add_u32 v{vRW}, v{vRW}, v243")
    e(f"s_and_b32 s{s_a}, s{s_w}, 1")
    e(f"s_lshl_b32 s{s_a}, s{s_a}, 6")
    e(f"v_xor_b32 v{vRW}, s{s_a}, v{vRW}")
    e(f"v_xor_b32 v{vRW+1}, 32, v{vRW}")
    e("v_lshrrev_b32 v246, 4, v0")
    e("v_lshl_add_u32 v245, v246, 9, v243")
    e(f"v_add_u32 v{vRD}, s{s_mP}, v245")
    for nt in range(1, 4): e(f"v_xor_b32 v{vRD+nt}, {32*nt}, v{vRD}")
    e("v_and_b32 v245, 15, v0")
    e("v_bfe_u32 v247, v0, 1, 3")
    e("v_xor_b32 v247, v247, v246")
    e("v_lshlrev_b32 v247, 4, v247")
    e("v_lshl_add_u32 v245, v245, 7, v247")
    e(f"s_lshr_b32 s{s_a}, s{s_w}, 1")
    e(f"s_mul_i32 s{s_a}, s{s_a}, {2*PWS}")
    e(f"s_add_u32 s{s_a}, s{s_a}, {PB}")
    e(f"v_add_u32 v{vRX}, s{s_a}, v245")
    e(f"v_xor_b32 v{vRX+1}, 64, v{vRX}")
    e(f"s_add_u32 s{s_a}, s{s_m64}, s{s_w}")
    h_pattern(vH, s_a)
    e(f"s_lshl_b32 s{s_a}, s{s_w}, 10")
    e(f"v_add_u32 v{vH}, s{s_a}, v{vH}")
    for lam in range(1, 4): e(f"v_xor_b32 v{vH+lam}, {1024*lam}, v{vH}")
    e(f"s_mul_i32 s{s_hld}, s{s_m64}, {HM}")
    e(f"s_mul_i32 s{s_a}, s{s_w}, {HQ}")
    e(f"s_add_u32 s{s_hld}, s{s_hld}, s{s_a}")
    e(f"v_add_u32 v{vFl}, 5, v0")
    e(f"v_lshrrev_b32 v{vFl}, 3, v{vFl}")
    e(f"v_add_u32 v{vFl}, v{vFl}, v0")
    e(f"v_min_u32 v{vFl}, 7, v{vFl}")
    e(f"v_lshlrev_b32 v{vFl}, 7, v{vFl}")
    e(f"s_lshl_b32 s{s_a}, s{s_m64}, 13")
    e(f"s_lshl_b32 s{s_b}, s{s_w}, 11")
    e(f"s_add_u32 s{s_a}, s{s_a}, s{s_b}")
    e(f"s_add_u32 s{s_a}, s{s_a}, {FBASE}")
    e(f"v_add_u32 v{vFl}, s{s_a}, v{vFl}")
    e(f"s_lshl_b32 s{s_a}, s{s_c}, 1")
    e(f"s_add_u32 s{s_a}, s{s_a}, s{s_col}")
    e(f"s_sub_u32 s{s_b}, s{s_a}, 7")
    e(f"s_cmp_ge_u32 s{s_a}, 7")
    e(f"s_cselect_b32 s{s_a}, s{s_b}, s{s_a}")
    for jj in range(7):
        e(f"s_lshl_b32 s{s_b}, s{s_a}, 13")
        e(f"s_add_u32 s{s_rh+jj}, s{s_b}, s{s_hld}")
        e(f"s_lshl_b32 s{s_b}, s{s_a}, 18")
        e(f"s_add_u32 s{s_rd+jj}, s{s_b}, s{s_doff}")
        if jj < 6:
            e(f"s_add_u32 s{s_a}, s{s_a}, 1")
            e(f"s_cmp_eq_u32 s{s_a}, 7")
            e(f"s_cselect_b32 s{s_a}, 0, s{s_a}")
    e(f"s_lshl_b32 s{s_a}, s{s_m64}, 16")
    e(f"s_lshl_b32 s{s_b}, s{s_w}, 14")
    e(f"s_add_u32 s{s_a}, s{s_a}, s{s_b}")
    e(f"s_add_u32 s{s_oadr}, s{s_a}, s{s_doff}")

def rd2_setup():
    e(f"s_sub_u32 s{s_a}, s{s_mW}, s{s_mP}")
    for nt in range(4): e(f"v_add_u32 v{vRD2+nt}, s{s_a}, v{vRD+nt}")

def d_reads(item, where):
    dfile, dstbase = homes[item]
    ops = []
    for nt in range(4):
        for p in range(2):
            def f(nt=nt, p=p):
                if where[0] == 'P': va = vRD + nt; off = where[1]*4096
                else: va = vRD2 + nt; off = where[1]*8192
                off += p*2048
                r = dstbase + nt*4 + 2*p
                g.ds(f"ds_read_b64_tr_b16 {dfile}[{r}:{r+1}], v{va} offset:{off}", ('Dr', item))
            ops.append(f)
    return ops

def pmask(vaddr): return 3 if vaddr == vMk else 0x7f
def poll(vdst, vaddr, srd, off, tag):
    o = f" offset:{off}" if off else ""
    e(f"s_mov_b64 exec, {pmask(vaddr)}")
    if args.pollmode == "atomic" and vaddr != vMk:
        e(f"v_mov_b32 v{vdst}, 0")
        g.vmem(f"buffer_atomic_add v{vdst}, v{vaddr}, {sr(srd)}, 0 offen{o} sc0 sc1", tag)
    else:
        g.vmem(f"buffer_load_dword v{vdst}, v{vaddr}, {sr(srd)}, 0 offen{o} sc1", tag)
    e("s_mov_b64 exec, -1")
def test(vres, vaddr, target):
    e(f"v_cmp_eq_u32 vcc, 0, v{vres}")
    e(f"s_and_b32 s{s_t1}, vcc_lo, {pmask(vaddr)}")
    e(f"s_cbranch_scc0 {target}")
def spin(label, vaddr, srd, off, sleep=0):
    e(f"s_mov_b32 s{s_spin}, 0x40000")
    g.lab(label)
    poll(vT, vaddr, srd, off, 'sp')
    e("s_waitcnt vmcnt(0)")
    test(vT, vaddr, f"{label}_ok")
    if sleep: e(f"s_sleep {sleep}")
    e(f"s_sub_u32 s{s_spin}, s{s_spin}, 1")
    e(f"s_cmp_lg_u32 s{s_spin}, 0")
    e(f"s_cbranch_scc1 {label}")
    g.lab(label + "_ok")
    g.vm = []
def check_or_spin(label, vres, tag, vaddr, srd, off, pre=None):
    g.need_vm([tag])
    test(vres, vaddr, f"{label}_ok")
    save = list(g.vm)
    if pre: pre()
    spin(label, vaddr, srd, off)
    g.vm = save

def accr(acc, c, mt): return acc + (c*4 + mt)*4
def epi_ops(acc, s, mt, packed):
    ops = []; d = EPI + 4*mt
    for ql in range(2):
        a = accr(acc, 2*ql, mt); b = accr(acc, 2*ql + 1, mt)
        if packed:
            for i in range(2): ops.append(lambda a=a, b=b, i=i: e(f"v_pk_mul_f32 v[{a+2*i}:{a+2*i+1}], v[{a+2*i}:{a+2*i+1}], v[{b+2*i}:{b+2*i+1}]"))
        else:
            for i in range(4): ops.append(lambda a=a, b=b, i=i: e(f"v_mul_f32 v{a+i}, v{a+i}, v{b+i}"))
    for ql in range(2):
        a = accr(acc, 2*ql, mt)
        for i in range(2): ops.append(lambda a=a, i=i, ql=ql: e(f"v_cvt_pk_bf16_f32 v{d+2*ql+i}, v{a+2*i}, v{a+2*i+1}"))
    if mt == 0 and s == 1: ops.append(lambda: e(f"s_add_u32 s{s_hst}, s{s_hst}, {HS}"))
    off = f" offset:{1024*mt}" if mt else ""
    ops.append(lambda: g.vmem(f"buffer_store_dwordx4 {vr(d)}, v{vL16}, {sr(sH)}, s{s_hst} offen{off} sc1", ('hs', s)))
    return ops

def flag_store(s):
    e(f"v_mov_b32 v{vT2}, s{s_flag}")
    e(f"v_mov_b32 v{vT}, 1")
    e("s_mov_b64 exec, 1")
    g.vmem(f"buffer_store_dword v{vT}, v{vT2}, {sr(sH)}, 0 offen offset:{FS*s} sc1", ('fl', s))
    e("s_mov_b64 exec, -1")

def hidx(i):
    s, r_ = divmod(i, 28)
    if s == 0: jj, lam = divmod(r_, 4)
    else: jj, lam = r_ % 7, (r_ // 7 + 1) % 4
    return s, jj, lam, r_
def h_load(i):
    s, jj, lam, r_ = hidx(i)
    dst = ar(hreg[r_]) if s == 0 else vr(HB + r_*4)
    if i == 28:
        for q in range(7): e(f"s_add_u32 s{s_rh+q}, s{s_rh+q}, {HS}")
    g.vmem(f"buffer_load_dwordx4 {dst}, v{vH+lam}, {sr(sH)}, s{s_rh+jj} offen sc1", ('h', i))
def mf(i, nt):
    s, jj, lam, r_ = hidx(i)
    g.need_vm([('h', i)])
    g.need_lg([('Dr', s*7 + jj)])
    f_, base = homes[s*7 + jj]
    r = base + nt*4
    acc = ACC2 + (lam*4 + nt)*4
    c = "0" if i < 4 else vr(acc)
    h = ar(hreg[r_]) if s == 0 else vr(HB + r_*4)
    e(f"{MF} {vr(acc)}, {f_}[{r}:{r+3}], {h}, {c}")
def tail_setup():
    e(f"v_lshlrev_b32 v{vL16}, 4, v0")
    for lam in range(1, 4):
        e(f"s_xor_b32 s{s_a}, s{s_w}, {lam}")
        e(f"s_mul_i32 s{s_a}, s{s_a}, {PWS}")
        e(f"s_add_u32 s{s_a}, s{s_a}, {PB + (lam-1)*4096}")
        e(f"v_add_u32 v{vTR+lam-1}, s{s_a}, v{vL16}")
    e(f"v_add_u32 v{vTW}, s{s_mP}, v{vL16}")
    e(f"v_and_b32 v{vTO}, 15, v0")
    e(f"v_lshlrev_b32 v{vTO}, 10, v{vTO}")
    e(f"v_bfe_u32 v{vTO+1}, v0, 4, 1")
    e(f"v_lshl_add_u32 v{vTO}, v{vTO+1}, 5, v{vTO}")
    e(f"v_lshrrev_b32 v{vTO+1}, 5, v0")
    e(f"v_lshl_add_u32 v{vTO}, v{vTO+1}, 4, v{vTO}")
HD = args.hdepth

e(f"s_cmp_eq_u32 s{s_col}, 0")
e("s_cbranch_scc1 L_spare")

mand = []
for n in range(16):
    for k in range(8):
        if first_k[k] == n: mand.append((n, 'X', k, ('P', k % NXB)))
    mand.append((n, 'W', n, ('W', n % NW)))
for (_, kind, n, where) in mand[:2]:
    for f in dma4(kind, n, where): f()
late_addr_setup()
e(f"s_lshr_b32 s{s_a}, s{s_w}, 1")
e(f"s_lshl_b32 s{s_b}, s{s_mb}, 1")
e(f"s_add_u32 s{s_a}, s{s_a}, s{s_b}")
e(f"s_and_b32 s{s_b}, s{s_fb}, 1")
e(f"s_lshl_b32 s{s_b}, s{s_b}, 1")
e(f"s_and_b32 s{s_t1}, s{s_w}, 1")
e(f"s_add_u32 s{s_b}, s{s_b}, s{s_t1}")
e(f"s_mul_i32 s{s_hst}, s{s_a}, {HM}")
e(f"s_mul_i32 s{s_t1}, s{s_b}, {HQ}")
e(f"s_add_u32 s{s_hst}, s{s_hst}, s{s_t1}")
e(f"s_lshr_b32 s{s_t2}, s{s_fb}, 1")
e(f"s_lshl_b32 s{s_t1}, s{s_t2}, 13")
e(f"s_add_u32 s{s_hst}, s{s_hst}, s{s_t1}")
e(f"s_add_u32 s{s_t1}, s{s_a}, s{s_b}")
h_pattern(vL16, s_t1)
e(f"s_cmp_ge_u32 s{s_t2}, 3")
e(f"s_addc_u32 s{s_t2}, s{s_t2}, 0")
e(f"s_lshl_b32 s{s_t2}, s{s_t2}, 7")
e(f"s_lshl_b32 s{s_b}, s{s_b}, 11")
e(f"s_add_u32 s{s_b}, s{s_b}, s{s_t2}")
e(f"s_lshl_b32 s{s_t1}, s{s_a}, 13")
e(f"s_add_u32 s{s_b}, s{s_b}, s{s_t1}")
e(f"s_add_u32 s{s_flag}, s{s_b}, {FBASE}")
e(f"s_lshl_b32 s{s_a}, s{s_a}, 2")
e(f"s_lshl_b32 s{s_b}, s{s_m64}, 2")
e(f"v_mov_b32 v{vMk}, s{s_a}")
e(f"v_mov_b32 v240, s{s_b}")
e("v_cmp_lt_u32 vcc, 0, v0")
e("s_nop 1")
e(f"v_cndmask_b32 v{vMk}, v{vMk}, v240, vcc")

def phase2A(R, stay, dplace, lateops, late, nh, extra):
    dmove = {}; slot_ = 0
    plan = {}; q = [('h', i) for i in range(nh, 28)]; lo = list(lateops); it = args.quiet if R != "S" else 0
    late_done = {}
    def takeD(c):
        c.append(('d', lo.pop(0)))
        if len(lo) % 4 == 0: late_done[late[len(late) - 1 - len(lo)//4]] = it
    while q or lo:
        c = []
        behind = q and q[0][1] - it < 8
        if q: c.append(q.pop(0))
        while len(c) < args.per and (q or lo):
            if q and (behind or not lo):
                if not behind and not lo and it >= 4 + args.quiet: break
                c.append(q.pop(0))
            else: takeD(c)
        for o in c:
            if o[0] == 'h': assert o[1] > it, ("h load late", o, it)
        plan[it] = c; it += 1
    for j in stay:
        p_ = slot_ if j not in reuse else max(4*reuse[j] + 3 + 2, slot_)
        if j in late_done: p_ = max(p_, late_done[j] + 8)
        p_ = min(p_, 26)
        dmove.setdefault(p_, []).append(j); slot_ = p_ + 2
        assert p_ + 1 < min(i for i in range(56) if hidx(i)[0]*7 + hidx(i)[1] == j), ("D move too late", j, p_)
    CB = args.chkB_i
    assert it <= CB, ("issue plan too long", it)
    pend = []
    def vm_(o):
        if o[0] == 'h': h_load(o[1])
        else: o[1]()
    def body(i, loads):
        for j in dmove.get(i, []):
            ops = d_reads(j, dplace[j])
            pend.append(lambda j=j, f=ops[0]: (g.need_vm([('D', j)]), f()))
            pend.extend(ops[1:])
        side = [lambda o=o: vm_(o) for o in loads] + list(extra.get(i, []))
        for nt in range(4):
            mf(i, nt)
            if side: side.pop(0)()
            elif pend: pend.pop(0)()
            if pend: pend.pop(0)()
        for f in side: f()
    def flush():
        while pend: pend.pop(0)()
        g.need_lg(g.lg[:])
    for i in range(CB):
        body(i, plan.get(i, []))
        if i == args.pollB: poll(vP2, vFl, sH, FS, 'pb')
    if args.st2: g.stamp(1)
    g.need_vm(['pb'])
    if args.st2: g.stamp(2)
    test(vP2, vFl, f"L_fastB{R}")
    sv = list(g.vm), list(g.lg), list(pend)
    poll(vP2, vFl, sH, FS, 'pb2')
    for i in range(CB, 28): body(i, [])
    flush()
    g.need_vm(['pb2'])
    test(vP2, vFl, f"L_pb{R}_ok")
    pr = [vT, vT2, vP1, vP2][:args.npoll]
    e(f"s_mov_b32 s{s_spin}, 0x20000")
    for r_ in pr[:-1]:
        poll(r_, vFl, sH, FS, 'x'); e("s_sleep 1")
    g.lab(f"L_pb{R}")
    for k_ in range(len(pr)):
        poll(pr[k_ - 1], vFl, sH, FS, 'x')
        e(f"s_waitcnt vmcnt({len(pr) - 1})")
        test(pr[k_], vFl, f"L_pb{R}_ok")
    e(f"s_sub_u32 s{s_spin}, s{s_spin}, 1")
    e(f"s_cmp_lg_u32 s{s_spin}, 0")
    e(f"s_cbranch_scc1 L_pb{R}")
    g.lab(f"L_pb{R}_ok")
    g.vm = []
    g.stamp(13)
    for i in range(28, 28 + HD): h_load(i)
    e("s_branch L_B")
    g.lab(f"L_fastB{R}")
    g.vm, g.lg = sv[0], sv[1]; pend[:] = sv[2]
    q = list(range(28, 28 + HD)); per = -(-HD // (28 - CB))
    for i in range(CB, 28):
        body(i, [('h', q.pop(0)) for _ in range(min(per, len(q)))])
    assert not q
    flush()
    assert [t for t in g.vm if t[0] != 'h' or t[1] < 28] == [], g.vm

def main_path(R):
    issued = {m[1:3] for m in mand[:2]}
    rest = list(mand[2:])
    for (_, kind, n, where) in rest[:args.pre - 2]:
        assert (n < NW if kind == 'W' else n < NXB)
        for f in dma4(kind, n, where): f()
        issued.add((kind, n))
    rest = rest[args.pre - 2:]
    g.stamp(2)
    rates = [int(x) for x in args.rates.split(",")]
    slotc = {}
    for n in range(16):
        for i in range(rates[n]): slotc[32*n + START + (32*i)//rates[n]] = 1
    st = dict(credit=0, dnext=0, cur=None, nh=0)
    dma_q = []; lds_q = []; epi_q = []
    wfree = {n: n < NW for n in range(16)}; xfree = {k: k < NXB for k in range(8)}
    dblocks = [('P', b_) for b_ in range(NXB, NP)]
    pending = []; dplace = {}; dland = []; dread_done = []; log = []; xdone = set(); xrel = []; inreg = []
    for mt in range(4):
        for f in epi_ops(ACC0, 0, mt, False): epi_q.append((done_at(0, 3) + 6, 'A', f))
    for mt in range(3):
        for f in epi_ops(ACC1, 1, mt, False): epi_q.append((done_at(1, mt if mt else 1) + (6 if mt < 2 else 8), 'B', f))
    bar_at = {p: n for n, p in bpos.items()}
    def release(kind, i):
        if kind == 'W':
            if i + NW < 16: wfree[i + NW] = True
            else: dblocks.append(('W', i % NW))
        else:
            if i + NXB < 8: xfree[i + NXB] = True
            else: dblocks.append(('P', i % NXB))
        dblocks.sort(key=lambda b_: b_[0] != 'P')
    def barrier(n):
        tags = [('W', n)] + [('X', k) for k in range(8) if first_k[k] == n]
        assert all(t in issued for t in tags), (R, n)
        g.need_vm(tags)
        for k in xrel:
            assert all((k, T, mt) in xdone for T in range(2) for mt in range(4))
            g.need_lg([('x', k, 1, 3)])
            pending.append(('X', k))
        xrel.clear()
        e("s_barrier")
        for kind, i in pending: release(kind, i)
        pending.clear()
        for k in range(8):
            if first_k[k] == n:
                xrel.append(k)
                for T in range(2):
                    for mt in range(4):
                        def f(k=k, T=T, mt=mt):
                            r = ((k % NXK)*8 + T*4 + mt)*4
                            g.ds(f"ds_read_b128 {ar(r)}, v{vRX+T} offset:{(mt >> 1)*PWS + (mt & 1)*2048 + (k % NXB)*4096}", ('x', k, T, mt))
                            xdone.add((k, T, mt))
                        lds_q.append(('x', f))
                lds_q.sort(key=lambda o: o[0] != 'x')
    def wread(i, half):
        n, T, c = uses[i]
        b = WBUF + (i % NBUF) * 4 + 2*half
        off = (n % NW) * 8192 + T * 4096 + (c & 1) * 1024 + 512*half
        g.ds(f"ds_read_b64_tr_b16 v[{b}:{b+1}], v{vRW + (c >> 1)} offset:{off}", ('w', i))
    def pick(j):
        d = st['dnext']
        can_d = d < 14 and dblocks and j >= args.dstart
        for idx, (dl, kind, n, where) in enumerate(rest[:3]):
            ok = wfree[n] if kind == 'W' else xfree[n]
            lead = bpos[dl] - j
            extra = 16 if any(r_[0] == dl for r_ in rest[idx+1:idx+2]) else 0
            minl = max(args.minlead, args.latelead) if dl >= args.latefrom else args.minlead
            urgent = lead < minl + 16 + extra
            if ok and (urgent or not can_d):
                rest.pop(idx); log.append(f"{kind}{n}@{j}(-{lead})")
                assert lead > 20, ("late", R, kind, n, j)
                return kind, n, where
            if not ok and lead < 48: return None
            if ok: break
        if can_d:
            blk = dblocks.pop(0 if d < NREG else -1); st['dnext'] += 1; dplace[d] = blk; log.append(f"D{d}@{j}")
            return 'D', d, blk
        return None
    barrier(0)
    g.stamp(3)
    for j in range(START, NM):
        n0 = len(g.L)
        if j >= 0:
            i, mt = mseq[j]
            n, T, c = uses[i]
            s_, k = steps[n]
            assert (k, T, mt) in xdone, ("x read late", j)
            g.need_lg([('w', i), ('x', k, T, mt)])
            acc = accr(ACC0 if s_ == 0 else ACC1, c, mt)
            cc = "0" if (k == 0 and T == 0) else vr(acc)
            e(f"{MF} {vr(acc)}, {vr(WBUF + (i % NBUF)*4)}, {ar(((k % NXK)*8 + T*4 + mt)*4)}, {cc}")
            if i == last_u[n] and j == first_use[i]: pending.append(('W', n))
            if args.stepstamps and j % 64 == 63: g.stamp(4 + j // 64, True)
            nxt_wait = j + 1 < NM and first_use[mseq[j+1][0]] == j + 1
            n0 = len(g.L) - (1 if nxt_wait else 0)
        used = lambda: len(g.L) - n0
        for i_, h_ in rsched.get(j, []): wread(i_, h_)
        if j in bar_at and bar_at[j] > 0: barrier(bar_at[j])
        if j == args.pollA_at: poll(vP1, vFl, sH, 0, 'pa')
        if j == args.chkA_at:
            check_or_spin(f"L_pa{R}", vP1, 'pa', vFl, sH, 0)
            g.stamp(8)
        if j >= args.chkA_at and st['nh'] < args.hpre and not dma_q and (j - args.chkA_at) % 4 == 1:
            h_load(st['nh']); st['nh'] += 1
        if j == args.mkat: poll(vP1, vMk, sB, 0, 'mk')
        if j == args.flagA_at:
            assert not any(t_ == 'A' for _, t_, _ in epi_q)
            check_or_spin(f"L_mk{R}", vP1, 'mk', vMk, sB, 0)
            g.need_vm([('hs', 0)])
            flag_store(0)
            g.stamp(4)
        while dland and dland[0][0] <= j and not any(o[0] == 'd' for o in lds_q) and j < NM - 40:
            _, it = dland.pop(0)
            ops = d_reads(it, dplace[it]); inreg.append(it)
            lds_q.append(('d', lambda it=it, f=ops[0]: (g.need_vm([('D', it)]), f())))
            for f in ops[1:-1]: lds_q.append(('d', f))
            lds_q.append(('d', lambda it=it, f=ops[-1]: (f(), dread_done.append((st['j'] + 8, it)))))
        st['j'] = j
        while dread_done and dread_done[0][0] <= j:
            _, it = dread_done.pop(0)
            g.need_lg([('Dr', it)]); dblocks.insert(0, dplace[it])
        if j in slotc: st['credit'] = min(st['credit'] + 1, 2)
        if lds_q and lds_q[0][0] == 'x' and used() < args.cap and len(g.lg) < 13: lds_q.pop(0)[1]()
        if not dma_q and (st['credit'] or any(j + q_ in slotc for q_ in (1, 2, 3))) and j < min(args.chkA_at - 12, args.dstop):
            p_ = pick(j)
            if p_: dma_q = dma_item(*p_); st['cur'] = p_
        while dma_q and dma_q[0][0] == 's' and used() < args.cap: dma_q.pop(0)[1]()
        if dma_q and dma_q[0][0] == 'v' and st['credit'] and used() < args.cap and j < NM - 4:
            dma_q.pop(0)[1](); st['credit'] -= 1
            if not dma_q:
                issued.add(st['cur'][:2])
                if st['cur'][0] == 'D' and st['cur'][1] < NREG: dland.append((j + args.dlat, st['cur'][1]))
                if st['cur'][:2] == ('X', 7): rd2_setup()
        if lds_q and len(g.lg) < 13 and used() < args.cap and j % 2: lds_q.pop(0)[1]()
        while epi_q and epi_q[0][0] <= j and used() < args.ecap: epi_q.pop(0)[2]()
        while lds_q and len(g.lg) < 13 and used() < args.cap: lds_q.pop(0)[1]()
    g.stamp(5)
    assert not rest
    for _, f in lds_q: f()
    for _, _, f in epi_q: f()
    e("s_nop 7")
    for f in epi_ops(ACC1, 1, 3, True): f()
    g.stamp(6)
    g.need_lg(g.lg[:])
    for _, it in dread_done: dblocks.append(dplace[it])
    e("s_barrier")
    for kind, i in pending: release(kind, i)
    for _, f in dma_q: f()
    post = list(range(st['dnext'], 14))
    sys.stderr.write(f"{R}: " + " ".join(log) + f"\n   inreg {inreg} post {post} nh {st['nh']}\n")
    lateops = []
    for n in post:
        dplace[n] = dblocks.pop(0)
        lateops += dma4('D', n, dplace[n])
    stay = [j for j in range(14) if j not in inreg]
    assert len(set(dplace[j] for j in stay)) == len(stay)
    def do_flagB():
        g.need_vm([('hs', 1)])
        flag_store(1)
        g.stamp(7)
    extra = {1: [tail_setup]}
    nfirst = min(args.dfirst*4, len(lateops))
    fbd = False
    for i_ in range(nfirst):
        if args.flagB_i < 0 and i_ == -args.flagB_i: do_flagB(); fbd = True
        lateops.pop(0)()
    post = post[nfirst//4:]
    if args.flagB_i < 0 and not fbd: do_flagB()
    if args.chkA_at >= NM:
        check_or_spin(f"L_pa{R}", vP1, 'pa', vFl, sH, 0, pre=(lambda: (g.need_vm([('hs', 1)]), flag_store(1))) if args.flagB_i >= 0 else None)
        g.stamp(8)
        while st['nh'] < args.hpre: h_load(st['nh']); st['nh'] += 1
    if args.flagB_i >= 0: extra.setdefault(args.flagB_i, []).append(do_flagB)
    phase2A(R, stay, dplace, lateops, post, st['nh'], extra)
    e("s_branch L_B")

main_path("F")
inreg = list(range(NPOST)); stay = list(range(NPOST, 14)); dplace = {j: ('P', j - NPOST) for j in stay}

g.lab("L_spare")
g.vm = []; g.lg = []
e(f"s_cmp_lg_u32 s{s_w}, 0")
e("s_cbranch_scc1 L_sp1")
e(f"s_lshl_b32 s{s_a}, s{s_m64}, 13")
e(f"s_add_u32 s{s_a}, s{s_a}, {FBASE}")
e("v_lshlrev_b32 v240, 7, v0")
e("v_mov_b32 v241, 0")
e(f"buffer_store_dword v241, v240, {sr(sH)}, s{s_a} offen sc1")
g.lab("L_sp1")
if not args.nomall:
    e("v_min_u32 v240, 55, v0")
    e(f"s_lshl_b32 s{s_a}, s{s_m64}, 2")
    e(f"s_add_u32 s{s_a}, s{s_a}, s{s_w}")
    e(f"s_and_b32 s{s_b}, s{s_a}, 63")
    e(f"s_lshr_b32 s{s_a}, s{s_a}, 6")
    e(f"s_lshl_b32 s{s_a}, s{s_a}, 7")
    e(f"s_add_u32 s{s_a}, s{s_a}, s{s_b}")
    e(f"s_lshl_b32 s{s_a}, s{s_a}, 10")
    e("v_lshrrev_b32 v242, 3, v240")
    e("v_lshlrev_b32 v242, 18, v242")
    e("v_and_b32 v247, 7, v240")
    e("v_lshl_add_u32 v242, v247, 7, v242")
    e(f"buffer_load_dword v245, v242, {sr(sD)}, s{s_a} offen")
    e(f"s_add_u32 s{s_a}, s{s_a}, 65536")
    e(f"buffer_load_dword v246, v242, {sr(sD)}, s{s_a} offen")
    e("s_waitcnt vmcnt(2)")
else:
    e("s_waitcnt vmcnt(0)")
e(f"s_cmp_lg_u32 s{s_w}, 0")
e("s_cbranch_scc1 L_sp2")
e(f"s_lshl_b32 s{s_a}, s{s_m64}, 2")
e(f"v_mov_b32 v247, s{s_a}")
e("v_mov_b32 v248, 1")
e("s_mov_b64 exec, 1")
e(f"buffer_store_dword v248, v247, {sr(sB)}, 0 offen sc1")
e("s_mov_b64 exec, -1")
g.lab("L_sp2")
e("s_waitcnt vmcnt(0)")
g.stamp(4)
late_addr_setup()
free2 = [('P', NP - 1), ('P', NP - 2)]
assert len(stay) <= NP - 2
prev = None
for j in range(14):
    blk = dplace[j] if j in stay else free2[j % 2]
    for f in dma4('D', j, blk):
        f()
        if len(g.vm) > args.sppace:
            e(f"s_waitcnt vmcnt({args.sppace})"); g.vm = g.vm[-args.sppace:] if args.sppace else []
    if prev is not None:
        g.need_vm([('D', prev[0])])
        for f in d_reads(*prev): f()
        g.need_lg(g.lg[:])
    prev = (j, blk) if j in inreg else None
if prev is not None:
    g.need_vm([('D', prev[0])])
    for f in d_reads(*prev): f()
    g.need_lg(g.lg[:])
e(f"s_lshl_b32 s{s_a}, s{s_m64}, 2")
e(f"v_mov_b32 v{vMk}, s{s_a}")
spin("L_smk", vMk, sB, 0, sleep=8)
g.stamp(5)
spin("L_spa", vFl, sH, 0, sleep=args.spsleep)
g.stamp(8)
for i in range(HD): h_load(i)
g.lg = []
phase2A("S", stay, dplace, [], [], HD, {0: [tail_setup]})

g.lab("L_B")
g.stamp(9)
g.vm = [('h', i) for i in range(28, 28 + HD)]; g.lg = []
def wr(lam, a):
    r = ACC2 + lam*16 + a*4
    g.ds(f"ds_write_b128 v{vTW}, {vr(r)} offset:{(lam-1)*4096 + a*1024}", ('wr', lam))
def rd(sl, a):
    g.ds(f"ds_read_b128 {vr(ACC2 + 16 + 4*(sl*4+a))}, v{vTR+sl} offset:{a*1024}", ('rd', sl*4+a))
def padd(d, t):
    e(f"v_pk_add_f32 v[{d}:{d+1}], v[{d}:{d+1}], v[{t}:{t+1}]")
    e(f"v_pk_add_f32 v[{d+2}:{d+3}], v[{d+2}:{d+3}], v[{t+2}:{t+3}]")
def sync():
    g.need_lg(g.lg[:]); e("s_barrier")
    for a in range(4):
        for sl in range(3): rd(sl, a)
def sum_(a):
    g.need_lg([('rd', 8 + a)])
    padd(ACC2 + 16 + 4*a, ACC2 + 32 + 4*a); padd(ACC2 + 16 + 4*a, ACC2 + 48 + 4*a)
side = {}
for lam in (1, 2):
    for a in range(4): side.setdefault((28 + 7*lam + 2 + a, 1), []).append(lambda lam=lam, a=a: wr(lam, a))
for a in range(4): side.setdefault((51, a), []).append(lambda a=a: wr(3, a))
side.setdefault((53, 1), []).append(sync)
nxt = 28 + HD
for i in range(28, 56):
    for nt in range(4):
        mf(i, nt)
        if nt == 0 and nxt < 56: h_load(nxt); nxt += 1
        for f in side.get((i, nt), []): f()
g.stamp(10)
for a in range(4): sum_(a)
for a in range(4): padd(ACC2 + 4*a, ACC2 + 16 + 4*a)
for i in range(8):
    e(f"v_cvt_pk_bf16_f32 v{EPI+i}, v{ACC2+2*i}, v{ACC2+2*i+1}")
e("s_nop 1")
e(f"v_permlane16_swap_b32 v{EPI}, v{EPI+2}")
e(f"v_permlane16_swap_b32 v{EPI+1}, v{EPI+3}")
e(f"v_permlane16_swap_b32 v{EPI+4}, v{EPI+6}")
e(f"v_permlane16_swap_b32 v{EPI+5}, v{EPI+7}")
e(f"buffer_store_dwordx4 {vr(EPI)}, v{vTO}, {sr(sO)}, s{s_oadr} offen {args.outflags}")
e(f"buffer_store_dwordx4 {vr(EPI+4)}, v{vTO}, {sr(sO)}, s{s_oadr} offen offset:64 {args.outflags}")
if args.stamps:
    g.stamp(11)
    e("s_waitcnt vmcnt(0)")
    g.stamp(12)
    e("s_waitcnt lgkmcnt(0)")
if args.diag:
    a_, b_, K_, wg_ = map(int, args.diag.split(","))
    if wg_ >= 0: e(f"s_cmp_lg_u32 s2, {wg_}")
    else: e(f"s_cmp_eq_u32 s{s_col}, 0")
    e("s_cbranch_scc1 L_end")
    e(f"s_sub_u32 s46, s{s_st+2*b_}, s{s_st+2*a_}")
    e(f"s_mul_i32 s46, s46, {K_}")
    e(f"s_add_u32 s46, s46, 5000")
    e(f"s_min_u32 s46, s46, 100000")
    g.lab("L_diag")
    e("s_memrealtime s[48:49]")
    e("s_waitcnt lgkmcnt(0)")
    e(f"s_sub_u32 s47, s48, s{s_st}")
    e("s_cmp_lt_u32 s47, s46")
    e("s_cbranch_scc1 L_diag")
elif args.stamps:
    NS = 14
    for i in range(2*NS): e(f"v_mov_b32 v{64+i}, s{s_st+i}")
    e(f"s_lshl_b32 s46, s2, 2")
    e(f"s_add_u32 s46, s46, s{s_w}")
    e(f"s_mul_i32 s46, s46, {NS*8}")
    e(f"s_add_u32 s46, s46, {STAMP_OFF}")
    e("v_mov_b32 v5, 0")
    e("s_mov_b64 exec, 1")
    for i in range(NS//2): e(f"buffer_store_dwordx4 {vr(64+4*i)}, v5, {sr(sH)}, s46 offen offset:{16*i}")
g.lab("L_end")
e("s_endpgm")
g.lab("L_codeend")

hdr = f"""; Fused bilinear GLU: out = ((x Wg) * (x Wu)) Wd   (generated)
; @launch grid=(256,1,1) block=(256,1,1) lds={LDS}
.amdgcn_target "amdgcn-amd-amdhsa--gfx950"
.text
.globl {KN}
.p2align 8
.type {KN},@function
{KN}:"""
tail = f""".section .rodata,"a"
.p2align 6
.amdhsa_kernel {KN}
  .amdhsa_next_free_vgpr 512
  .amdhsa_next_free_sgpr 102
  .amdhsa_accum_offset 256
  .amdhsa_group_segment_fixed_size 0
  .amdhsa_kernarg_size 56
  .amdhsa_user_sgpr_count 2
  .amdhsa_user_sgpr_kernarg_segment_ptr 1
  .amdhsa_system_sgpr_workgroup_id_x 1
.end_amdhsa_kernel"""
print(hdr); print("\n".join(g.L)); print(tail)
```

```python
import sys, argparse

ap = argparse.ArgumentParser()
A = ap.add_argument
A("--stamps", action="store_true"); A("--stepstamps", action="store_true"); A("--cycstamps", action="store_true")
A("--st2", action="store_true"); A("--diag", default="")
A("--la", type=int, default=12)
A("--cap", type=int, default=2); A("--ecap", type=int, default=3)
A("--outflags", default=""); A("--noprefetch", action="store_true"); A("--nomall", action="store_true")
A("--order", default="0101001001001111"); A("--nxk", type=int, default=4)
A("--merge", type=int, default=3); A("--mtm", type=int, default=8)
A("--hdepth", type=int, default=12); A("--pollB", type=int, default=12); A("--chkB_i", type=int, default=18)
A("--mkat", type=int, default=256); A("--spsleep", type=int, default=8); A("--sppace", type=int, default=4)
A("--flagA_at", type=int, default=452); A("--pollA_at", type=int, default=508); A("--chkA_at", type=int, default=512)
A("--hpre", type=int, default=12); A("--dfirst", type=int, default=5); A("--flagB_i", type=int, default=-12)
A("--quiet", type=int, default=0); A("--dstop", type=int, default=480); A("--npoll", type=int, default=3); A("--per", type=int, default=2)
A("--nw", type=int, default=5); A("--nxb", type=int, default=3)
A("--rates", default="7,7,7,8,8,8,8,8,8,8,8,8,6,5,5,5"); A("--pre", type=int, default=4)
A("--minlead", type=int, default=56); A("--dstart", type=int, default=120); A("--dlat", type=int, default=36)
A("--latelead", type=int, default=80); A("--latefrom", type=int, default=13)
A("--spt", type=int, default=0)
A("--early", type=int, default=0)
A("--dorder", default="0,1,7,8,2,3,4,5,6,9,10,11,12,13")
A("--oldmerge", action="store_true")
A("--dlat2", type=int, default=28)
A("--pollmode", default="atomic"); A("--krot", type=int, default=1); A("--nos3", action="store_true")
args = ap.parse_args()
if args.diag: args.stamps = True

KN = "standalone__glu_gated_bilinear__prompt_kernel"
NW = args.nw; NP = 10 - NW; NXB = args.nxb
HFS = NW * 8192; PB = 2 * HFS; PWS = NP * 4096; LDS = PB + 4 * PWS
assert LDS == 163840 and NP >= 3
FBASE = 0x1000000; STAMP_OFF = 0x8000000; FS = 1024
HM, HQ, HS, HP = 458752, 114688, 57344, 8192
LA = args.la; NBUF = 8; NM = 512

sX, sG, sU, sD, sH, sO, sB = 8, 12, 16, 20, 24, 28, 32
s_w, s_mb, s_fb, s_m64, s_n64 = 36, 37, 38, 39, 40
s_xoff, s_woff, s_doff = 41, 42, 43
s_mP, s_mW = 44, 45
s_t0, s_t1, s_t2, s_t3 = 46, 47, 48, 49
s_hst, s_spin, s_hld, s_flag = 50, 51, 52, 53
s_oadr, s_xcd, s_col, s_c = 54, 55, 56, 57
s_a, s_b = 58, 59
s_st = 60
s_rh, s_rd = 88, 95
s_kr = 6
vX, vW, vD = 1, 5, 9
vRW, vRX, vRD, vH = 13, 15, 17, 21
vL16, vFl, vMk, vT, vT2, vP1, vP2 = 25, 26, 27, 28, 29, 30, 31
vRD2 = 1
vTR, vTW, vTO = 5, 8, 13
WBUF = 32
ACC0, ACC1 = 64, 128
ACC2 = ACC0
HB = 128
EPI = 240
NXK = args.nxk
NREG = 3 + (256 - 32*NXK)//16

class G:
    def __init__(s): s.L = []; s.lg = []; s.vm = []
    def e(s, t): s.L.append("    " + t)
    def lab(s, t): s.L.append(t + ":")
    def ds(s, t, tag):
        if len(s.lg) >= 14:
            s.e("s_waitcnt lgkmcnt(12)"); s.lg = s.lg[-12:]
        s.e(t); s.lg.append(tag)
    def vmem(s, t, tag): s.e(t); s.vm.append(tag); assert len(s.vm) <= 63, "vm overflow"
    def need_lg(s, tags):
        idx = max((i for i, t in enumerate(s.lg) if t in tags), default=-1)
        if idx >= 0:
            s.e(f"s_waitcnt lgkmcnt({len(s.lg)-1-idx})"); s.lg = s.lg[idx+1:]
    def need_vm(s, tags):
        idx = max((i for i, t in enumerate(s.vm) if t in tags), default=-1)
        if idx >= 0:
            s.e(f"s_waitcnt vmcnt({len(s.vm)-1-idx})"); s.vm = s.vm[idx+1:]
    def stamp(s, k, force=False):
        if args.stepstamps and 4 <= k <= 11 and not force: return
        if args.stamps: s.e(("s_memtime" if args.cycstamps else "s_memrealtime") + f" s[{s_st+2*k}:{s_st+2*k+1}]")
g = G(); e = g.e
def vr(b, n=4): return f"v[{b}:{b+n-1}]"
def ar(b, n=4): return f"a[{b}:{b+n-1}]"
def sr(b, n=4): return f"s[{b}:{b+n-1}]"
MF = "v_mfma_f32_16x16x32_bf16"

order = [int(c) for c in args.order]
assert len(order) == 16 and sum(order) == 8
steps = []; cnt = [0, 0]
for s_ in order: steps.append((s_, cnt[s_])); cnt[s_] += 1
first_k = {}
for n, (s_, k) in enumerate(steps): first_k.setdefault(k, n)
last_k = {k: max(n for n, (s_, kk) in enumerate(steps) if kk == k) for k in range(8)}
for k in range(8 - NXK): assert last_k[k] < first_k[k+NXK] - 1, "x register reuse"
uses = []
mseq = []
nm = 16 - args.merge
for n in range(nm):
    for T in range(2):
        for c in range(4):
            uses.append((n, T, c)); mseq += [(len(uses)-1, mt) for mt in range(4)]
reg_ = [(n, T, c) for n in range(nm, 16) for T in range(2) for c in range(4)]
for n in range(nm, 16): assert steps[n][0] == 1
b0 = len(uses)
for u in reg_: uses.append(u)
mseq += [(i, mt) for mt in range(4) for i in range(b0, len(uses))]
assert len(mseq) == NM and len(reg_) <= 24
NU = len(uses)
def accr(acc, c, mt): return acc + (c*4 + mt)*4
wbuf = {}; wneed = {}
nring = NU - max(0, len(reg_) - 8) if len(reg_) > 16 else b0
for i_ in range(NU):
    if i_ < nring: wbuf[i_] = WBUF + (i_ % NBUF)*4
    else:
        q_ = i_ - nring; wbuf[i_] = accr(ACC0, q_ % 4, q_ // 4); wneed[i_] = q_ // 4
first_use = {}
for j_, (i_, mt_) in enumerate(mseq): first_use.setdefault(i_, j_)
last_use = {i_: j_ for j_, (i_, mt_) in enumerate(mseq)}
rsched = {}; rpos = {}
for i_ in range(NU):
    p_ = first_use[i_] - LA
    if i_ >= b0: p_ = first_use[b0] - LA - args.early + ((i_ - b0)*(len(reg_) + args.early))//len(reg_)
    if NBUF <= i_ < nring: p_ = max(p_, last_use[i_ - NBUF] + 1)
    gap = first_use.get(i_+1, 9999) - first_use[i_]
    p2 = p_ + (2 if gap >= 4 else (1 if args.early >= len(reg_)//2 else 0))
    assert p2 <= first_use[i_] - 5, ("w read late", i_)
    rsched.setdefault(p_, []).append((i_, 0)); rsched.setdefault(p2, []).append((i_, 1)); rpos[i_] = p_
first_u = {n: min(i for i, u in enumerate(uses) if u[0] == n) for n in range(16)}
last_u = {n: max(i for i, u in enumerate(uses) if u[0] == n) for n in range(16)}
bpos = {n: rpos[first_u[n]] - 1 for n in range(16)}
START = -LA
def done_at(s_, mt): return max(j for j, (i, m_) in enumerate(mseq) if m_ == mt and steps[uses[i][0]][0] == s_)
busy = sorted({steps[uses[i][0]][1] % NXK for j_, (i, mt) in enumerate(mseq) if j_ >= min(args.chkA_at, NM - 1) - 4})
slots_order = [s_ for s_ in range(NXK) if s_ not in busy] + busy
xregs = [32*s_ + 4*q for s_ in slots_order for q in range(8)]
hreg = xregs[:28]
NFREE = 8*(NXK - len(busy))
spare16 = xregs[28:]
dorder = [int(x) for x in args.dorder.split(",")]
assert sorted(dorder) == list(range(14))
ahomes = [("a", 32*NXK + 16*j) for j in range(NREG - 3)]
phomes = []
for j in range(len(spare16)//4):
    grp = spare16[4*j:4*j+4]
    assert grp == [grp[0] + 4*q for q in range(4)]
    phomes.append(("a", grp[0]))
homes = {j: ("v", 192 + 16*j) for j in range(3)}
early_ok = {0, 1, 2}
reuse = {}; rq = []
for j in dorder:
    if j < 3: continue
    if ahomes: homes[j] = ahomes.pop(0); early_ok.add(j)
    elif phomes: homes[j] = phomes.pop(0)
    else: rq.append(j)
for q_, j in enumerate(sorted(rq)):
    assert j >= 7 and 3 + q_ in homes
    reuse[j] = 3 + q_; homes[j] = homes[3 + q_]
assert args.hpre <= NFREE or args.chkA_at >= NM

e("s_cmp_ge_u32 s2, 256")
e("s_cbranch_scc1 L_end")
if args.stamps:
    for i in range(1, 14): e(f"s_mov_b64 s[{s_st+2*i}:{s_st+2*i+1}], 0")
g.stamp(0)
e("s_load_dwordx8 s[88:95], s[0:1], 0")
e("s_load_dwordx4 s[96:99], s[0:1], 32")
e("s_load_dwordx2 s[100:101], s[0:1], 48")
if not args.noprefetch:
    e("s_getpc_b64 s[4:5]")
    e("s_and_b32 s4, s4, 0xffffff00")
    e(f"s_mov_b32 s6, L_codeend-{KN}")
    e("s_mov_b32 s7, 0x20000")
    e("v_lshlrev_b32 v30, 7, v0")
    g.vmem("buffer_load_dword v31, v30, s[4:7], 0 offen", "pf")
e("v_lshrrev_b32 v30, 6, v0")
e("v_and_b32 v0, 63, v0")
e(f"v_readfirstlane_b32 s{s_w}, v30")
e(f"s_and_b32 s{s_xcd}, s2, 7")
e(f"s_bfe_u32 s{s_c}, s2, 0x20003")
e(f"s_lshr_b32 s{s_col}, s2, 5")
e(f"s_lshl_b32 s{s_m64}, s{s_xcd}, 2")
e(f"s_add_u32 s{s_m64}, s{s_m64}, s{s_c}")
e(f"s_lshr_b32 s{s_mb}, s{s_xcd}, 1")
e(f"s_lshl_b32 s{s_mb}, s{s_mb}, 2")
e(f"s_add_u32 s{s_mb}, s{s_mb}, s{s_c}")
e(f"s_and_b32 s{s_fb}, s{s_xcd}, 1")
e(f"s_mul_i32 s{s_fb}, s{s_fb}, 7")
e(f"s_add_u32 s{s_fb}, s{s_fb}, s{s_col}")
e(f"s_sub_u32 s{s_fb}, s{s_fb}, 1")
e(f"s_xor_b32 s{s_n64}, s{s_col}, 3")
e("v_lshrrev_b32 v240, 3, v0")
e("v_and_b32 v241, 7, v0")
e("v_lshrrev_b32 v242, 4, v0")
e(f"s_lshl_b32 s{s_a}, s{s_w}, 15")
e("v_xor_b32 v243, v241, v242")
e("v_lshlrev_b32 v243, 4, v243")
e(f"v_lshl_add_u32 v{vX}, v240, 10, v243")
e(f"v_add_u32 v{vX}, s{s_a}, v{vX}")
e(f"v_xor_b32 v{vX+1}, 64, v{vX}")
e(f"v_add_u32 v{vX+1}, {7*1024}, v{vX+1}")
e(f"v_add_u32 v{vX+2}, {14*1024}, v{vX}")
e(f"v_add_u32 v{vX+3}, {14*1024}, v{vX+1}")
e(f"s_lshr_b32 s{s_a}, s{s_w}, 1")
e(f"s_lshl_b32 s{s_a}, s{s_a}, 5")
e(f"s_and_b32 s{s_b}, s{s_w}, 1")
e(f"s_lshl_b32 s{s_t0}, s{s_b}, 3")
e(f"s_add_u32 s{s_a}, s{s_a}, s{s_t0}")
e(f"s_mul_i32 s{s_a}, s{s_a}, 3584")
e(f"s_lshl_b32 s{s_b}, s{s_b}, 6")
e(f"v_mul_u32_u24 v{vW}, 3584, v240")
e("v_and_b32 v244, 1, v242")
e("v_lshlrev_b32 v245, 4, v241")
e("v_lshlrev_b32 v246, 5, v244")
e("v_xor_b32 v246, v245, v246")
e(f"v_xor_b32 v246, s{s_b}, v246")
e(f"v_add3_u32 v{vW}, v{vW}, v246, s{s_a}")
e(f"v_add_u32 v{vW+2}, {16*3584-2048}, v{vW}")
e(f"s_lshr_b32 s{s_a}, s{s_w}, 1")
e(f"s_lshl_b32 s{s_a}, s{s_a}, 17")
e(f"s_and_b32 s{s_b}, s{s_w}, 1")
e(f"s_lshl_b32 s{s_b}, s{s_b}, 15")
e(f"s_add_u32 s{s_a}, s{s_a}, s{s_b}")
e("v_lshlrev_b32 v246, 5, v242")
e("v_xor_b32 v246, v245, v246")
e(f"v_lshl_add_u32 v{vD}, v240, 10, v246")
e(f"v_add_u32 v{vD}, s{s_a}, v{vD}")
for i in range(1, 4): e(f"v_add_u32 v{vD+i}, {7*1024*i}, v{vD}")
e(f"s_mul_i32 s{s_mP}, s{s_w}, {PWS}")
e(f"s_add_u32 s{s_mP}, s{s_mP}, {PB}")
e(f"s_and_b32 s{s_b}, s{s_w}, 1")
e(f"s_mul_i32 s{s_mW}, s{s_b}, {HFS}")
e(f"s_lshr_b32 s{s_a}, s{s_w}, 1")
e(f"s_lshl_b32 s{s_a}, s{s_a}, 12")
e(f"s_add_u32 s{s_mW}, s{s_mW}, s{s_a}")
if args.krot == 2:
    e(f"s_lshr_b32 s{s_kr}, s{s_xcd}, 1")
    e(f"s_xor_b32 s{s_kr}, s{s_kr}, s{s_xcd}")
    e(f"s_and_b32 s{s_kr}, s{s_kr}, 1")
    e(f"s_lshl_b32 s{s_kr}, s{s_kr}, 9")
elif args.krot == 3:
    e(f"s_and_b32 s{s_kr}, s{s_xcd}, 6")
    e(f"s_and_b32 s{s_a}, s{s_xcd}, 1")
    e(f"s_lshl_b32 s{s_a}, s{s_a}, 2")
    e(f"s_add_u32 s{s_kr}, s{s_kr}, s{s_a}")
    e(f"s_and_b32 s{s_a}, s{s_c}, 1")
    e(f"s_add_u32 s{s_kr}, s{s_kr}, s{s_a}")
    e(f"s_lshl_b32 s{s_kr}, s{s_kr}, 7")
elif args.krot:
    e(f"s_and_b32 s{s_kr}, s{s_xcd}, 6")
    e(f"s_and_b32 s{s_a}, s{s_xcd}, 1")
    e(f"s_lshl_b32 s{s_a}, s{s_a}, 2")
    e(f"s_add_u32 s{s_kr}, s{s_kr}, s{s_a}")
    e(f"s_lshl_b32 s{s_kr}, s{s_kr}, 7")
e(f"s_lshl_b32 s{s_xoff}, s{s_mb}, 17")
e(f"s_lshl_b32 s{s_woff}, s{s_fb}, 8")
e(f"s_lshl_b32 s{s_doff}, s{s_n64}, 7")
for b, n in ((sX, 2048*1024), (sG, 512*3584), (sU, 512*3584+1024), (sD, 1792*1024), (sH, 0x10000000), (sO, 2048*1024), (sB, 256)):
    e(f"s_mov_b32 s{b+2}, {n}")
    e(f"s_mov_b32 s{b+3}, 0x20000")
e("s_waitcnt lgkmcnt(0)")
e(f"s_mov_b64 s[{sX}:{sX+1}], s[88:89]")
e(f"s_mov_b64 s[{sG}:{sG+1}], s[90:91]")
e(f"s_sub_u32 s{sU}, s92, 1024")
e(f"s_subb_u32 s{sU+1}, s93, 0")
e(f"s_mov_b64 s[{sD}:{sD+1}], s[94:95]")
e(f"s_mov_b64 s[{sO}:{sO+1}], s[96:97]")
e(f"s_mov_b64 s[{sB}:{sB+1}], s[98:99]")
e(f"s_mov_b64 s[{sH}:{sH+1}], s[100:101]")
g.stamp(1)

def dma_item(kind, n, where):
    m0 = (s_mP, where[1] * 4096) if where[0] == 'P' else (s_mW, where[1] * 8192)
    ops = []
    if kind == 'X': so = (s_xoff, n * 128); srd = [sX]*4; vb = [vX, vX+1, vX+2, vX+3]
    elif kind == 'W': so = (s_woff, steps[n][1] * 64 * 3584 + steps[n][0] * 128); srd = [sG, sU, sG, sU]; vb = [vW, vW, vW+2, vW+2]
    else: so = (s_rd + n % 7, 64 * (n // 7) * 1024); srd = [sD]*4; vb = [vD, vD+1, vD+2, vD+3]
    sc = []
    if args.krot and kind != 'D':
        kb = n if kind == 'X' else steps[n][1]
        sc += [f"s_add_u32 s{s_t0}, s{s_kr}, {kb*128}", f"s_and_b32 s{s_t0}, s{s_t0}, 1023"]
        if kind == 'W':
            sc.append(f"s_mul_i32 s{s_t0}, s{s_t0}, 1792")
            if steps[n][0]: sc.append(f"s_add_u32 s{s_t0}, s{s_t0}, 128")
        sc += [f"s_add_u32 m0, s{m0[0]}, {m0[1]}", f"s_add_u32 s{s_t0}, s{s_t0}, s{so[0]}"]
    else:
        sc += [f"s_add_u32 m0, s{m0[0]}, {m0[1]}", f"s_add_u32 s{s_t0}, s{so[0]}, {so[1]}"]
    for t in sc: ops.append(('s', lambda t=t: e(t)))
    for i in range(4):
        off = f" offset:{1024*i}" if i else ""
        ops.append(('v', lambda i=i, off=off: g.vmem(f"buffer_load_dwordx4 v{vb[i]}, {sr(srd[i])}, s{s_t0} offen{off} lds", (kind, n))))
    return ops
def dma4(kind, n, where):
    ops = dma_item(kind, n, where); pre = [f for k, f in ops if k == 's']; ld = [f for k, f in ops if k == 'v']
    return [lambda: ([f() for f in pre], ld[0]())] + ld[1:]

def h_pattern(vdst, s_idx):
    e(f"v_lshlrev_b32 v{vdst}, 4, v0")
    if args.nos3: return
    e(f"s_and_b32 s{s_idx}, s{s_idx}, 3")
    e(f"s_cmp_eq_u32 s{s_idx}, 3")
    e(f"s_cselect_b32 s{s_idx}, 4, s{s_idx}")
    e(f"s_lshl_b32 s{s_idx}, s{s_idx}, 7")
    e(f"s_add_u32 s{s_idx}, s{s_idx}, {4096 - 384}")
    e("s_mov_b32 exec_lo, 0xff000000")
    e("s_mov_b32 exec_hi, 0")
    e(f"v_add_u32 v{vdst}, s{s_idx}, v{vdst}")
    e("s_mov_b64 exec, -1")

def late_addr_setup():
    e("v_lshrrev_b32 v240, 5, v0")
    e("v_bfe_u32 v241, v0, 4, 1")
    e("v_bfe_u32 v242, v0, 2, 2")
    e("v_and_b32 v243, 3, v0")
    e("v_bfe_u32 v244, v0, 3, 1")
    e("v_lshlrev_b32 v243, 3, v243")
    e("v_lshl_add_u32 v243, v242, 7, v243")
    e("v_lshl_or_b32 v245, v241, 1, v244")
    e("v_lshl_add_u32 v243, v245, 5, v243")
    e(f"v_mul_u32_u24 v{vRW}, {HFS}, v241")
    e(f"v_lshl_add_u32 v{vRW}, v240, 11, v{vRW}")
    e(f"v_add_u32 v{vRW}, v{vRW}, v243")
    e(f"s_and_b32 s{s_a}, s{s_w}, 1")
    e(f"s_lshl_b32 s{s_a}, s{s_a}, 6")
    e(f"v_xor_b32 v{vRW}, s{s_a}, v{vRW}")
    e(f"v_xor_b32 v{vRW+1}, 32, v{vRW}")
    e("v_lshrrev_b32 v246, 4, v0")
    e("v_lshl_add_u32 v245, v246, 9, v243")
    e(f"v_add_u32 v{vRD}, s{s_mP}, v245")
    for nt in range(1, 4): e(f"v_xor_b32 v{vRD+nt}, {32*nt}, v{vRD}")
    e("v_and_b32 v245, 15, v0")
    e("v_bfe_u32 v247, v0, 1, 3")
    e("v_xor_b32 v247, v247, v246")
    e("v_lshlrev_b32 v247, 4, v247")
    e("v_lshl_add_u32 v245, v245, 7, v247")
    e(f"s_lshr_b32 s{s_a}, s{s_w}, 1")
    e(f"s_mul_i32 s{s_a}, s{s_a}, {2*PWS}")
    e(f"s_add_u32 s{s_a}, s{s_a}, {PB}")
    e(f"v_add_u32 v{vRX}, s{s_a}, v245")
    e(f"v_xor_b32 v{vRX+1}, 64, v{vRX}")
    e(f"s_add_u32 s{s_a}, s{s_m64}, s{s_w}")
    h_pattern(vH, s_a)
    e(f"s_lshl_b32 s{s_a}, s{s_w}, 10")
    e(f"v_add_u32 v{vH}, s{s_a}, v{vH}")
    for lam in range(1, 4): e(f"v_xor_b32 v{vH+lam}, {1024*lam}, v{vH}")
    e(f"s_mul_i32 s{s_hld}, s{s_m64}, {HM}")
    e(f"s_mul_i32 s{s_a}, s{s_w}, {HQ}")
    e(f"s_add_u32 s{s_hld}, s{s_hld}, s{s_a}")
    e(f"v_add_u32 v{vFl}, 5, v0")
    e(f"v_lshrrev_b32 v{vFl}, 3, v{vFl}")
    e(f"v_add_u32 v{vFl}, v{vFl}, v0")
    e(f"v_min_u32 v{vFl}, 7, v{vFl}")
    e(f"v_lshlrev_b32 v{vFl}, 7, v{vFl}")
    e(f"s_lshl_b32 s{s_a}, s{s_m64}, 13")
    e(f"s_lshl_b32 s{s_b}, s{s_w}, 11")
    e(f"s_add_u32 s{s_a}, s{s_a}, s{s_b}")
    e(f"s_add_u32 s{s_a}, s{s_a}, {FBASE}")
    e(f"v_add_u32 v{vFl}, s{s_a}, v{vFl}")
    e(f"s_lshl_b32 s{s_a}, s{s_c}, 1")
    e(f"s_add_u32 s{s_a}, s{s_a}, s{s_col}")
    e(f"s_sub_u32 s{s_b}, s{s_a}, 7")
    e(f"s_cmp_ge_u32 s{s_a}, 7")
    e(f"s_cselect_b32 s{s_a}, s{s_b}, s{s_a}")
    for jj in range(7):
        e(f"s_lshl_b32 s{s_b}, s{s_a}, 13")
        e(f"s_add_u32 s{s_rh+jj}, s{s_b}, s{s_hld}")
        e(f"s_lshl_b32 s{s_b}, s{s_a}, 18")
        e(f"s_add_u32 s{s_rd+jj}, s{s_b}, s{s_doff}")
        if jj < 6:
            e(f"s_add_u32 s{s_a}, s{s_a}, 1")
            e(f"s_cmp_eq_u32 s{s_a}, 7")
            e(f"s_cselect_b32 s{s_a}, 0, s{s_a}")
    e(f"s_lshl_b32 s{s_a}, s{s_m64}, 16")
    e(f"s_lshl_b32 s{s_b}, s{s_w}, 14")
    e(f"s_add_u32 s{s_a}, s{s_a}, s{s_b}")
    e(f"s_add_u32 s{s_oadr}, s{s_a}, s{s_doff}")

def rd2_setup():
    e(f"s_sub_u32 s{s_a}, s{s_mW}, s{s_mP}")
    for nt in range(4): e(f"v_add_u32 v{vRD2+nt}, s{s_a}, v{vRD+nt}")

def d_reads(item, where):
    dfile, dstbase = homes[item]
    ops = []
    for nt in range(4):
        for p in range(2):
            def f(nt=nt, p=p):
                if where[0] == 'P': va = vRD + nt; off = where[1]*4096
                else: va = vRD2 + nt; off = where[1]*8192
                off += p*2048
                r = dstbase + nt*4 + 2*p
                g.ds(f"ds_read_b64_tr_b16 {dfile}[{r}:{r+1}], v{va} offset:{off}", ('Dr', item))
            ops.append(f)
    return ops

def pmask(vaddr): return 3 if vaddr == vMk else 0x7f
def poll(vdst, vaddr, srd, off, tag):
    o = f" offset:{off}" if off else ""
    e(f"s_mov_b64 exec, {pmask(vaddr)}")
    if args.pollmode == "atomic" and vaddr != vMk:
        e(f"v_mov_b32 v{vdst}, 0")
        g.vmem(f"buffer_atomic_add v{vdst}, v{vaddr}, {sr(srd)}, 0 offen{o} sc0 sc1", tag)
    else:
        g.vmem(f"buffer_load_dword v{vdst}, v{vaddr}, {sr(srd)}, 0 offen{o} sc1", tag)
    e("s_mov_b64 exec, -1")
def test(vres, vaddr, target):
    e(f"v_cmp_eq_u32 vcc, 0, v{vres}")
    e(f"s_and_b32 s{s_t1}, vcc_lo, {pmask(vaddr)}")
    e(f"s_cbranch_scc0 {target}")
def spin(label, vaddr, srd, off, sleep=0):
    e(f"s_mov_b32 s{s_spin}, 0x40000")
    g.lab(label)
    poll(vT, vaddr, srd, off, 'sp')
    e("s_waitcnt vmcnt(0)")
    test(vT, vaddr, f"{label}_ok")
    if sleep: e(f"s_sleep {sleep}")
    e(f"s_sub_u32 s{s_spin}, s{s_spin}, 1")
    e(f"s_cmp_lg_u32 s{s_spin}, 0")
    e(f"s_cbranch_scc1 {label}")
    g.lab(label + "_ok")
    g.vm = []
def check_or_spin(label, vres, tag, vaddr, srd, off, pre=None):
    g.need_vm([tag])
    test(vres, vaddr, f"{label}_ok")
    save = list(g.vm)
    if pre: pre()
    spin(label, vaddr, srd, off)
    g.vm = save

def epi_ops(acc, s, mt, packed):
    ops = []; d = EPI + 4*mt
    for ql in range(2):
        a = accr(acc, 2*ql, mt); b = accr(acc, 2*ql + 1, mt)
        if packed:
            for i in range(2): ops.append(lambda a=a, b=b, i=i: e(f"v_pk_mul_f32 v[{a+2*i}:{a+2*i+1}], v[{a+2*i}:{a+2*i+1}], v[{b+2*i}:{b+2*i+1}]"))
        else:
            for i in range(4): ops.append(lambda a=a, b=b, i=i: e(f"v_mul_f32 v{a+i}, v{a+i}, v{b+i}"))
    for ql in range(2):
        a = accr(acc, 2*ql, mt)
        for i in range(2): ops.append(lambda a=a, i=i, ql=ql: e(f"v_cvt_pk_bf16_f32 v{d+2*ql+i}, v{a+2*i}, v{a+2*i+1}"))
    if mt == 0 and s == 1: ops.append(lambda: e(f"s_add_u32 s{s_hst}, s{s_hst}, {HS}"))
    off = f" offset:{1024*mt}" if mt else ""
    ops.append(lambda: g.vmem(f"buffer_store_dwordx4 {vr(d)}, v{vL16}, {sr(sH)}, s{s_hst} offen{off} sc1", ('hs', s)))
    return ops

def flag_store(s):
    e(f"v_mov_b32 v{vT2}, s{s_flag}")
    e(f"v_mov_b32 v{vT}, 1")
    e("s_mov_b64 exec, 1")
    g.vmem(f"buffer_store_dword v{vT}, v{vT2}, {sr(sH)}, 0 offen offset:{FS*s} sc1", ('fl', s))
    e("s_mov_b64 exec, -1")

def hidx(i):
    s, r_ = divmod(i, 28)
    if s == 0: jj, lam = divmod(r_, 4)
    else: jj, lam = r_ % 7, (r_ // 7 + 1) % 4
    return s, jj, lam, r_
def h_load(i):
    s, jj, lam, r_ = hidx(i)
    dst = ar(hreg[r_]) if s == 0 else vr(HB + r_*4)
    if i == 28:
        for q in range(7): e(f"s_add_u32 s{s_rh+q}, s{s_rh+q}, {HS}")
    g.vmem(f"buffer_load_dwordx4 {dst}, v{vH+lam}, {sr(sH)}, s{s_rh+jj} offen sc1", ('h', i))
def mf(i, nt):
    s, jj, lam, r_ = hidx(i)
    g.need_vm([('h', i)])
    g.need_lg([('Dr', s*7 + jj)])
    f_, base = homes[s*7 + jj]
    r = base + nt*4
    acc = ACC2 + (lam*4 + nt)*4
    c = "0" if i < 4 else vr(acc)
    h = ar(hreg[r_]) if s == 0 else vr(HB + r_*4)
    e(f"{MF} {vr(acc)}, {f_}[{r}:{r+3}], {h}, {c}")
def tail_setup():
    e(f"v_lshlrev_b32 v{vL16}, 4, v0")
    for lam in range(1, 4):
        e(f"s_xor_b32 s{s_a}, s{s_w}, {lam}")
        e(f"s_mul_i32 s{s_a}, s{s_a}, {PWS}")
        e(f"s_add_u32 s{s_a}, s{s_a}, {PB + (lam-1)*4096}")
        e(f"v_add_u32 v{vTR+lam-1}, s{s_a}, v{vL16}")
    e(f"v_add_u32 v{vTW}, s{s_mP}, v{vL16}")
    e(f"v_and_b32 v{vTO}, 15, v0")
    e(f"v_lshlrev_b32 v{vTO}, 10, v{vTO}")
    e(f"v_bfe_u32 v{vTO+1}, v0, 4, 1")
    e(f"v_lshl_add_u32 v{vTO}, v{vTO+1}, 5, v{vTO}")
    e(f"v_lshrrev_b32 v{vTO+1}, 5, v0")
    e(f"v_lshl_add_u32 v{vTO}, v{vTO+1}, 4, v{vTO}")
HD = args.hdepth

e(f"s_cmp_eq_u32 s{s_col}, 0")
e("s_cbranch_scc1 L_spare")

mand = []
for n in range(16):
    for k in range(8):
        if first_k[k] == n: mand.append((n, 'X', k, ('P', k % NXB)))
    mand.append((n, 'W', n, ('W', n % NW)))
for (_, kind, n, where) in mand[:2]:
    for f in dma4(kind, n, where): f()
late_addr_setup()
e(f"s_lshr_b32 s{s_a}, s{s_w}, 1")
e(f"s_lshl_b32 s{s_b}, s{s_mb}, 1")
e(f"s_add_u32 s{s_a}, s{s_a}, s{s_b}")
e(f"s_and_b32 s{s_b}, s{s_fb}, 1")
e(f"s_lshl_b32 s{s_b}, s{s_b}, 1")
e(f"s_and_b32 s{s_t1}, s{s_w}, 1")
e(f"s_add_u32 s{s_b}, s{s_b}, s{s_t1}")
e(f"s_mul_i32 s{s_hst}, s{s_a}, {HM}")
e(f"s_mul_i32 s{s_t1}, s{s_b}, {HQ}")
e(f"s_add_u32 s{s_hst}, s{s_hst}, s{s_t1}")
e(f"s_lshr_b32 s{s_t2}, s{s_fb}, 1")
e(f"s_lshl_b32 s{s_t1}, s{s_t2}, 13")
e(f"s_add_u32 s{s_hst}, s{s_hst}, s{s_t1}")
e(f"s_add_u32 s{s_t1}, s{s_a}, s{s_b}")
h_pattern(vL16, s_t1)
e(f"s_cmp_ge_u32 s{s_t2}, 3")
e(f"s_addc_u32 s{s_t2}, s{s_t2}, 0")
e(f"s_lshl_b32 s{s_t2}, s{s_t2}, 7")
e(f"s_lshl_b32 s{s_b}, s{s_b}, 11")
e(f"s_add_u32 s{s_b}, s{s_b}, s{s_t2}")
e(f"s_lshl_b32 s{s_t1}, s{s_a}, 13")
e(f"s_add_u32 s{s_b}, s{s_b}, s{s_t1}")
e(f"s_add_u32 s{s_flag}, s{s_b}, {FBASE}")
e(f"s_lshl_b32 s{s_a}, s{s_a}, 2")
e(f"s_lshl_b32 s{s_b}, s{s_m64}, 2")
e(f"v_mov_b32 v{vMk}, s{s_a}")
e(f"v_mov_b32 v240, s{s_b}")
e("v_cmp_lt_u32 vcc, 0, v0")
e("s_nop 1")
e(f"v_cndmask_b32 v{vMk}, v{vMk}, v240, vcc")

def phase2A(R, stay, dplace, lateops, late, nh, extra):
    dmove = {}; slot_ = 0
    plan = {}; q = [('h', i) for i in range(nh, 28)]; lo = list(lateops); it = args.quiet if R != "S" else 0
    late_done = {}
    def takeD(c):
        c.append(('d', lo.pop(0)))
        if len(lo) % 4 == 0: late_done[late[len(late) - 1 - len(lo)//4]] = it
    while q or lo:
        c = []
        behind = q and q[0][1] - it < 8
        if q: c.append(q.pop(0))
        while len(c) < args.per and (q or lo):
            if q and (behind or not lo):
                if not behind and not lo and it >= 4 + args.quiet: break
                c.append(q.pop(0))
            else: takeD(c)
        for o in c:
            if o[0] == 'h': assert o[1] > it, ("h load late", o, it)
        plan[it] = c; it += 1
    for j in stay:
        p_ = slot_ if j not in reuse else max(4*reuse[j] + 3 + 2, slot_)
        if j in late_done: p_ = max(p_, late_done[j] + 8)
        p_ = min(p_, 26)
        dmove.setdefault(p_, []).append(j); slot_ = p_ + 2
        assert p_ + 1 < min(i for i in range(56) if hidx(i)[0]*7 + hidx(i)[1] == j), ("D move too late", j, p_)
    CB = args.chkB_i
    assert it <= CB, ("issue plan too long", it)
    pend = []
    def vm_(o):
        if o[0] == 'h': h_load(o[1])
        else: o[1]()
    def body(i, loads):
        for j in dmove.get(i, []):
            ops = d_reads(j, dplace[j])
            pend.append(lambda j=j, f=ops[0]: (g.need_vm([('D', j)]), f()))
            pend.extend(ops[1:])
        side = [lambda o=o: vm_(o) for o in loads] + list(extra.get(i, []))
        for nt in range(4):
            mf(i, nt)
            if side: side.pop(0)()
            elif pend: pend.pop(0)()
            if pend: pend.pop(0)()
        for f in side: f()
    def flush():
        while pend: pend.pop(0)()
        g.need_lg(g.lg[:])
    for i in range(CB):
        body(i, plan.get(i, []))
        if i == args.pollB: poll(vP2, vFl, sH, FS, 'pb')
    if args.st2: g.stamp(1)
    g.need_vm(['pb'])
    if args.st2: g.stamp(2)
    test(vP2, vFl, f"L_fastB{R}")
    sv = list(g.vm), list(g.lg), list(pend)
    poll(vP2, vFl, sH, FS, 'pb2')
    for i in range(CB, 28): body(i, [])
    flush()
    g.need_vm(['pb2'])
    test(vP2, vFl, f"L_pb{R}_ok")
    pr = [vT, vT2, vP1, vP2][:args.npoll]
    e(f"s_mov_b32 s{s_spin}, 0x20000")
    for r_ in pr[:-1]:
        poll(r_, vFl, sH, FS, 'x'); e("s_sleep 1")
    g.lab(f"L_pb{R}")
    for k_ in range(len(pr)):
        poll(pr[k_ - 1], vFl, sH, FS, 'x')
        e(f"s_waitcnt vmcnt({len(pr) - 1})")
        test(pr[k_], vFl, f"L_pb{R}_ok")
    e(f"s_sub_u32 s{s_spin}, s{s_spin}, 1")
    e(f"s_cmp_lg_u32 s{s_spin}, 0")
    e(f"s_cbranch_scc1 L_pb{R}")
    g.lab(f"L_pb{R}_ok")
    g.vm = []
    g.stamp(13)
    for i in range(28, 28 + HD): h_load(i)
    e("s_branch L_B")
    g.lab(f"L_fastB{R}")
    g.vm, g.lg = sv[0], sv[1]; pend[:] = sv[2]
    q = list(range(28, 28 + HD)); per = -(-HD // (28 - CB))
    for i in range(CB, 28):
        body(i, [('h', q.pop(0)) for _ in range(min(per, len(q)))])
    assert not q
    flush()
    assert [t for t in g.vm if t[0] != 'h' or t[1] < 28] == [], g.vm

def main_path(R):
    issued = {m[1:3] for m in mand[:2]}
    rest = list(mand[2:])
    for (_, kind, n, where) in rest[:args.pre - 2]:
        assert (n < NW if kind == 'W' else n < NXB)
        for f in dma4(kind, n, where): f()
        issued.add((kind, n))
    rest = rest[args.pre - 2:]
    g.stamp(2)
    rates = [int(x) for x in args.rates.split(",")]
    slotc = {}
    for n in range(16):
        for i in range(rates[n]): slotc[32*n + START + (32*i)//rates[n]] = 1
    st = dict(credit=0, dnext=0, cur=None, nh=0, j=START)
    dma_q = []; lds_q = []; epi_q = []
    wfree = {n: n < NW for n in range(16)}; xfree = {k: k < NXB for k in range(8)}
    dblocks = [('P', b_) for b_ in range(NXB, NP)]
    pending = []; dplace = {}; dland = []; dread_done = []; log = []; xdone = set(); xrel = []; inreg = []
    epiA_done = set()
    for mt in range(4):
        ops_ = epi_ops(ACC0, 0, mt, False)
        ops_[-1] = (lambda f=ops_[-1], mt=mt: (f(), epiA_done.add(mt)))
        for f in ops_: epi_q.append((done_at(0, 3) + 6, 'A', f))
    for mt in range(3):
        for f in epi_ops(ACC1, 1, mt, False): epi_q.append((done_at(1, mt) + 8, 'B', f))
    bar_at = {p: n for n, p in bpos.items()}
    def release(kind, i):
        if kind == 'W':
            if i + NW < 16: wfree[i + NW] = True
            else: dblocks.append(('W', i % NW))
        else:
            if i + NXB < 8: xfree[i + NXB] = True
            else: dblocks.append(('P', i % NXB))
        dblocks.sort(key=lambda b_: b_[0] != 'P')
    def barrier(n):
        tags = [('W', n)] + [('X', k) for k in range(8) if first_k[k] == n]
        assert all(t in issued for t in tags), (R, n)
        g.need_vm(tags)
        for k in xrel:
            assert all((k, T, mt) in xdone for T in range(2) for mt in range(4))
            g.need_lg([('x', k, 1, 3)])
            pending.append(('X', k))
        xrel.clear()
        e("s_barrier")
        for kind, i in pending: release(kind, i)
        pending.clear()
        for k in range(8):
            if first_k[k] == n:
                xrel.append(k)
                for T in range(2):
                    for mt in range(4):
                        def f(k=k, T=T, mt=mt):
                            r = ((k % NXK)*8 + T*4 + mt)*4
                            g.ds(f"ds_read_b128 {ar(r)}, v{vRX+T} offset:{(mt >> 1)*PWS + (mt & 1)*2048 + (k % NXB)*4096}", ('x', k, T, mt))
                            xdone.add((k, T, mt))
                        lds_q.append(('x', f))
                lds_q.sort(key=lambda o: o[0] != 'x')
    def wread(i, half):
        n, T, c = uses[i]
        b = wbuf[i] + 2*half
        if i in wneed: assert wneed[i] in epiA_done, ('acc0 not free', i, st['j'])
        off = (n % NW) * 8192 + T * 4096 + (c & 1) * 1024 + 512*half
        g.ds(f"ds_read_b64_tr_b16 v[{b}:{b+1}], v{vRW + (c >> 1)} offset:{off}", ('w', i))
    def pick(j):
        d = dorder[st['dnext']] if st['dnext'] < 14 else None
        can_d = d is not None and dblocks and j >= args.dstart
        for idx, (dl, kind, n, where) in enumerate(rest[:3]):
            ok = wfree[n] if kind == 'W' else xfree[n]
            lead = bpos[dl] - j
            extra = 16 if any(r_[0] == dl for r_ in rest[idx+1:idx+2]) else 0
            minl = max(args.minlead, args.latelead) if dl >= args.latefrom else args.minlead
            urgent = lead < minl + 16 + extra
            if ok and (urgent or not can_d):
                rest.pop(idx); log.append(f"{kind}{n}@{j}(-{lead})")
                assert lead > 20, ("late", R, kind, n, j)
                return kind, n, where
            if not ok and lead < 48: return None
            if ok: break
        if can_d:
            blk = dblocks.pop(0 if d in early_ok else -1); st['dnext'] += 1; dplace[d] = blk; log.append(f"D{d}@{j}")
            return 'D', d, blk
        return None
    barrier(0)
    g.stamp(3)
    for j in range(START, NM):
        n0 = len(g.L)
        if j >= 0:
            i, mt = mseq[j]
            n, T, c = uses[i]
            s_, k = steps[n]
            assert (k, T, mt) in xdone, ("x read late", j)
            g.need_lg([('w', i), ('x', k, T, mt)])
            acc = accr(ACC0 if s_ == 0 else ACC1, c, mt)
            cc = "0" if (k == 0 and T == 0) else vr(acc)
            e(f"{MF} {vr(acc)}, {vr(wbuf[i])}, {ar(((k % NXK)*8 + T*4 + mt)*4)}, {cc}")
            if i == last_u[n] and j == first_use[i]: pending.append(('W', n))
            if args.stepstamps and j % 64 == 63: g.stamp(4 + j // 64, True)
            nxt_wait = j + 1 < NM and first_use[mseq[j+1][0]] == j + 1
            n0 = len(g.L) - (1 if nxt_wait else 0)
        used = lambda: len(g.L) - n0
        for i_, h_ in rsched.get(j, []): wread(i_, h_)
        if j in bar_at and bar_at[j] > 0: barrier(bar_at[j])
        if j == args.pollA_at: poll(vP1, vFl, sH, 0, 'pa')
        if j == args.chkA_at:
            check_or_spin(f"L_pa{R}", vP1, 'pa', vFl, sH, 0)
            g.stamp(8)
        if j >= args.chkA_at and st['nh'] < args.hpre and not dma_q and (j - args.chkA_at) % 4 == 1:
            h_load(st['nh']); st['nh'] += 1
        if j == args.mkat: poll(vP1, vMk, sB, 0, 'mk')
        if j == args.flagA_at:
            assert not any(t_ == 'A' for _, t_, _ in epi_q)
            check_or_spin(f"L_mk{R}", vP1, 'mk', vMk, sB, 0)
            g.need_vm([('hs', 0)])
            flag_store(0)
            g.stamp(4)
        while dland and dland[0][0] <= j and not any(o[0] == 'd' for o in lds_q) and j < NM - 40:
            _, it = dland.pop(0)
            ops = d_reads(it, dplace[it]); inreg.append(it)
            lds_q.append(('d', lambda it=it, f=ops[0]: (g.need_vm([('D', it)]), f())))
            for f in ops[1:-1]: lds_q.append(('d', f))
            lds_q.append(('d', lambda it=it, f=ops[-1]: (f(), dread_done.append((st['j'] + 8, it)))))
        st['j'] = j
        while dread_done and dread_done[0][0] <= j:
            _, it = dread_done.pop(0)
            g.need_lg([('Dr', it)]); dblocks.insert(0, dplace[it])
        if j in slotc: st['credit'] = min(st['credit'] + 1, 2)
        if lds_q and lds_q[0][0] == 'x' and used() < args.cap and len(g.lg) < 13: lds_q.pop(0)[1]()
        if not dma_q and (st['credit'] or any(j + q_ in slotc for q_ in (1, 2, 3))) and j < min(args.chkA_at - 12, args.dstop):
            p_ = pick(j)
            if p_: dma_q = dma_item(*p_); st['cur'] = p_
        while dma_q and dma_q[0][0] == 's' and used() < args.cap: dma_q.pop(0)[1]()
        if dma_q and dma_q[0][0] == 'v' and st['credit'] and used() < args.cap and j < NM - 4:
            dma_q.pop(0)[1](); st['credit'] -= 1
            if not dma_q:
                issued.add(st['cur'][:2])
                if st['cur'][0] == 'D' and st['cur'][1] in early_ok: dland.append((j + (args.dlat if st['dnext'] <= 4 else args.dlat2), st['cur'][1]))
                if st['cur'][:2] == ('X', 7): rd2_setup()
        if lds_q and len(g.lg) < 13 and used() < args.cap and j % 2: lds_q.pop(0)[1]()
        while epi_q and epi_q[0][0] <= j and used() < args.ecap: epi_q.pop(0)[2]()
        while lds_q and len(g.lg) < 13 and used() < args.cap: lds_q.pop(0)[1]()
    g.stamp(5)
    assert not rest
    for _, f in lds_q: f()
    for _, _, f in epi_q: f()
    e("s_nop 7")
    for f in epi_ops(ACC1, 1, 3, True): f()
    g.stamp(6)
    g.need_lg(g.lg[:])
    for _, it in dread_done: dblocks.append(dplace[it])
    e("s_barrier")
    for kind, i in pending: release(kind, i)
    for _, f in dma_q: f()
    post = dorder[st['dnext']:]
    sys.stderr.write(f"{R}: " + " ".join(log) + f"\n   inreg {inreg} post {post} nh {st['nh']}\n")
    lateops = []
    for n in post:
        dplace[n] = dblocks.pop(0)
        lateops += dma4('D', n, dplace[n])
    stay = [j for j in range(14) if j not in inreg]
    assert len(set(dplace[j] for j in stay)) == len(stay)
    def do_flagB():
        g.need_vm([('hs', 1)])
        flag_store(1)
        g.stamp(7)
    extra = {1: [tail_setup]}
    nfirst = min(args.dfirst*4, len(lateops))
    fbd = False
    for i_ in range(nfirst):
        if args.flagB_i < 0 and i_ == -args.flagB_i: do_flagB(); fbd = True
        lateops.pop(0)()
    post = post[nfirst//4:]
    if args.flagB_i < 0 and not fbd: do_flagB()
    if args.chkA_at >= NM:
        check_or_spin(f"L_pa{R}", vP1, 'pa', vFl, sH, 0, pre=(lambda: (g.need_vm([('hs', 1)]), flag_store(1))) if args.flagB_i >= 0 else None)
        g.stamp(8)
        while st['nh'] < args.hpre: h_load(st['nh']); st['nh'] += 1
    if args.flagB_i >= 0: extra.setdefault(args.flagB_i, []).append(do_flagB)
    phase2A(R, stay, dplace, lateops, post, st['nh'], extra)
    e("s_branch L_B")

main_path("F")
stay = sorted(reuse); inreg = [j for j in range(14) if j not in stay]; dplace = {j: ('P', q_) for q_, j in enumerate(stay)}

g.lab("L_spare")
g.vm = []; g.lg = []
e(f"s_cmp_lg_u32 s{s_w}, 0")
e("s_cbranch_scc1 L_sp1")
e(f"s_lshl_b32 s{s_a}, s{s_m64}, 13")
e(f"s_add_u32 s{s_a}, s{s_a}, {FBASE}")
e("v_lshlrev_b32 v240, 7, v0")
e("v_mov_b32 v241, 0")
e(f"buffer_store_dword v241, v240, {sr(sH)}, s{s_a} offen sc1")
g.lab("L_sp1")
def sp_touch():
    e("v_min_u32 v240, 55, v0")
    e(f"s_lshl_b32 s{s_a}, s{s_m64}, 2")
    e(f"s_add_u32 s{s_a}, s{s_a}, s{s_w}")
    e(f"s_and_b32 s{s_b}, s{s_a}, 63")
    e(f"s_lshr_b32 s{s_a}, s{s_a}, 6")
    e(f"s_lshl_b32 s{s_a}, s{s_a}, 7")
    e(f"s_add_u32 s{s_a}, s{s_a}, s{s_b}")
    e(f"s_lshl_b32 s{s_a}, s{s_a}, 10")
    e("v_lshrrev_b32 v242, 3, v240")
    e("v_lshlrev_b32 v242, 18, v242")
    e("v_and_b32 v247, 7, v240")
    e("v_lshl_add_u32 v242, v247, 7, v242")
    g.vmem(f"buffer_load_dword v249, v242, {sr(sD)}, s{s_a} offen", "pf")
    e(f"s_add_u32 s{s_a}, s{s_a}, 65536")
    g.vmem(f"buffer_load_dword v250, v242, {sr(sD)}, s{s_a} offen", "pf")
if not args.nomall and args.spt == 0:
    sp_touch()
    e("s_waitcnt vmcnt(2)")
else:
    e("s_waitcnt vmcnt(0)")
e(f"s_cmp_lg_u32 s{s_w}, 0")
e("s_cbranch_scc1 L_sp2")
e(f"s_lshl_b32 s{s_a}, s{s_m64}, 2")
e(f"v_mov_b32 v247, s{s_a}")
e("v_mov_b32 v248, 1")
e("s_mov_b64 exec, 1")
e(f"buffer_store_dword v248, v247, {sr(sB)}, 0 offen sc1")
e("s_mov_b64 exec, -1")
g.lab("L_sp2")
g.stamp(4)
late_addr_setup()
free2 = [('P', NP - 1), ('P', NP - 2)]
assert len(stay) <= NP - 2
prev = None
for q_, j in enumerate(dorder):
    if not args.nomall and args.spt and q_ == args.spt: sp_touch()
    blk = dplace[j] if j in stay else free2[q_ % 2]
    for f in dma4('D', j, blk):
        f()
        if len(g.vm) > args.sppace:
            e(f"s_waitcnt vmcnt({args.sppace})"); g.vm = g.vm[-args.sppace:] if args.sppace else []
    if prev is not None:
        g.need_vm([('D', prev[0])])
        for f in d_reads(*prev): f()
        g.need_lg(g.lg[:])
    prev = (j, blk) if j in inreg else None
if prev is not None:
    g.need_vm([('D', prev[0])])
    for f in d_reads(*prev): f()
    g.need_lg(g.lg[:])
e(f"s_lshl_b32 s{s_a}, s{s_m64}, 2")
e(f"v_mov_b32 v{vMk}, s{s_a}")
spin("L_smk", vMk, sB, 0, sleep=8)
g.stamp(5)
spin("L_spa", vFl, sH, 0, sleep=args.spsleep)
g.stamp(8)
for i in range(HD): h_load(i)
g.lg = []
phase2A("S", stay, dplace, [], [], HD, {0: [tail_setup]})

g.lab("L_B")
g.stamp(9)
g.vm = [('h', i) for i in range(28, 28 + HD)]; g.lg = []
def wr(lam, a):
    r = ACC2 + lam*16 + a*4
    g.ds(f"ds_write_b128 v{vTW}, {vr(r)} offset:{(lam-1)*4096 + a*1024}", ('wr', lam))
def rd(sl, a):
    g.ds(f"ds_read_b128 {vr(ACC2 + 16 + 4*(sl*4+a))}, v{vTR+sl} offset:{a*1024}", ('rd', sl*4+a))
def padd(d, t):
    e(f"v_pk_add_f32 v[{d}:{d+1}], v[{d}:{d+1}], v[{t}:{t+1}]")
    e(f"v_pk_add_f32 v[{d+2}:{d+3}], v[{d+2}:{d+3}], v[{t+2}:{t+3}]")
def sync():
    g.need_lg(g.lg[:]); e("s_barrier")
    for a in range(4):
        for sl in range(3): rd(sl, a)
def sum_(a):
    g.need_lg([('rd', 8 + a)])
    padd(ACC2 + 16 + 4*a, ACC2 + 32 + 4*a); padd(ACC2 + 16 + 4*a, ACC2 + 48 + 4*a)
side = {}
for lam in (1, 2):
    for a in range(4): side.setdefault((28 + 7*lam + 2 + a, 1), []).append(lambda lam=lam, a=a: wr(lam, a))
for a in range(4): side.setdefault((51, a), []).append(lambda a=a: wr(3, a))
side.setdefault((53, 1), []).append(sync)
nxt = 28 + HD
for i in range(28, 56):
    for nt in range(4):
        mf(i, nt)
        if nt == 0 and nxt < 56: h_load(nxt); nxt += 1
        for f in side.get((i, nt), []): f()
g.stamp(10)
for a in range(4): sum_(a)
for a in range(4): padd(ACC2 + 4*a, ACC2 + 16 + 4*a)
for i in range(8):
    e(f"v_cvt_pk_bf16_f32 v{EPI+i}, v{ACC2+2*i}, v{ACC2+2*i+1}")
e("s_nop 1")
e(f"v_permlane16_swap_b32 v{EPI}, v{EPI+2}")
e(f"v_permlane16_swap_b32 v{EPI+1}, v{EPI+3}")
e(f"v_permlane16_swap_b32 v{EPI+4}, v{EPI+6}")
e(f"v_permlane16_swap_b32 v{EPI+5}, v{EPI+7}")
e(f"buffer_store_dwordx4 {vr(EPI)}, v{vTO}, {sr(sO)}, s{s_oadr} offen {args.outflags}")
e(f"buffer_store_dwordx4 {vr(EPI+4)}, v{vTO}, {sr(sO)}, s{s_oadr} offen offset:64 {args.outflags}")
if args.stamps:
    g.stamp(11)
    e("s_waitcnt vmcnt(0)")
    g.stamp(12)
    e("s_waitcnt lgkmcnt(0)")
if args.diag:
    a_, b_, K_, wg_ = map(int, args.diag.split(","))
    if wg_ >= 0: e(f"s_cmp_lg_u32 s2, {wg_}")
    else: e(f"s_cmp_eq_u32 s{s_col}, 0")
    e("s_cbranch_scc1 L_end")
    e(f"s_sub_u32 s46, s{s_st+2*b_}, s{s_st+2*a_}")
    e(f"s_mul_i32 s46, s46, {K_}")
    e(f"s_add_u32 s46, s46, 5000")
    e(f"s_min_u32 s46, s46, 100000")
    g.lab("L_diag")
    e("s_memrealtime s[48:49]")
    e("s_waitcnt lgkmcnt(0)")
    e(f"s_sub_u32 s47, s48, s{s_st}")
    e("s_cmp_lt_u32 s47, s46")
    e("s_cbranch_scc1 L_diag")
elif args.stamps:
    NS = 14
    for i in range(2*NS): e(f"v_mov_b32 v{64+i}, s{s_st+i}")
    e(f"s_lshl_b32 s46, s2, 2")
    e(f"s_add_u32 s46, s46, s{s_w}")
    e(f"s_mul_i32 s46, s46, {NS*8}")
    e(f"s_add_u32 s46, s46, {STAMP_OFF}")
    e("v_mov_b32 v5, 0")
    e("s_mov_b64 exec, 1")
    for i in range(NS//2): e(f"buffer_store_dwordx4 {vr(64+4*i)}, v5, {sr(sH)}, s46 offen offset:{16*i}")
g.lab("L_end")
e("s_endpgm")
g.lab("L_codeend")

hdr = f"""; Fused bilinear GLU: out = ((x Wg) * (x Wu)) Wd   (generated)
; @launch grid=(256,1,1) block=(256,1,1) lds={LDS}
.amdgcn_target "amdgcn-amd-amdhsa--gfx950"
.text
.globl {KN}
.p2align 8
.type {KN},@function
{KN}:"""
tail = f""".section .rodata,"a"
.p2align 6
.amdhsa_kernel {KN}
  .amdhsa_next_free_vgpr 512
  .amdhsa_next_free_sgpr 102
  .amdhsa_accum_offset 256
  .amdhsa_group_segment_fixed_size 0
  .amdhsa_kernarg_size 56
  .amdhsa_user_sgpr_count 2
  .amdhsa_user_sgpr_kernarg_segment_ptr 1
  .amdhsa_system_sgpr_workgroup_id_x 1
.end_amdhsa_kernel"""
print(hdr); print("\n".join(g.L)); print(tail)
```

```python
import sys, argparse

ap = argparse.ArgumentParser()
A = ap.add_argument
A("--stamps", action="store_true"); A("--stepstamps", action="store_true"); A("--cycstamps", action="store_true")
A("--st2", action="store_true"); A("--diag", default="")
A("--la", type=int, default=16)
A("--cap", type=int, default=2); A("--ecap", type=int, default=3)
A("--outflags", default=""); A("--noprefetch", action="store_true"); A("--nomall", action="store_true")
A("--order", default="0101001001001111"); A("--nxk", type=int, default=4)
A("--merge", type=int, default=2); A("--mtm", type=int, default=8)
A("--hdepth", type=int, default=12); A("--pollB", type=int, default=14); A("--chkB_i", type=int, default=20)
A("--mkat", type=int, default=256); A("--spsleep", type=int, default=8); A("--sppace", type=int, default=4)
A("--flagA_at", type=int, default=452); A("--pollA_at", type=int, default=508); A("--chkA_at", type=int, default=512)
A("--hpre", type=int, default=12); A("--dfirst", type=int, default=3); A("--flagB_i", type=int, default=-10)
A("--quiet", type=int, default=0); A("--dstop", type=int, default=496); A("--npoll", type=int, default=3); A("--per", type=int, default=2)
A("--nw", type=int, default=5); A("--nxb", type=int, default=3)
A("--rates", default="7,7,7,8,8,8,8,8,8,8,8,8,7,7,7,7"); A("--pre", type=int, default=4)
A("--minlead", type=int, default=56); A("--dstart", type=int, default=120); A("--dlat", type=int, default=64)
A("--latelead", type=int, default=80); A("--latefrom", type=int, default=13)
A("--spt", type=int, default=0)
A("--early", type=int, default=16)
A("--dorder", default="0,1,7,8,2,3,4,5,6,9,10,11,12,13")
A("--oldmerge", action="store_true")
A("--dlat2", type=int, default=28)
A("--vcost", type=int, default=2)
A("--wgrp", type=int, default=2)
A("--sppf", type=int, default=-1)
A("--sppfd", type=int, default=99)
A("--pollmode", default="atomic"); A("--krot", type=int, default=1); A("--nos3", action="store_true")
args = ap.parse_args()
if args.diag: args.stamps = True
assert args.pollA_at > args.flagA_at > args.mkat

KN = "standalone__glu_gated_bilinear__prompt_kernel"
NW = args.nw; NP = 10 - NW; NXB = args.nxb
HFS = NW * 8192; PB = 2 * HFS; PWS = NP * 4096; LDS = PB + 4 * PWS
assert LDS == 163840 and NP >= 3
FBASE = 0x1000000; STAMP_OFF = 0x8000000; FS = 1024
HM, HQ, HS, HP = 458752, 114688, 57344, 8192
LA = args.la; NBUF = 8; NM = 512

sX, sG, sU, sD, sH, sO, sB = 8, 12, 16, 20, 24, 28, 32
s_w, s_mb, s_fb, s_m64, s_n64 = 36, 37, 38, 39, 40
s_xoff, s_woff, s_doff = 41, 42, 43
s_mP, s_mW = 44, 45
s_t0, s_t1, s_t2, s_t3 = 46, 47, 48, 49
s_hst, s_spin, s_hld, s_flag = 50, 51, 52, 53
s_oadr, s_xcd, s_col, s_c = 54, 55, 56, 57
s_a, s_b = 58, 59
s_st = 60
s_rh, s_rd = 88, 95
s_kr = 6
wtab = [88, 89, 90, 91, 92, 93, 94, 49]
vX, vW, vD = 1, 5, 9
vRW, vRX, vRD, vH = 13, 15, 17, 21
vL16, vFl, vMk, vT, vT2, vP1, vP2 = 25, 26, 27, 28, 29, 30, 31
vRD2 = 1
vTR, vTW, vTO = 5, 8, 13
WBUF = 32
ACC0, ACC1 = 64, 128
ACC2 = ACC0
HB = 128
EPI = 240
NXK = args.nxk
NREG = 3 + (256 - 32*NXK)//16

class G:
    def __init__(s): s.L = []; s.lg = []; s.vm = []
    def e(s, t): s.L.append("    " + t)
    def lab(s, t): s.L.append(t + ":")
    def ds(s, t, tag):
        if len(s.lg) >= 14:
            s.e("s_waitcnt lgkmcnt(12)"); s.lg = s.lg[-12:]
        s.e(t); s.lg.append(tag)
    def vmem(s, t, tag): s.e(t); s.vm.append(tag); assert len(s.vm) <= 63, "vm overflow"
    def need_lg(s, tags):
        idx = max((i for i, t in enumerate(s.lg) if t in tags), default=-1)
        if idx >= 0:
            s.e(f"s_waitcnt lgkmcnt({len(s.lg)-1-idx})"); s.lg = s.lg[idx+1:]
    def need_vm(s, tags):
        idx = max((i for i, t in enumerate(s.vm) if t in tags), default=-1)
        if idx >= 0:
            s.e(f"s_waitcnt vmcnt({len(s.vm)-1-idx})"); s.vm = s.vm[idx+1:]
    def stamp(s, k, force=False):
        if args.stepstamps and 4 <= k <= 11 and not force: return
        if args.stamps: s.e(("s_memtime" if args.cycstamps else "s_memrealtime") + f" s[{s_st+2*k}:{s_st+2*k+1}]")
g = G(); e = g.e
def vr(b, n=4): return f"v[{b}:{b+n-1}]"
def ar(b, n=4): return f"a[{b}:{b+n-1}]"
def sr(b, n=4): return f"s[{b}:{b+n-1}]"
MF = "v_mfma_f32_16x16x32_bf16"

order = [int(c) for c in args.order]
assert len(order) == 16 and sum(order) == 8
steps = []; cnt = [0, 0]
for s_ in order: steps.append((s_, cnt[s_])); cnt[s_] += 1
first_k = {}
for n, (s_, k) in enumerate(steps): first_k.setdefault(k, n)
last_k = {k: max(n for n, (s_, kk) in enumerate(steps) if kk == k) for k in range(8)}
for k in range(8 - NXK): assert last_k[k] < first_k[k+NXK] - 1, "x register reuse"
uses = []
mseq = []
nm = 16 - args.merge
for n in range(nm):
    for T in range(2):
        for c in range(4):
            uses.append((n, T, c)); mseq += [(len(uses)-1, mt) for mt in range(4)]
reg_ = [(n, T, c) for n in range(nm, 16) for T in range(2) for c in range(4)]
for n in range(nm, 16): assert steps[n][0] == 1
b0 = len(uses)
for u in reg_: uses.append(u)
mseq += [(i, mt) for mt in range(4) for i in range(b0, len(uses))]
assert len(mseq) == NM and len(reg_) <= 24
NU = len(uses)
def accr(acc, c, mt): return acc + (c*4 + mt)*4
wbuf = {}; wneed = {}
nring = NU - max(0, len(reg_) - 8) if len(reg_) > 16 else b0
for i_ in range(NU):
    if i_ < nring: wbuf[i_] = WBUF + (i_ % NBUF)*4
    else:
        q_ = i_ - nring; wbuf[i_] = accr(ACC0, q_ % 4, q_ // 4); wneed[i_] = q_ // 4
first_use = {}
for j_, (i_, mt_) in enumerate(mseq): first_use.setdefault(i_, j_)
last_use = {i_: j_ for j_, (i_, mt_) in enumerate(mseq)}
rsched = {}; rpos = {}
for i_ in range(NU):
    p_ = first_use[i_] - LA
    if i_ >= b0: p_ = first_use[b0] - LA - args.early + ((i_ - b0)*(len(reg_) + args.early))//len(reg_)
    if NBUF <= i_ < nring: p_ = max(p_, last_use[i_ - NBUF] + 1)
    gap = first_use.get(i_+1, 9999) - first_use[i_]
    p2 = p_ + (2 if gap >= 4 else (1 if args.early >= len(reg_)//2 else 0))
    assert p2 <= first_use[i_] - 5, ("w read late", i_)
    rsched.setdefault(p_, []).append((i_, 0)); rsched.setdefault(p2, []).append((i_, 1)); rpos[i_] = p_
first_u = {n: min(i for i, u in enumerate(uses) if u[0] == n) for n in range(16)}
last_u = {n: max(i for i, u in enumerate(uses) if u[0] == n) for n in range(16)}
bpos = {n: rpos[first_u[n]] - 1 for n in range(16)}
START = -LA
def done_at(s_, mt): return max(j for j, (i, m_) in enumerate(mseq) if m_ == mt and steps[uses[i][0]][0] == s_)
busy = sorted({steps[uses[i][0]][1] % NXK for j_, (i, mt) in enumerate(mseq) if j_ >= min(args.chkA_at, NM - 1) - 4})
slots_order = [s_ for s_ in range(NXK) if s_ not in busy] + busy
xregs = [32*s_ + 4*q for s_ in slots_order for q in range(8)]
hreg = xregs[:28]
NFREE = 8*(NXK - len(busy))
spare16 = xregs[28:]
dorder = [int(x) for x in args.dorder.split(",")]
assert sorted(dorder) == list(range(14))
ahomes = [("a", 32*NXK + 16*j) for j in range(NREG - 3)]
phomes = []
for j in range(len(spare16)//4):
    grp = spare16[4*j:4*j+4]
    assert grp == [grp[0] + 4*q for q in range(4)]
    phomes.append(("a", grp[0]))
homes = {j: ("v", 192 + 16*j) for j in range(3)}
early_ok = {0, 1, 2}
reuse = {}; rq = []
for j in dorder:
    if j < 3: continue
    if ahomes: homes[j] = ahomes.pop(0); early_ok.add(j)
    elif phomes: homes[j] = phomes.pop(0)
    else: rq.append(j)
for q_, j in enumerate(sorted(rq)):
    assert j >= 7 and 3 + q_ in homes
    reuse[j] = 3 + q_; homes[j] = homes[3 + q_]
assert args.hpre <= NFREE or args.chkA_at >= NM

e("s_cmp_ge_u32 s2, 256")
e("s_cbranch_scc1 L_end")
if args.stamps:
    for i in range(1, 14): e(f"s_mov_b64 s[{s_st+2*i}:{s_st+2*i+1}], 0")
g.stamp(0)
e("s_load_dwordx8 s[88:95], s[0:1], 0")
e("s_load_dwordx4 s[96:99], s[0:1], 32")
e("s_load_dwordx2 s[100:101], s[0:1], 48")
if not args.noprefetch:
    e("s_getpc_b64 s[4:5]")
    e("s_and_b32 s4, s4, 0xffffff00")
    e(f"s_mov_b32 s6, L_codeend-{KN}")
    e("s_mov_b32 s7, 0x20000")
    e("v_lshlrev_b32 v30, 7, v0")
    g.vmem("buffer_load_dword v31, v30, s[4:7], 0 offen", "pf")
e("v_lshrrev_b32 v30, 6, v0")
e("v_and_b32 v0, 63, v0")
e(f"v_readfirstlane_b32 s{s_w}, v30")
e(f"s_and_b32 s{s_xcd}, s2, 7")
e(f"s_bfe_u32 s{s_c}, s2, 0x20003")
e(f"s_lshr_b32 s{s_col}, s2, 5")
e(f"s_lshl_b32 s{s_m64}, s{s_xcd}, 2")
e(f"s_add_u32 s{s_m64}, s{s_m64}, s{s_c}")
e(f"s_lshr_b32 s{s_mb}, s{s_xcd}, 1")
e(f"s_lshl_b32 s{s_mb}, s{s_mb}, 2")
e(f"s_add_u32 s{s_mb}, s{s_mb}, s{s_c}")
e(f"s_and_b32 s{s_fb}, s{s_xcd}, 1")
e(f"s_mul_i32 s{s_fb}, s{s_fb}, 7")
e(f"s_add_u32 s{s_fb}, s{s_fb}, s{s_col}")
e(f"s_sub_u32 s{s_fb}, s{s_fb}, 1")
e(f"s_xor_b32 s{s_n64}, s{s_col}, 3")
e("v_lshrrev_b32 v240, 3, v0")
e("v_and_b32 v241, 7, v0")
e("v_lshrrev_b32 v242, 4, v0")
e(f"s_lshl_b32 s{s_a}, s{s_w}, 15")
e("v_xor_b32 v243, v241, v242")
e("v_lshlrev_b32 v243, 4, v243")
e(f"v_lshl_add_u32 v{vX}, v240, 10, v243")
e(f"v_add_u32 v{vX}, s{s_a}, v{vX}")
e(f"v_xor_b32 v{vX+1}, 64, v{vX}")
e(f"v_add_u32 v{vX+1}, {7*1024}, v{vX+1}")
e(f"v_add_u32 v{vX+2}, {14*1024}, v{vX}")
e(f"v_add_u32 v{vX+3}, {14*1024}, v{vX+1}")
e(f"s_lshr_b32 s{s_a}, s{s_w}, 1")
e(f"s_lshl_b32 s{s_a}, s{s_a}, 5")
e(f"s_and_b32 s{s_b}, s{s_w}, 1")
e(f"s_lshl_b32 s{s_t0}, s{s_b}, 3")
e(f"s_add_u32 s{s_a}, s{s_a}, s{s_t0}")
e(f"s_mul_i32 s{s_a}, s{s_a}, 3584")
e(f"s_lshl_b32 s{s_b}, s{s_b}, 6")
e(f"v_mul_u32_u24 v{vW}, 3584, v240")
e("v_and_b32 v244, 1, v242")
e("v_lshlrev_b32 v245, 4, v241")
e("v_lshlrev_b32 v246, 5, v244")
e("v_xor_b32 v246, v245, v246")
e(f"v_xor_b32 v246, s{s_b}, v246")
e(f"v_add3_u32 v{vW}, v{vW}, v246, s{s_a}")
e(f"v_add_u32 v{vW+2}, {16*3584-2048}, v{vW}")
e(f"v_add_u32 v{vW+1}, 128, v{vW}")
e(f"v_add_u32 v{vW+3}, 128, v{vW+2}")
e(f"s_lshr_b32 s{s_a}, s{s_w}, 1")
e(f"s_lshl_b32 s{s_a}, s{s_a}, 17")
e(f"s_and_b32 s{s_b}, s{s_w}, 1")
e(f"s_lshl_b32 s{s_b}, s{s_b}, 15")
e(f"s_add_u32 s{s_a}, s{s_a}, s{s_b}")
e("v_lshlrev_b32 v246, 5, v242")
e("v_xor_b32 v246, v245, v246")
e(f"v_lshl_add_u32 v{vD}, v240, 10, v246")
e(f"v_add_u32 v{vD}, s{s_a}, v{vD}")
for i in range(1, 4): e(f"v_add_u32 v{vD+i}, {7*1024*i}, v{vD}")
e(f"s_mul_i32 s{s_mP}, s{s_w}, {PWS}")
e(f"s_add_u32 s{s_mP}, s{s_mP}, {PB}")
e(f"s_and_b32 s{s_b}, s{s_w}, 1")
e(f"s_mul_i32 s{s_mW}, s{s_b}, {HFS}")
e(f"s_lshr_b32 s{s_a}, s{s_w}, 1")
e(f"s_lshl_b32 s{s_a}, s{s_a}, 12")
e(f"s_add_u32 s{s_mW}, s{s_mW}, s{s_a}")
if args.krot == 2:
    e(f"s_lshr_b32 s{s_kr}, s{s_xcd}, 1")
    e(f"s_xor_b32 s{s_kr}, s{s_kr}, s{s_xcd}")
    e(f"s_and_b32 s{s_kr}, s{s_kr}, 1")
    e(f"s_lshl_b32 s{s_kr}, s{s_kr}, 2")
elif args.krot:
    e(f"s_and_b32 s{s_kr}, s{s_xcd}, 6")
    e(f"s_and_b32 s{s_a}, s{s_xcd}, 1")
    e(f"s_lshl_b32 s{s_a}, s{s_a}, 2")
    e(f"s_xor_b32 s{s_kr}, s{s_kr}, s{s_a}")
else:
    e(f"s_mov_b32 s{s_kr}, 0")
e(f"s_lshl_b32 s{s_xoff}, s{s_mb}, 17")
e(f"s_lshl_b32 s{s_a}, s{s_kr}, 7")
e(f"s_or_b32 s{s_xoff}, s{s_xoff}, s{s_a}")
e(f"s_lshl_b32 s{s_woff}, s{s_fb}, 8")
e(f"s_mul_i32 s{s_t2}, s{s_kr}, {64*3584}")
e(f"s_add_u32 s{s_t2}, s{s_t2}, s{s_woff}")
e(f"s_lshl_b32 s{s_doff}, s{s_n64}, 7")
for b, n in ((sX, 2048*1024), (sG, 512*3584), (sU, 512*3584+1024), (sD, 1792*1024), (sH, 0x10000000), (sO, 2048*1024), (sB, 256)):
    e(f"s_mov_b32 s{b+2}, {n}")
    e(f"s_mov_b32 s{b+3}, 0x20000")
e("s_waitcnt lgkmcnt(0)")
e(f"s_mov_b64 s[{sX}:{sX+1}], s[88:89]")
e(f"s_mov_b64 s[{sG}:{sG+1}], s[90:91]")
e(f"s_sub_u32 s{sU}, s92, 1024")
e(f"s_subb_u32 s{sU+1}, s93, 0")
e(f"s_mov_b64 s[{sD}:{sD+1}], s[94:95]")
e(f"s_mov_b64 s[{sO}:{sO+1}], s[96:97]")
e(f"s_mov_b64 s[{sB}:{sB+1}], s[98:99]")
e(f"s_mov_b64 s[{sH}:{sH+1}], s[100:101]")
e(f"s_mov_b32 s{wtab[0]}, s{s_t2}")
g.stamp(1)
def wtab_setup():
    for k in range(1, 8):
        e(f"s_xor_b32 s{s_a}, s{s_kr}, {k}")
        e(f"s_mul_i32 s{s_a}, s{s_a}, {64*3584}")
        e(f"s_add_u32 s{wtab[k]}, s{s_a}, s{s_woff}")
def rh_setup():
    for jj in range(7):
        e(f"s_sub_u32 s{s_a}, s{s_rd+jj}, s{s_doff}")
        e(f"s_lshr_b32 s{s_a}, s{s_a}, 5")
        e(f"s_add_u32 s{s_rh+jj}, s{s_a}, s{s_hld}")

def dma_item(kind, n, where):
    m0 = (s_mP, where[1] * 4096) if where[0] == 'P' else (s_mW, where[1] * 8192)
    ops = []
    sc = [f"s_add_u32 m0, s{m0[0]}, {m0[1]}"]
    so = s_t0
    if kind == 'X':
        srd = [sX]*4; vb = [vX, vX+1, vX+2, vX+3]; sc.append(f"s_xor_b32 s{s_t0}, s{s_xoff}, {n*128}")
    elif kind == 'W':
        o_ = steps[n][0]; srd = [sG, sU, sG, sU]; vb = [vW+o_, vW+o_, vW+2+o_, vW+2+o_]; so = wtab[steps[n][1]]
    else:
        srd = [sD]*4; vb = [vD, vD+1, vD+2, vD+3]
        if n < 7: so = s_rd + n
        else: sc.append(f"s_add_u32 s{s_t0}, s{s_rd + n % 7}, 65536")
    for t in sc: ops.append(('s', lambda t=t: e(t)))
    for i in range(4):
        off = f" offset:{1024*i}" if i else ""
        def ld(i=i, off=off):
            if g.L[-1].strip().startswith("s_add_u32 m0"): e("s_nop 0")
            g.vmem(f"buffer_load_dwordx4 v{vb[i]}, {sr(srd[i])}, s{so} offen{off} lds", (kind, n))
        ops.append(('v', ld))
    return ops
def dma4(kind, n, where):
    ops = dma_item(kind, n, where); pre = [f for k, f in ops if k == 's']; ld = [f for k, f in ops if k == 'v']
    return [lambda: ([f() for f in pre], ld[0]())] + ld[1:]

def h_pattern(vdst, s_idx):
    e(f"v_lshlrev_b32 v{vdst}, 4, v0")
    if args.nos3: return
    e(f"s_and_b32 s{s_idx}, s{s_idx}, 3")
    e(f"s_cmp_eq_u32 s{s_idx}, 3")
    e(f"s_cselect_b32 s{s_idx}, 4, s{s_idx}")
    e(f"s_lshl_b32 s{s_idx}, s{s_idx}, 7")
    e(f"s_add_u32 s{s_idx}, s{s_idx}, {4096 - 384}")
    e("s_mov_b32 exec_lo, 0xff000000")
    e("s_mov_b32 exec_hi, 0")
    e(f"v_add_u32 v{vdst}, s{s_idx}, v{vdst}")
    e("s_mov_b64 exec, -1")

def late_addr_setup():
    e("v_lshrrev_b32 v240, 5, v0")
    e("v_bfe_u32 v241, v0, 4, 1")
    e("v_bfe_u32 v242, v0, 2, 2")
    e("v_and_b32 v243, 3, v0")
    e("v_bfe_u32 v244, v0, 3, 1")
    e("v_lshlrev_b32 v243, 3, v243")
    e("v_lshl_add_u32 v243, v242, 7, v243")
    e("v_lshl_or_b32 v245, v241, 1, v244")
    e("v_lshl_add_u32 v243, v245, 5, v243")
    e(f"v_mul_u32_u24 v{vRW}, {HFS}, v241")
    e(f"v_lshl_add_u32 v{vRW}, v240, 11, v{vRW}")
    e(f"v_add_u32 v{vRW}, v{vRW}, v243")
    e(f"s_and_b32 s{s_a}, s{s_w}, 1")
    e(f"s_lshl_b32 s{s_a}, s{s_a}, 6")
    e(f"v_xor_b32 v{vRW}, s{s_a}, v{vRW}")
    e(f"v_xor_b32 v{vRW+1}, 32, v{vRW}")
    e("v_lshrrev_b32 v246, 4, v0")
    e("v_lshl_add_u32 v245, v246, 9, v243")
    e(f"v_add_u32 v{vRD}, s{s_mP}, v245")
    for nt in range(1, 4): e(f"v_xor_b32 v{vRD+nt}, {32*nt}, v{vRD}")
    e("v_and_b32 v245, 15, v0")
    e("v_bfe_u32 v247, v0, 1, 3")
    e("v_xor_b32 v247, v247, v246")
    e("v_lshlrev_b32 v247, 4, v247")
    e("v_lshl_add_u32 v245, v245, 7, v247")
    e(f"s_lshr_b32 s{s_a}, s{s_w}, 1")
    e(f"s_mul_i32 s{s_a}, s{s_a}, {2*PWS}")
    e(f"s_add_u32 s{s_a}, s{s_a}, {PB}")
    e(f"v_add_u32 v{vRX}, s{s_a}, v245")
    e(f"v_xor_b32 v{vRX+1}, 64, v{vRX}")
    e(f"s_add_u32 s{s_a}, s{s_m64}, s{s_w}")
    h_pattern(vH, s_a)
    e(f"s_lshl_b32 s{s_a}, s{s_w}, 10")
    e(f"v_add_u32 v{vH}, s{s_a}, v{vH}")
    for lam in range(1, 4): e(f"v_xor_b32 v{vH+lam}, {1024*lam}, v{vH}")
    e(f"s_mul_i32 s{s_hld}, s{s_m64}, {HM}")
    e(f"s_mul_i32 s{s_a}, s{s_w}, {HQ}")
    e(f"s_add_u32 s{s_hld}, s{s_hld}, s{s_a}")
    e(f"v_add_u32 v{vFl}, 5, v0")
    e(f"v_lshrrev_b32 v{vFl}, 3, v{vFl}")
    e(f"v_add_u32 v{vFl}, v{vFl}, v0")
    e(f"v_min_u32 v{vFl}, 7, v{vFl}")
    e(f"v_lshlrev_b32 v{vFl}, 7, v{vFl}")
    e(f"s_lshl_b32 s{s_a}, s{s_m64}, 13")
    e(f"s_lshl_b32 s{s_b}, s{s_w}, 11")
    e(f"s_add_u32 s{s_a}, s{s_a}, s{s_b}")
    e(f"s_add_u32 s{s_a}, s{s_a}, {FBASE}")
    e(f"v_add_u32 v{vFl}, s{s_a}, v{vFl}")
    e(f"s_lshl_b32 s{s_a}, s{s_c}, 1")
    e(f"s_add_u32 s{s_a}, s{s_a}, s{s_col}")
    e(f"s_sub_u32 s{s_b}, s{s_a}, 7")
    e(f"s_cmp_ge_u32 s{s_a}, 7")
    e(f"s_cselect_b32 s{s_a}, s{s_b}, s{s_a}")
    for jj in range(7):
        e(f"s_lshl_b32 s{s_b}, s{s_a}, 18")
        e(f"s_add_u32 s{s_rd+jj}, s{s_b}, s{s_doff}")
        if jj < 6:
            e(f"s_add_u32 s{s_a}, s{s_a}, 1")
            e(f"s_cmp_eq_u32 s{s_a}, 7")
            e(f"s_cselect_b32 s{s_a}, 0, s{s_a}")
    e(f"s_lshl_b32 s{s_a}, s{s_m64}, 16")
    e(f"s_lshl_b32 s{s_b}, s{s_w}, 14")
    e(f"s_add_u32 s{s_a}, s{s_a}, s{s_b}")
    e(f"s_add_u32 s{s_oadr}, s{s_a}, s{s_doff}")

def rd2_setup():
    e(f"s_sub_u32 s{s_a}, s{s_mW}, s{s_mP}")
    for nt in range(4): e(f"v_add_u32 v{vRD2+nt}, s{s_a}, v{vRD+nt}")

def d_reads(item, where):
    dfile, dstbase = homes[item]
    ops = []
    for nt in range(4):
        for p in range(2):
            def f(nt=nt, p=p):
                if where[0] == 'P': va = vRD + nt; off = where[1]*4096
                else: va = vRD2 + nt; off = where[1]*8192
                off += p*2048
                r = dstbase + nt*4 + 2*p
                g.ds(f"ds_read_b64_tr_b16 {dfile}[{r}:{r+1}], v{va} offset:{off}", ('Dr', item))
            ops.append(f)
    return ops

def pmask(vaddr): return 3 if vaddr == vMk else 0x7f
def poll(vdst, vaddr, srd, off, tag):
    o = f" offset:{off}" if off else ""
    e(f"s_mov_b64 exec, {pmask(vaddr)}")
    if args.pollmode == "atomic" and vaddr != vMk:
        e(f"v_mov_b32 v{vdst}, 0")
        g.vmem(f"buffer_atomic_add v{vdst}, v{vaddr}, {sr(srd)}, 0 offen{o} sc0 sc1", tag)
    else:
        g.vmem(f"buffer_load_dword v{vdst}, v{vaddr}, {sr(srd)}, 0 offen{o} sc1", tag)
    e("s_mov_b64 exec, -1")
def test(vres, vaddr, target):
    e(f"v_cmp_eq_u32 vcc, 0, v{vres}")
    e(f"s_and_b32 s{s_t1}, vcc_lo, {pmask(vaddr)}")
    e(f"s_cbranch_scc0 {target}")
def spin(label, vaddr, srd, off, sleep=0):
    e(f"s_mov_b32 s{s_spin}, 0x40000")
    g.lab(label)
    poll(vT, vaddr, srd, off, 'sp')
    e("s_waitcnt vmcnt(0)")
    test(vT, vaddr, f"{label}_ok")
    if sleep: e(f"s_sleep {sleep}")
    e(f"s_sub_u32 s{s_spin}, s{s_spin}, 1")
    e(f"s_cmp_lg_u32 s{s_spin}, 0")
    e(f"s_cbranch_scc1 {label}")
    g.lab(label + "_ok")
    g.vm = []
def check_or_spin(label, vres, tag, vaddr, srd, off, pre=None):
    g.need_vm([tag])
    test(vres, vaddr, f"{label}_ok")
    save = list(g.vm)
    if pre: pre()
    spin(label, vaddr, srd, off)
    g.vm = save

def epi_ops(acc, s, mt, packed):
    ops = []; d = EPI + 4*mt
    for ql in range(2):
        a = accr(acc, 2*ql, mt); b = accr(acc, 2*ql + 1, mt)
        if packed:
            for i in range(2): ops.append(lambda a=a, b=b, i=i: e(f"v_pk_mul_f32 v[{a+2*i}:{a+2*i+1}], v[{a+2*i}:{a+2*i+1}], v[{b+2*i}:{b+2*i+1}]"))
        else:
            for i in range(4): ops.append(lambda a=a, b=b, i=i: e(f"v_mul_f32 v{a+i}, v{a+i}, v{b+i}"))
    for ql in range(2):
        a = accr(acc, 2*ql, mt)
        for i in range(2): ops.append(lambda a=a, i=i, ql=ql: e(f"v_cvt_pk_bf16_f32 v{d+2*ql+i}, v{a+2*i}, v{a+2*i+1}"))
    if mt == 0 and s == 1: ops.append(lambda: e(f"s_add_u32 s{s_hst}, s{s_hst}, {HS}"))
    off = f" offset:{1024*mt}" if mt else ""
    ops.append(lambda: g.vmem(f"buffer_store_dwordx4 {vr(d)}, v{vL16}, {sr(sH)}, s{s_hst} offen{off} sc1", ('hs', s)))
    return ops

def flag_store(s):
    e(f"v_mov_b32 v{vT2}, s{s_flag}")
    e(f"v_mov_b32 v{vT}, 1")
    e("s_mov_b64 exec, 1")
    op = "buffer_atomic_or" if args.pollmode == "atomic" else "buffer_store_dword"
    g.vmem(f"{op} v{vT}, v{vT2}, {sr(sH)}, 0 offen offset:{FS*s} sc1", ('fl', s))
    e("s_mov_b64 exec, -1")

def hidx(i):
    s, r_ = divmod(i, 28)
    if s == 0: jj, lam = divmod(r_, 4)
    else: jj, lam = r_ % 7, (r_ // 7 + 1) % 4
    return s, jj, lam, r_
def h_load(i):
    s, jj, lam, r_ = hidx(i)
    dst = ar(hreg[r_]) if s == 0 else vr(HB + r_*4)
    if i == 28:
        for q in range(7): e(f"s_add_u32 s{s_rh+q}, s{s_rh+q}, {HS}")
    g.vmem(f"buffer_load_dwordx4 {dst}, v{vH+lam}, {sr(sH)}, s{s_rh+jj} offen sc1", ('h', i))
def mf(i, nt):
    s, jj, lam, r_ = hidx(i)
    g.need_vm([('h', i)])
    g.need_lg([('Dr', s*7 + jj)])
    f_, base = homes[s*7 + jj]
    r = base + nt*4
    acc = ACC2 + (lam*4 + nt)*4
    c = "0" if i < 4 else vr(acc)
    h = ar(hreg[r_]) if s == 0 else vr(HB + r_*4)
    e(f"{MF} {vr(acc)}, {f_}[{r}:{r+3}], {h}, {c}")
def tail_setup():
    e(f"v_lshlrev_b32 v{vL16}, 4, v0")
    for lam in range(1, 4):
        e(f"s_xor_b32 s{s_a}, s{s_w}, {lam}")
        e(f"s_mul_i32 s{s_a}, s{s_a}, {PWS}")
        e(f"s_add_u32 s{s_a}, s{s_a}, {PB + (lam-1)*4096}")
        e(f"v_add_u32 v{vTR+lam-1}, s{s_a}, v{vL16}")
    e(f"v_add_u32 v{vTW}, s{s_mP}, v{vL16}")
    e(f"v_and_b32 v{vTO}, 15, v0")
    e(f"v_lshlrev_b32 v{vTO}, 10, v{vTO}")
    e(f"v_bfe_u32 v{vTO+1}, v0, 4, 1")
    e(f"v_lshl_add_u32 v{vTO}, v{vTO+1}, 5, v{vTO}")
    e(f"v_lshrrev_b32 v{vTO+1}, 5, v0")
    e(f"v_lshl_add_u32 v{vTO}, v{vTO+1}, 4, v{vTO}")
HD = args.hdepth

e(f"s_cmp_eq_u32 s{s_col}, 0")
e("s_cbranch_scc1 L_spare")

mand = []
for n in range(16):
    for k in range(8):
        if first_k[k] == n: mand.append((n, 'X', k, ('P', k % NXB)))
    mand.append((n, 'W', n, ('W', n % NW)))
for (_, kind, n, where) in mand[:2]:
    for f in dma4(kind, n, where): f()
wtab_setup()
late_addr_setup()
e(f"s_lshr_b32 s{s_a}, s{s_w}, 1")
e(f"s_lshl_b32 s{s_b}, s{s_mb}, 1")
e(f"s_add_u32 s{s_a}, s{s_a}, s{s_b}")
e(f"s_and_b32 s{s_b}, s{s_fb}, 1")
e(f"s_lshl_b32 s{s_b}, s{s_b}, 1")
e(f"s_and_b32 s{s_t1}, s{s_w}, 1")
e(f"s_add_u32 s{s_b}, s{s_b}, s{s_t1}")
e(f"s_mul_i32 s{s_hst}, s{s_a}, {HM}")
e(f"s_mul_i32 s{s_t1}, s{s_b}, {HQ}")
e(f"s_add_u32 s{s_hst}, s{s_hst}, s{s_t1}")
e(f"s_lshr_b32 s{s_t2}, s{s_fb}, 1")
e(f"s_lshl_b32 s{s_t1}, s{s_t2}, 13")
e(f"s_add_u32 s{s_hst}, s{s_hst}, s{s_t1}")
e(f"s_add_u32 s{s_t1}, s{s_a}, s{s_b}")
h_pattern(vL16, s_t1)
e(f"s_cmp_ge_u32 s{s_t2}, 3")
e(f"s_addc_u32 s{s_t2}, s{s_t2}, 0")
e(f"s_lshl_b32 s{s_t2}, s{s_t2}, 7")
e(f"s_lshl_b32 s{s_b}, s{s_b}, 11")
e(f"s_add_u32 s{s_b}, s{s_b}, s{s_t2}")
e(f"s_lshl_b32 s{s_t1}, s{s_a}, 13")
e(f"s_add_u32 s{s_b}, s{s_b}, s{s_t1}")
e(f"s_add_u32 s{s_flag}, s{s_b}, {FBASE}")
e(f"s_lshl_b32 s{s_a}, s{s_a}, 2")
e(f"s_lshl_b32 s{s_b}, s{s_m64}, 2")
e(f"v_mov_b32 v{vMk}, s{s_a}")
e(f"v_mov_b32 v240, s{s_b}")
e("v_cmp_lt_u32 vcc, 0, v0")
e("s_nop 1")
e(f"v_cndmask_b32 v{vMk}, v{vMk}, v240, vcc")

def phase2A(R, stay, dplace, lateops, late, nh, extra):
    dmove = {}; slot_ = 0
    plan = {}; q = [('h', i) for i in range(nh, 28)]; lo = list(lateops); it = args.quiet if R != "S" else 0
    late_done = {}
    def takeD(c):
        c.append(('d', lo.pop(0)))
        if len(lo) % 4 == 0: late_done[late[len(late) - 1 - len(lo)//4]] = it
    while q or lo:
        c = []
        behind = q and q[0][1] - it < 8
        if q: c.append(q.pop(0))
        while len(c) < args.per and (q or lo):
            if q and (behind or not lo):
                if not behind and not lo and it >= 4 + args.quiet: break
                c.append(q.pop(0))
            else: takeD(c)
        for o in c:
            if o[0] == 'h': assert o[1] > it, ("h load late", o, it)
        plan[it] = c; it += 1
    for j in stay:
        p_ = slot_ if j not in reuse else max(4*reuse[j] + 3 + 2, slot_)
        if j in late_done: p_ = max(p_, late_done[j] + 8)
        p_ = min(p_, 26)
        dmove.setdefault(p_, []).append(j); slot_ = p_ + 2
        assert p_ + 1 < min(i for i in range(56) if hidx(i)[0]*7 + hidx(i)[1] == j), ("D move too late", j, p_)
    CB = args.chkB_i
    assert it <= CB, ("issue plan too long", it)
    pend = []
    def vm_(o):
        if o[0] == 'h': h_load(o[1])
        else: o[1]()
    def body(i, loads):
        for j in dmove.get(i, []):
            ops = d_reads(j, dplace[j])
            pend.append(lambda j=j, f=ops[0]: (g.need_vm([('D', j)]), f()))
            pend.extend(ops[1:])
        side = [lambda o=o: vm_(o) for o in loads] + list(extra.get(i, []))
        for nt in range(4):
            mf(i, nt)
            if side: side.pop(0)()
            elif pend: pend.pop(0)()
            if pend: pend.pop(0)()
        for f in side: f()
    def flush():
        while pend: pend.pop(0)()
        g.need_lg(g.lg[:])
    for i in range(CB):
        body(i, plan.get(i, []))
        if i == args.pollB: poll(vP2, vFl, sH, FS, 'pb')
    if args.st2: g.stamp(1)
    g.need_vm(['pb'])
    if args.st2: g.stamp(2)
    test(vP2, vFl, f"L_fastB{R}")
    sv = list(g.vm), list(g.lg), list(pend)
    poll(vP2, vFl, sH, FS, 'pb2')
    for i in range(CB, 28): body(i, [])
    flush()
    g.need_vm(['pb2'])
    test(vP2, vFl, f"L_pb{R}_ok")
    pr = [vT, vT2, vP1, vP2][:args.npoll]
    e(f"s_mov_b32 s{s_spin}, 0x20000")
    for r_ in pr[:-1]:
        poll(r_, vFl, sH, FS, 'x'); e("s_sleep 1")
    g.lab(f"L_pb{R}")
    for k_ in range(len(pr)):
        poll(pr[k_ - 1], vFl, sH, FS, 'x')
        e(f"s_waitcnt vmcnt({len(pr) - 1})")
        test(pr[k_], vFl, f"L_pb{R}_ok")
    e(f"s_sub_u32 s{s_spin}, s{s_spin}, 1")
    e(f"s_cmp_lg_u32 s{s_spin}, 0")
    e(f"s_cbranch_scc1 L_pb{R}")
    g.lab(f"L_pb{R}_ok")
    g.vm = []
    g.stamp(13)
    for i in range(28, 28 + HD): h_load(i)
    e("s_branch L_B")
    g.lab(f"L_fastB{R}")
    g.vm, g.lg = sv[0], sv[1]; pend[:] = sv[2]
    q = list(range(28, 28 + HD)); per = -(-HD // (28 - CB))
    for i in range(CB, 28):
        body(i, [('h', q.pop(0)) for _ in range(min(per, len(q)))])
    assert not q
    flush()
    assert [t for t in g.vm if t[0] != 'h' or t[1] < 28] == [], g.vm

def main_path(R):
    issued = {m[1:3] for m in mand[:2]}
    rest = list(mand[2:])
    for (_, kind, n, where) in rest[:args.pre - 2]:
        assert (n < NW if kind == 'W' else n < NXB)
        for f in dma4(kind, n, where): f()
        issued.add((kind, n))
    rest = rest[args.pre - 2:]
    g.stamp(2)
    rates = [int(x) for x in args.rates.split(",")]
    slotc = {}
    for n in range(16):
        for i in range(rates[n]): slotc[32*n + START + (32*i)//rates[n]] = 1
    st = dict(credit=0, dnext=0, cur=None, nh=0, j=START)
    dma_q = []; lds_q = []; epi_q = []; misc_q = []
    wfree = {n: n < NW for n in range(16)}; xfree = {k: k < NXB for k in range(8)}
    dblocks = [('P', b_) for b_ in range(NXB, NP)]
    pending = []; dplace = {}; dland = []; dread_done = []; log = []; xdone = set(); xrel = []; inreg = []
    epiA_done = set()
    for mt in range(4):
        ops_ = epi_ops(ACC0, 0, mt, False)
        ops_[-1] = (lambda f=ops_[-1], mt=mt: (f(), epiA_done.add(mt)))
        for f in ops_: epi_q.append((done_at(0, 3) + 6, 'A', f))
    for mt in range(3):
        for f in epi_ops(ACC1, 1, mt, False): epi_q.append((done_at(1, mt) + 8, 'B', f))
    bar_at = {p: n for n, p in bpos.items()}
    def release(kind, i):
        if kind == 'W':
            if i + NW < 16: wfree[i + NW] = True
            else: dblocks.append(('W', i % NW))
        else:
            if i + NXB < 8: xfree[i + NXB] = True
            else: dblocks.append(('P', i % NXB))
        dblocks.sort(key=lambda b_: b_[0] != 'P')
    def barrier(n):
        tags = [('W', n)] + [('X', k) for k in range(8) if first_k[k] == n]
        assert all(t in issued for t in tags), (R, n)
        g.need_vm(tags)
        for k in xrel:
            assert all((k, T, mt) in xdone for T in range(2) for mt in range(4))
            g.need_lg([('x', k, 1, 3)])
            pending.append(('X', k))
        xrel.clear()
        e("s_barrier")
        for kind, i in pending: release(kind, i)
        pending.clear()
        for k in range(8):
            if first_k[k] == n:
                xrel.append(k)
                for T in range(2):
                    for mt in range(4):
                        def f(k=k, T=T, mt=mt):
                            r = ((k % NXK)*8 + T*4 + mt)*4
                            g.ds(f"ds_read_b128 {ar(r)}, v{vRX+T} offset:{(mt >> 1)*PWS + (mt & 1)*2048 + (k % NXB)*4096}", ('x', k, T, mt))
                            xdone.add((k, T, mt))
                        lds_q.append(('x', f))
                lds_q.sort(key=lambda o: o[0] != 'x')
    def wread(i, half):
        n, T, c = uses[i]
        b = wbuf[i] + 2*half
        if i in wneed: assert wneed[i] in epiA_done, ('acc0 not free', i, st['j'])
        off = (n % NW) * 8192 + T * 4096 + (c & 1) * 1024 + 512*half
        g.ds(f"ds_read_b64_tr_b16 v[{b}:{b+1}], v{vRW + (c >> 1)} offset:{off}", ('w', i))
    def pick(j):
        d = dorder[st['dnext']] if st['dnext'] < 14 else None
        can_d = d is not None and dblocks and j >= args.dstart
        for idx, (dl, kind, n, where) in enumerate(rest[:3]):
            ok = wfree[n] if kind == 'W' else xfree[n]
            lead = bpos[dl] - j
            extra = 16 if any(r_[0] == dl for r_ in rest[idx+1:idx+2]) else 0
            minl = max(args.minlead, args.latelead) if dl >= args.latefrom else args.minlead
            urgent = lead < minl + 16 + extra
            if ok and (urgent or not can_d):
                rest.pop(idx); log.append(f"{kind}{n}@{j}(-{lead})")
                assert lead > 20, ("late", R, kind, n, j)
                return kind, n, where
            if not ok and lead < 48: return None
            if ok: break
        if can_d:
            blk = dblocks.pop(0 if d in early_ok else -1); st['dnext'] += 1; dplace[d] = blk; log.append(f"D{d}@{j}")
            return 'D', d, blk
        return None
    barrier(0)
    g.stamp(3)
    for j in range(START, NM):
        n0 = len(g.L)
        if j >= 0:
            i, mt = mseq[j]
            n, T, c = uses[i]
            s_, k = steps[n]
            assert (k, T, mt) in xdone, ("x read late", j)
            tg = [('w', i), ('x', k, T, mt)]
            if j == first_use[i] and i % args.wgrp == 0:
                tg += [('w', i_) for i_ in range(i, min(i + args.wgrp, NU)) if g.lg.count(('w', i_)) == 2]
            if mt == 0: tg += [('x', k, T, m_) for m_ in range(4)]
            g.need_lg(tg)
            acc = accr(ACC0 if s_ == 0 else ACC1, c, mt)
            cc = "0" if (k == 0 and T == 0) else vr(acc)
            e(f"{MF} {vr(acc)}, {vr(wbuf[i])}, {ar(((k % NXK)*8 + T*4 + mt)*4)}, {cc}")
            if i == last_u[n] and j == first_use[i]: pending.append(('W', n))
            if args.stepstamps and j % 64 == 63: g.stamp(4 + j // 64, True)
            nxt_wait = j + 1 < NM and first_use[mseq[j+1][0]] == j + 1 and ('w', mseq[j+1][0]) in g.lg
            n0 = len(g.L) - (1 if nxt_wait else 0)
        used = lambda: len(g.L) - n0
        for i_, h_ in rsched.get(j, []): wread(i_, h_)
        if j in bar_at and bar_at[j] > 0: barrier(bar_at[j])
        if j == args.pollA_at: poll(vP1, vFl, sH, 0, 'pa')
        if j == args.chkA_at:
            assert not misc_q and not rest
            check_or_spin(f"L_pa{R}", vP1, 'pa', vFl, sH, 0)
            g.stamp(8)
        if j >= args.chkA_at and st['nh'] < args.hpre and not dma_q and (j - args.chkA_at) % 4 == 1:
            h_load(st['nh']); st['nh'] += 1
        if j == args.mkat: poll(vP1, vMk, sB, 0, 'mk')
        if j == args.flagA_at:
            assert not any(t_ == 'A' for _, t_, _ in epi_q)
            check_or_spin(f"L_mk{R}", vP1, 'mk', vMk, sB, 0)
            g.need_vm([('hs', 0)])
            flag_store(0)
            g.stamp(4)
        while dland and dland[0][0] <= j and not any(o[0] == 'd' for o in lds_q) and j < NM - 40:
            _, it = dland.pop(0)
            ops = d_reads(it, dplace[it]); inreg.append(it)
            lds_q.append(('d', lambda it=it, f=ops[0]: (g.need_vm([('D', it)]), f())))
            for f in ops[1:-1]: lds_q.append(('d', f))
            lds_q.append(('d', lambda it=it, f=ops[-1]: (f(), dread_done.append((st['j'] + 8, it)))))
        st['j'] = j
        while dread_done and dread_done[0][0] <= j:
            _, it = dread_done.pop(0)
            g.need_lg([('Dr', it)]); dblocks.insert(0, dplace[it])
        if j in slotc: st['credit'] = min(st['credit'] + 1, 2)
        if lds_q and lds_q[0][0] == 'x' and used() < args.cap and len(g.lg) < 13: lds_q.pop(0)[1]()
        if not dma_q and (st['credit'] or any(j + q_ in slotc for q_ in (1, 2, 3))) and j < min(args.chkA_at - 12, args.dstop):
            p_ = pick(j)
            if p_: dma_q = dma_item(*p_); st['cur'] = p_
        while dma_q and dma_q[0][0] == 's' and used() < args.cap: dma_q.pop(0)[1]()
        if dma_q and dma_q[0][0] == 'v' and st['credit'] and used() + args.vcost <= args.cap and j < NM - 4 and not g.L[-1].strip().startswith("s_add_u32 m0"):
            dma_q.pop(0)[1](); st['credit'] -= 1
            n0 -= args.vcost - 1
            if not dma_q:
                issued.add(st['cur'][:2])
                if st['cur'][0] == 'D' and st['cur'][1] in early_ok: dland.append((j + (args.dlat if st['dnext'] <= 4 else args.dlat2), st['cur'][1]))
                if st['cur'][:2] == ('X', 7): rd2_setup()
                if st['cur'][0] == 'W' and not any(r_[1] == 'W' for r_ in rest):
                    n1 = len(g.L); rh_setup(); tl = g.L[n1:]; del g.L[n1:]
                    for q_ in range(0, len(tl), 3): misc_q.append(tl[q_:q_+3])
        if lds_q and len(g.lg) < 13 and used() < args.cap and j % 2: lds_q.pop(0)[1]()
        while epi_q and epi_q[0][0] <= j and used() < args.ecap: epi_q.pop(0)[2]()
        while lds_q and len(g.lg) < 13 and used() < args.cap: lds_q.pop(0)[1]()
        if misc_q and used() == 0: g.L += misc_q.pop(0)
    g.stamp(5)
    for t_ in misc_q: g.L += t_
    assert not rest
    for _, f in lds_q: f()
    for _, _, f in epi_q: f()
    e("s_nop 7")
    for f in epi_ops(ACC1, 1, 3, True): f()
    g.stamp(6)
    g.need_lg(g.lg[:])
    for _, it in dread_done: dblocks.append(dplace[it])
    e("s_barrier")
    for kind, i in pending: release(kind, i)
    for _, f in dma_q: f()
    post = dorder[st['dnext']:]
    sys.stderr.write(f"{R}: " + " ".join(log) + f"\n   inreg {inreg} post {post} nh {st['nh']}\n")
    lateops = []
    for n in post:
        dplace[n] = dblocks.pop(0)
        lateops += dma4('D', n, dplace[n])
    stay = [j for j in range(14) if j not in inreg]
    assert len(set(dplace[j] for j in stay)) == len(stay)
    def do_flagB():
        g.need_vm([('hs', 1)])
        flag_store(1)
        g.stamp(7)
    extra = {1: [tail_setup]}
    nfirst = min(args.dfirst*4, len(lateops))
    fbd = False
    for i_ in range(nfirst):
        if args.flagB_i < 0 and i_ == -args.flagB_i: do_flagB(); fbd = True
        lateops.pop(0)()
    post = post[nfirst//4:]
    if args.flagB_i < 0 and not fbd: do_flagB()
    if args.chkA_at >= NM:
        check_or_spin(f"L_pa{R}", vP1, 'pa', vFl, sH, 0, pre=(lambda: (g.need_vm([('hs', 1)]), flag_store(1))) if args.flagB_i >= 0 else None)
        g.stamp(8)
        while st['nh'] < args.hpre: h_load(st['nh']); st['nh'] += 1
    if args.flagB_i >= 0: extra.setdefault(args.flagB_i, []).append(do_flagB)
    phase2A(R, stay, dplace, lateops, post, st['nh'], extra)
    e("s_branch L_B")

main_path("F")
stay = sorted(reuse); inreg = [j for j in range(14) if j not in stay]; dplace = {j: ('P', q_) for q_, j in enumerate(stay)}

g.lab("L_spare")
g.vm = []; g.lg = []
e(f"s_cmp_lg_u32 s{s_w}, 0")
e("s_cbranch_scc1 L_sp1")
e(f"s_lshl_b32 s{s_a}, s{s_m64}, 13")
e(f"s_add_u32 s{s_a}, s{s_a}, {FBASE}")
e("v_lshlrev_b32 v240, 7, v0")
e("v_mov_b32 v241, 0")
e(f"buffer_store_dword v241, v240, {sr(sH)}, s{s_a} offen sc1")
g.lab("L_sp1")
def sp_touch():
    e("v_min_u32 v240, 55, v0")
    e(f"s_lshl_b32 s{s_a}, s{s_m64}, 2")
    e(f"s_add_u32 s{s_a}, s{s_a}, s{s_w}")
    e(f"s_and_b32 s{s_b}, s{s_a}, 63")
    e(f"s_lshr_b32 s{s_a}, s{s_a}, 6")
    e(f"s_lshl_b32 s{s_a}, s{s_a}, 7")
    e(f"s_add_u32 s{s_a}, s{s_a}, s{s_b}")
    e(f"s_lshl_b32 s{s_a}, s{s_a}, 10")
    e("v_lshrrev_b32 v242, 3, v240")
    e("v_lshlrev_b32 v242, 18, v242")
    e("v_and_b32 v247, 7, v240")
    e("v_lshl_add_u32 v242, v247, 7, v242")
    g.vmem(f"buffer_load_dword v249, v242, {sr(sD)}, s{s_a} offen", "pf")
    e(f"s_add_u32 s{s_a}, s{s_a}, 65536")
    g.vmem(f"buffer_load_dword v250, v242, {sr(sD)}, s{s_a} offen", "pf")
npf = 0
if args.sppf >= 0:
    e(f"s_lshl_b32 s{s_a}, s{s_mb}, 2")
    e(f"s_add_u32 s{s_a}, s{s_a}, s{s_w}")
    e(f"s_add_u32 s{s_a}, s{s_a}, {64*args.sppf}")
    e(f"s_mul_i32 s{s_a}, s{s_a}, 3584")
    e(f"s_and_b32 s{s_b}, s{s_xcd}, 1")
    e(f"s_mul_i32 s{s_b}, s{s_b}, 1792")
    e(f"s_add_u32 s{s_a}, s{s_a}, s{s_b}")
    e(f"s_lshl_b32 s{s_b}, s{s_m64}, 2")
    e(f"s_add_u32 s{s_b}, s{s_b}, s{s_w}")
    e(f"s_lshl_b32 s{s_b}, s{s_b}, 14")
    e(f"s_add_u32 s{s_b}, s{s_b}, {128*args.sppf - 28*1024 + (1 << 32)}")
    e("v_lshlrev_b32 v243, 10, v0")
    e(f"v_add_u32 v243, s{s_b}, v243")
    e(f"v_mov_b32 v252, s{sX}")
    e(f"v_mov_b32 v253, s{sX+1}")
    e("v_mov_b32 v254, 128")
    e("s_mov_b64 exec, 0xfffffff")
    e("v_lshlrev_b32 v243, 7, v0")
    e(f"s_sub_u32 s{s_b}, s{s_a}, {14*128 - 1024}")
    e(f"v_add_u32 v243, s{s_b}, v243")
    e(f"v_mov_b32 v252, s{sU}")
    e(f"v_mov_b32 v253, s{sU+1}")
    e(f"v_mov_b32 v254, {64*3584}")
    e("s_mov_b64 exec, 0x3fff")
    e("v_lshlrev_b32 v243, 7, v0")
    e(f"v_add_u32 v243, s{s_a}, v243")
    e(f"v_mov_b32 v252, s{sG}")
    e(f"v_mov_b32 v253, s{sG+1}")
    e("s_mov_b32 exec_lo, -1")
    e("s_mov_b32 exec_hi, 0xfff")
    e("v_add_co_u32 v252, vcc, v252, v243")
    e("v_addc_co_u32 v253, vcc, 0, v253, vcc")
    for kb in range(args.sppf, 8):
        if kb == args.sppfd:
            e("s_mov_b64 exec, -1"); sp_touch(); npf += 2
            e("s_mov_b32 exec_hi, 0xfff")
        g.vmem("global_load_dword v251, v[252:253], off", "pf"); npf += 1
        if kb < 7:
            e("v_add_co_u32 v252, vcc, v252, v254")
            e("v_addc_co_u32 v253, vcc, 0, v253, vcc")
    e("s_mov_b64 exec, -1")
if not args.nomall and args.spt == 0:
    if not (args.sppf <= args.sppfd < 8): sp_touch(); npf += 2
    e(f"s_waitcnt vmcnt({npf})")
else:
    e("s_waitcnt vmcnt(0)")
e(f"s_cmp_lg_u32 s{s_w}, 0")
e("s_cbranch_scc1 L_sp2")
e(f"s_lshl_b32 s{s_a}, s{s_m64}, 2")
e(f"v_mov_b32 v247, s{s_a}")
e("v_mov_b32 v248, 1")
e("s_mov_b64 exec, 1")
e(f"buffer_store_dword v248, v247, {sr(sB)}, 0 offen sc1")
e("s_mov_b64 exec, -1")
g.lab("L_sp2")
g.stamp(4)
late_addr_setup()
rh_setup()
free2 = [('P', NP - 1), ('P', NP - 2)]
assert len(stay) <= NP - 2
prev = None
for q_, j in enumerate(dorder):
    if not args.nomall and args.spt and q_ == args.spt: sp_touch()
    blk = dplace[j] if j in stay else free2[q_ % 2]
    for f in dma4('D', j, blk):
        f()
        if len(g.vm) > args.sppace:
            e(f"s_waitcnt vmcnt({args.sppace})"); g.vm = g.vm[-args.sppace:] if args.sppace else []
    if prev is not None:
        g.need_vm([('D', prev[0])])
        for f in d_reads(*prev): f()
        g.need_lg(g.lg[:])
    prev = (j, blk) if j in inreg else None
if prev is not None:
    g.need_vm([('D', prev[0])])
    for f in d_reads(*prev): f()
    g.need_lg(g.lg[:])
e(f"s_lshl_b32 s{s_a}, s{s_m64}, 2")
e(f"v_mov_b32 v{vMk}, s{s_a}")
spin("L_smk", vMk, sB, 0, sleep=8)
g.stamp(5)
spin("L_spa", vFl, sH, 0, sleep=args.spsleep)
g.stamp(8)
for i in range(HD): h_load(i)
g.lg = []
phase2A("S", stay, dplace, [], [], HD, {0: [tail_setup]})

g.lab("L_B")
g.stamp(9)
g.vm = [('h', i) for i in range(28, 28 + HD)]; g.lg = []
def wr(lam, a):
    r = ACC2 + lam*16 + a*4
    g.ds(f"ds_write_b128 v{vTW}, {vr(r)} offset:{(lam-1)*4096 + a*1024}", ('wr', lam))
def rd(sl, a):
    g.ds(f"ds_read_b128 {vr(ACC2 + 16 + 4*(sl*4+a))}, v{vTR+sl} offset:{a*1024}", ('rd', sl*4+a))
def padd(d, t):
    e(f"v_pk_add_f32 v[{d}:{d+1}], v[{d}:{d+1}], v[{t}:{t+1}]")
    e(f"v_pk_add_f32 v[{d+2}:{d+3}], v[{d+2}:{d+3}], v[{t+2}:{t+3}]")
def sync():
    g.need_lg(g.lg[:]); e("s_barrier")
    for a in range(4):
        for sl in range(3): rd(sl, a)
def sum_(a):
    g.need_lg([('rd', 8 + a)])
    padd(ACC2 + 16 + 4*a, ACC2 + 32 + 4*a); padd(ACC2 + 16 + 4*a, ACC2 + 48 + 4*a)
side = {}
for lam in (1, 2):
    for a in range(4): side.setdefault((28 + 7*lam + 2 + a, 1), []).append(lambda lam=lam, a=a: wr(lam, a))
for a in range(4): side.setdefault((51, a), []).append(lambda a=a: wr(3, a))
side.setdefault((53, 1), []).append(sync)
nxt = 28 + HD
for i in range(28, 56):
    for nt in range(4):
        mf(i, nt)
        if nt == 0 and nxt < 56: h_load(nxt); nxt += 1
        for f in side.get((i, nt), []): f()
g.stamp(10)
for a in range(4): sum_(a)
for a in range(4): padd(ACC2 + 4*a, ACC2 + 16 + 4*a)
for i in range(8):
    e(f"v_cvt_pk_bf16_f32 v{EPI+i}, v{ACC2+2*i}, v{ACC2+2*i+1}")
e("s_nop 1")
e(f"v_permlane16_swap_b32 v{EPI}, v{EPI+2}")
e(f"v_permlane16_swap_b32 v{EPI+1}, v{EPI+3}")
e(f"v_permlane16_swap_b32 v{EPI+4}, v{EPI+6}")
e(f"v_permlane16_swap_b32 v{EPI+5}, v{EPI+7}")
e(f"buffer_store_dwordx4 {vr(EPI)}, v{vTO}, {sr(sO)}, s{s_oadr} offen {args.outflags}")
e(f"buffer_store_dwordx4 {vr(EPI+4)}, v{vTO}, {sr(sO)}, s{s_oadr} offen offset:64 {args.outflags}")
if args.stamps:
    g.stamp(11)
    e("s_waitcnt vmcnt(0)")
    g.stamp(12)
    e("s_waitcnt lgkmcnt(0)")
if args.diag:
    a_, b_, K_, wg_ = map(int, args.diag.split(","))
    if wg_ >= 0: e(f"s_cmp_lg_u32 s2, {wg_}")
    else: e(f"s_cmp_eq_u32 s{s_col}, 0")
    e("s_cbranch_scc1 L_end")
    e(f"s_sub_u32 s46, s{s_st+2*b_}, s{s_st+2*a_}")
    e(f"s_mul_i32 s46, s46, {K_}")
    e(f"s_add_u32 s46, s46, 5000")
    e(f"s_min_u32 s46, s46, 100000")
    g.lab("L_diag")
    e("s_memrealtime s[48:49]")
    e("s_waitcnt lgkmcnt(0)")
    e(f"s_sub_u32 s47, s48, s{s_st}")
    e("s_cmp_lt_u32 s47, s46")
    e("s_cbranch_scc1 L_diag")
elif args.stamps:
    NS = 14
    for i in range(2*NS): e(f"v_mov_b32 v{64+i}, s{s_st+i}")
    e(f"s_lshl_b32 s46, s2, 2")
    e(f"s_add_u32 s46, s46, s{s_w}")
    e(f"s_mul_i32 s46, s46, {NS*8}")
    e(f"s_add_u32 s46, s46, {STAMP_OFF}")
    e("v_mov_b32 v5, 0")
    e("s_mov_b64 exec, 1")
    for i in range(NS//2): e(f"buffer_store_dwordx4 {vr(64+4*i)}, v5, {sr(sH)}, s46 offen offset:{16*i}")
g.lab("L_end")
e("s_endpgm")
g.lab("L_codeend")

hdr = f"""; Fused bilinear GLU: out = ((x Wg) * (x Wu)) Wd   (generated)
; @launch grid=(256,1,1) block=(256,1,1) lds={LDS}
.amdgcn_target "amdgcn-amd-amdhsa--gfx950"
.text
.globl {KN}
.p2align 8
.type {KN},@function
{KN}:"""
tail = f""".section .rodata,"a"
.p2align 6
.amdhsa_kernel {KN}
  .amdhsa_next_free_vgpr 512
  .amdhsa_next_free_sgpr 102
  .amdhsa_accum_offset 256
  .amdhsa_group_segment_fixed_size 0
  .amdhsa_kernarg_size 56
  .amdhsa_user_sgpr_count 2
  .amdhsa_user_sgpr_kernarg_segment_ptr 1
  .amdhsa_system_sgpr_workgroup_id_x 1
.end_amdhsa_kernel"""
print(hdr); print("\n".join(g.L)); print(tail)
```

```python
import sys, argparse

ap = argparse.ArgumentParser()
A = ap.add_argument
A("--stamps", action="store_true"); A("--stepstamps", action="store_true"); A("--cycstamps", action="store_true")
A("--st2", action="store_true"); A("--diag", default="")
A("--la", type=int, default=16)
A("--cap", type=int, default=2); A("--ecap", type=int, default=4)
A("--outflags", default=""); A("--noprefetch", action="store_true"); A("--nomall", action="store_true")
A("--order", default="0101001010001111"); A("--nxk", type=int, default=4)
A("--merge", type=int, default=2); A("--mtm", type=int, default=8)
A("--hdepth", type=int, default=10); A("--pollB", type=int, default=13); A("--chkB_i", type=int, default=23)
A("--mkat", type=int, default=256); A("--spsleep", type=int, default=8); A("--sppace", type=int, default=4)
A("--flagA_at", type=int, default=442); A("--pollA_at", type=int, default=496); A("--chkA_at", type=int, default=512)
A("--hpre", type=int, default=10); A("--dfirst", type=int, default=1); A("--flagB_i", type=int, default=0)
A("--quiet", type=int, default=0); A("--dstop", type=int, default=496); A("--npoll", type=int, default=3); A("--per", type=int, default=2)
A("--nw", type=int, default=5); A("--nxb", type=int, default=3)
A("--rates", default="7,7,7,8,8,8,8,8,8,8,8,8,7,7,7,7"); A("--pre", type=int, default=4)
A("--minlead", type=int, default=56); A("--dstart", type=int, default=120); A("--dlat", type=int, default=64)
A("--latelead", type=int, default=80); A("--latefrom", type=int, default=13)
A("--spt", type=int, default=0)
A("--early", type=int, default=16)
A("--dorder", default="0,1,7,8,2,3,4,5,6,9,10,11,12,13")
A("--oldmerge", action="store_true")
A("--dlat2", type=int, default=28)
A("--vcost", type=int, default=2)
A("--wgrp", type=int, default=2)
A("--sppf", type=int, default=-1)
A("--sppfd", type=int, default=99)
A("--perm", default="01234567,03456712,05671234,07123456")
A("--pfq", type=int, default=1)
A("--mergeA", type=int, default=0)
A("--s3pf", type=int, default=0)
A("--pollmode", default="atomic"); A("--krot", type=int, default=1); A("--nos3", action="store_true")
args = ap.parse_args()
if args.diag: args.stamps = True
assert args.pollA_at > args.flagA_at > args.mkat

KN = "standalone__glu_gated_bilinear__prompt_kernel"
NW = args.nw; NP = 10 - NW; NXB = args.nxb
HFS = NW * 8192; PB = 2 * HFS; PWS = NP * 4096; LDS = PB + 4 * PWS
assert LDS == 163840 and NP >= 3
FBASE = 0x1000000; STAMP_OFF = 0x8000000; FS = 1024
HM, HQ, HS, HP = 458752, 114688, 57344, 8192
LA = args.la; NBUF = 8; NM = 512

sX, sG, sU, sD, sH, sO, sB = 8, 12, 16, 20, 24, 28, 32
s_w, s_mb, s_fb, s_m64, s_n64 = 36, 37, 38, 39, 40
s_xoff, s_woff, s_doff = 41, 42, 43
s_mP, s_mW = 44, 45
s_t0, s_t1, s_t2, s_t3 = 46, 47, 48, 49
s_hst, s_spin, s_hld, s_flag = 50, 51, 52, 53
s_oadr, s_xcd, s_col, s_c = 54, 55, 56, 57
s_a, s_b = 58, 59
s_st = 60
s_rh, s_rd = 88, 95
s_kr = 6
wtab = [88, 89, 90, 91, 92, 93, 94, 49]
vX, vW, vD = 1, 5, 9
vRW, vRX, vRD, vH = 13, 15, 17, 21
vL16, vFl, vMk, vT, vT2, vP1, vP2 = 25, 26, 27, 28, 29, 30, 31
vRD2 = 1
vTR, vTW, vTO = 5, 8, 13
WBUF = 32
ACC0, ACC1 = 64, 128
ACC2 = ACC0
HB = 128
EPI = 240
NXK = args.nxk
NREG = 3 + (256 - 32*NXK)//16

class G:
    def __init__(s): s.L = []; s.lg = []; s.vm = []
    def e(s, t): s.L.append("    " + t)
    def lab(s, t): s.L.append(t + ":")
    def ds(s, t, tag):
        if len(s.lg) >= 14:
            s.e("s_waitcnt lgkmcnt(12)"); s.lg = s.lg[-12:]
        s.e(t); s.lg.append(tag)
    def vmem(s, t, tag): s.e(t); s.vm.append(tag); assert len(s.vm) <= 63, "vm overflow"
    def need_lg(s, tags):
        idx = max((i for i, t in enumerate(s.lg) if t in tags), default=-1)
        if idx >= 0:
            s.e(f"s_waitcnt lgkmcnt({len(s.lg)-1-idx})"); s.lg = s.lg[idx+1:]
    def need_vm(s, tags):
        idx = max((i for i, t in enumerate(s.vm) if t in tags), default=-1)
        if idx >= 0:
            s.e(f"s_waitcnt vmcnt({len(s.vm)-1-idx})"); s.vm = s.vm[idx+1:]
    def stamp(s, k, force=False):
        if args.stepstamps and 4 <= k <= 11 and not force: return
        if args.stamps: s.e(("s_memtime" if args.cycstamps else "s_memrealtime") + f" s[{s_st+2*k}:{s_st+2*k+1}]")
g = G(); e = g.e
def vr(b, n=4): return f"v[{b}:{b+n-1}]"
def ar(b, n=4): return f"a[{b}:{b+n-1}]"
def sr(b, n=4): return f"s[{b}:{b+n-1}]"
MF = "v_mfma_f32_16x16x32_bf16"

order = [int(c) for c in args.order]
assert len(order) == 16 and sum(order) == 8
steps = []; cnt = [0, 0]
for s_ in order: steps.append((s_, cnt[s_])); cnt[s_] += 1
first_k = {}
for n, (s_, k) in enumerate(steps): first_k.setdefault(k, n)
last_k = {k: max(n for n, (s_, kk) in enumerate(steps) if kk == k) for k in range(8)}
uses = []
mseq = []
nm = 16 - args.merge
lastA = max(n for n in range(16) if steps[n][0] == 0)
regA = list(range(lastA + 1 - args.mergeA, lastA + 1)); regB = list(range(nm, 16))
assert all(steps[n][0] == 0 for n in regA) and all(steps[n][0] == 1 for n in regB) and args.merge <= 2 and args.mergeA <= 2
def accr(acc, c, mt): return acc + (c*4 + mt)*4
wbuf = {}; wneed = {}; region_of = {}; ringprev = {}; ring = []
n = 0
while n < 16:
    reg = regA if regA and n == regA[0] else (regB if regB and n == regB[0] else None)
    if reg:
        b0 = len(uses)
        for n_ in reg:
            for T in range(2):
                for c in range(4):
                    q_ = len(uses) - b0; i_ = len(uses); uses.append((n_, T, c)); region_of[i_] = (b0, 8*len(reg))
                    if reg is regB: wbuf[i_] = ("v", accr(ACC0, q_ % 4, q_ // 4)); wneed[i_] = q_ // 4
                    else: wbuf[i_] = ("a", 192 + 4*q_)
        mseq += [(i, mt) for mt in range(4) for i in range(b0, len(uses))]
        n = reg[-1] + 1
    else:
        for T in range(2):
            for c in range(4):
                i_ = len(uses); uses.append((n, T, c)); mseq += [(i_, mt) for mt in range(4)]
                wbuf[i_] = ("v", WBUF + (len(ring) % NBUF)*4)
                if len(ring) >= NBUF: ringprev[i_] = ring[-NBUF]
                ring.append(i_)
        n += 1
assert len(mseq) == NM
NU = len(uses)
first_use = {}
for j_, (i_, mt_) in enumerate(mseq): first_use.setdefault(i_, j_)
last_use = {i_: j_ for j_, (i_, mt_) in enumerate(mseq)}
rsched = {}; rpos = {}
for i_ in range(NU):
    p_ = first_use[i_] - LA
    if i_ in region_of:
        b0, ln = region_of[i_]
        p_ = first_use[b0] - LA - args.early + ((i_ - b0)*(ln + args.early))//ln
    if i_ in ringprev: p_ = max(p_, last_use[ringprev[i_]] + 1)
    p2 = p_ + (2 if i_ not in region_of else 1)
    assert p2 <= first_use[i_] - 5, ("w read late", i_)
    rsched.setdefault(p_, []).append((i_, 0)); rsched.setdefault(p2, []).append((i_, 1)); rpos[i_] = p_
endA = max(last_use[i] for i in range(NU) if uses[i][0] == lastA)
xlast = {k: max(j_ for j_, (i, mt) in enumerate(mseq) if steps[uses[i][0]][1] == k) for k in range(8)}
first_u = {n: min(i for i, u in enumerate(uses) if u[0] == n) for n in range(16)}
last_u = {n: max(i for i, u in enumerate(uses) if u[0] == n) for n in range(16)}
bpos = {n: rpos[first_u[n]] - 1 for n in range(16)}
START = -LA
def done_at(s_, mt): return max(j for j, (i, m_) in enumerate(mseq) if m_ == mt and steps[uses[i][0]][0] == s_)
busy = sorted({steps[uses[i][0]][1] % NXK for j_, (i, mt) in enumerate(mseq) if j_ >= min(args.chkA_at, NM - 1) - 4})
slots_order = [s_ for s_ in range(NXK) if s_ not in busy] + busy
xregs = [32*s_ + 4*q for s_ in slots_order for q in range(8)]
hreg = xregs[:28]
NFREE = 8*(NXK - len(busy))
spare16 = xregs[28:]
dorder = [int(x) for x in args.dorder.split(",")]
assert sorted(dorder) == list(range(14))
ahomes = [("a", 32*NXK + 16*j) for j in range(NREG - 3)]
phomes = []
for j in range(len(spare16)//4):
    grp = spare16[4*j:4*j+4]
    assert grp == [grp[0] + 4*q for q in range(4)]
    phomes.append(("a", grp[0]))
homes = {j: ("v", 192 + 16*j) for j in range(3)}
early_ok = {0, 1, 2}
reuse = {}; rq = []
for j in dorder:
    if j < 3: continue
    if ahomes: homes[j] = ahomes.pop(0); early_ok.add(j)
    elif phomes: homes[j] = phomes.pop(0)
    else: rq.append(j)
for q_, j in enumerate(sorted(rq)):
    assert j >= 7 and 3 + q_ in homes
    reuse[j] = 3 + q_; homes[j] = homes[3 + q_]
assert args.hpre <= NFREE or args.chkA_at >= NM

e("s_cmp_ge_u32 s2, 256")
e("s_cbranch_scc1 L_end")
if args.stamps:
    for i in range(1, 14): e(f"s_mov_b64 s[{s_st+2*i}:{s_st+2*i+1}], 0")
g.stamp(0)
e("s_load_dwordx8 s[88:95], s[0:1], 0")
e("s_load_dwordx4 s[96:99], s[0:1], 32")
e("s_load_dwordx2 s[100:101], s[0:1], 48")
if not args.noprefetch:
    e("s_getpc_b64 s[4:5]")
    e("s_and_b32 s4, s4, 0xffffff00")
    e(f"s_mov_b32 s6, L_codeend-{KN}")
    e("s_mov_b32 s7, 0x20000")
    if args.pfq == 1:
        e("s_bfe_u32 s3, s2, 0x20003")
        e("s_lshl_b32 s3, s3, 7")
        e("v_lshrrev_b32 v30, 6, v0")
        e("v_and_b32 v29, 15, v0")
        e("v_lshl_add_u32 v30, v30, 4, v29")
        e("v_lshlrev_b32 v30, 9, v30")
        e("s_mov_b64 exec, 0xffff")
        g.vmem("buffer_load_dword v31, v30, s[4:7], s3 offen", "pf")
        e("s_mov_b64 exec, -1")
    elif args.pfq == 2:
        e("s_cmp_lt_u32 s2, 32")
        e("s_cselect_b32 s6, s6, 0")
        e("v_lshlrev_b32 v30, 7, v0")
        g.vmem("buffer_load_dword v31, v30, s[4:7], 0 offen", "pf")
    else:
        e("v_lshlrev_b32 v30, 7, v0")
        g.vmem("buffer_load_dword v31, v30, s[4:7], 0 offen", "pf")
e("v_lshrrev_b32 v30, 6, v0")
e("v_and_b32 v0, 63, v0")
e(f"v_readfirstlane_b32 s{s_w}, v30")
e(f"s_and_b32 s{s_xcd}, s2, 7")
e(f"s_bfe_u32 s{s_c}, s2, 0x20003")
e(f"s_lshr_b32 s{s_col}, s2, 5")
e(f"s_lshl_b32 s{s_m64}, s{s_xcd}, 2")
e(f"s_add_u32 s{s_m64}, s{s_m64}, s{s_c}")
e(f"s_lshr_b32 s{s_mb}, s{s_xcd}, 1")
e(f"s_lshl_b32 s{s_mb}, s{s_mb}, 2")
e(f"s_add_u32 s{s_mb}, s{s_mb}, s{s_c}")
e(f"s_and_b32 s{s_fb}, s{s_xcd}, 1")
e(f"s_mul_i32 s{s_fb}, s{s_fb}, 7")
e(f"s_add_u32 s{s_fb}, s{s_fb}, s{s_col}")
e(f"s_sub_u32 s{s_fb}, s{s_fb}, 1")
e(f"s_xor_b32 s{s_n64}, s{s_col}, 3")
e("v_lshrrev_b32 v240, 3, v0")
e("v_and_b32 v241, 7, v0")
e("v_lshrrev_b32 v242, 4, v0")
e(f"s_lshl_b32 s{s_a}, s{s_w}, 15")
e("v_xor_b32 v243, v241, v242")
e("v_lshlrev_b32 v243, 4, v243")
e(f"v_lshl_add_u32 v{vX}, v240, 10, v243")
e(f"v_add_u32 v{vX}, s{s_a}, v{vX}")
e(f"v_xor_b32 v{vX+1}, 64, v{vX}")
e(f"v_add_u32 v{vX+1}, {7*1024}, v{vX+1}")
e(f"v_add_u32 v{vX+2}, {14*1024}, v{vX}")
e(f"v_add_u32 v{vX+3}, {14*1024}, v{vX+1}")
e(f"s_lshr_b32 s{s_a}, s{s_w}, 1")
e(f"s_lshl_b32 s{s_a}, s{s_a}, 5")
e(f"s_and_b32 s{s_b}, s{s_w}, 1")
e(f"s_lshl_b32 s{s_t0}, s{s_b}, 3")
e(f"s_add_u32 s{s_a}, s{s_a}, s{s_t0}")
e(f"s_mul_i32 s{s_a}, s{s_a}, 3584")
e(f"s_lshl_b32 s{s_b}, s{s_b}, 6")
e(f"v_mul_u32_u24 v{vW}, 3584, v240")
e("v_and_b32 v244, 1, v242")
e("v_lshlrev_b32 v245, 4, v241")
e("v_lshlrev_b32 v246, 5, v244")
e("v_xor_b32 v246, v245, v246")
e(f"v_xor_b32 v246, s{s_b}, v246")
e(f"v_add3_u32 v{vW}, v{vW}, v246, s{s_a}")
e(f"v_add_u32 v{vW+2}, {16*3584-2048}, v{vW}")
e(f"v_add_u32 v{vW+1}, 128, v{vW}")
e(f"v_add_u32 v{vW+3}, 128, v{vW+2}")
e(f"s_lshr_b32 s{s_a}, s{s_w}, 1")
e(f"s_lshl_b32 s{s_a}, s{s_a}, 17")
e(f"s_and_b32 s{s_b}, s{s_w}, 1")
e(f"s_lshl_b32 s{s_b}, s{s_b}, 15")
e(f"s_add_u32 s{s_a}, s{s_a}, s{s_b}")
e("v_lshlrev_b32 v246, 5, v242")
e("v_xor_b32 v246, v245, v246")
e(f"v_lshl_add_u32 v{vD}, v240, 10, v246")
e(f"v_add_u32 v{vD}, s{s_a}, v{vD}")
for i in range(1, 4): e(f"v_add_u32 v{vD+i}, {7*1024*i}, v{vD}")
e(f"s_mul_i32 s{s_mP}, s{s_w}, {PWS}")
e(f"s_add_u32 s{s_mP}, s{s_mP}, {PB}")
e(f"s_and_b32 s{s_b}, s{s_w}, 1")
e(f"s_mul_i32 s{s_mW}, s{s_b}, {HFS}")
e(f"s_lshr_b32 s{s_a}, s{s_w}, 1")
e(f"s_lshl_b32 s{s_a}, s{s_a}, 12")
e(f"s_add_u32 s{s_mW}, s{s_mW}, s{s_a}")
perms = [[int(c) for c in p] for p in args.perm.split(",")]
assert all(sorted(p) == list(range(8)) for p in perms) and len(perms) in (4, 8)
pk = [sum(v << (4*i) for i, v in enumerate(p)) for p in perms]
if len(perms) == 4:
    e(f"s_lshr_b32 s{s_a}, s{s_xcd}, 1")
    e(f"s_and_b32 s{s_b}, s{s_xcd}, 1")
    e(f"s_lshl_b32 s{s_b}, s{s_b}, 1")
    e(f"s_xor_b32 s{s_a}, s{s_a}, s{s_b}")
else:
    e(f"s_mov_b32 s{s_a}, s{s_xcd}")
e(f"s_mov_b32 s{s_kr}, {pk[0]}")
for q_ in range(1, len(perms)):
    e(f"s_cmp_eq_u32 s{s_a}, {q_}")
    e(f"s_cselect_b32 s{s_kr}, {pk[q_]}, s{s_kr}")
e(f"s_lshl_b32 s{s_xoff}, s{s_mb}, 17")
e(f"s_lshl_b32 s{s_woff}, s{s_fb}, 8")
e(f"s_and_b32 s{s_t2}, s{s_kr}, 7")
e(f"s_mul_i32 s{s_t2}, s{s_t2}, {64*3584}")
e(f"s_add_u32 s{s_t2}, s{s_t2}, s{s_woff}")
e(f"s_lshl_b32 s{s_doff}, s{s_n64}, 7")
for b, n in ((sX, 2048*1024), (sG, 512*3584), (sU, 512*3584+1024), (sD, 1792*1024), (sH, 0x10000000), (sO, 2048*1024), (sB, 256)):
    e(f"s_mov_b32 s{b+2}, {n}")
    e(f"s_mov_b32 s{b+3}, 0x20000")
e("s_waitcnt lgkmcnt(0)")
e(f"s_mov_b64 s[{sX}:{sX+1}], s[88:89]")
e(f"s_mov_b64 s[{sG}:{sG+1}], s[90:91]")
e(f"s_sub_u32 s{sU}, s92, 1024")
e(f"s_subb_u32 s{sU+1}, s93, 0")
e(f"s_mov_b64 s[{sD}:{sD+1}], s[94:95]")
e(f"s_mov_b64 s[{sO}:{sO+1}], s[96:97]")
e(f"s_mov_b64 s[{sB}:{sB+1}], s[98:99]")
e(f"s_mov_b64 s[{sH}:{sH+1}], s[100:101]")
e(f"s_mov_b32 s{wtab[0]}, s{s_t2}")
g.stamp(1)
def wtab_setup():
    for k in range(1, 8):
        e(f"s_bfe_u32 s{s_a}, s{s_kr}, {0x30000 + 4*k}")
        e(f"s_mul_i32 s{s_a}, s{s_a}, {64*3584}")
        e(f"s_add_u32 s{wtab[k]}, s{s_a}, s{s_woff}")
def rh_setup():
    for jj in range(7):
        e(f"s_sub_u32 s{s_a}, s{s_rd+jj}, s{s_doff}")
        e(f"s_lshr_b32 s{s_a}, s{s_a}, 5")
        e(f"s_add_u32 s{s_rh+jj}, s{s_a}, s{s_hld}")

def dma_item(kind, n, where):
    m0 = (s_mP, where[1] * 4096) if where[0] == 'P' else (s_mW, where[1] * 8192)
    ops = []
    sc = [f"s_add_u32 m0, s{m0[0]}, {m0[1]}"]
    so = s_t0
    if kind == 'X':
        srd = [sX]*4; vb = [vX, vX+1, vX+2, vX+3]; sc = [f"s_bfe_u32 s{s_t0}, s{s_kr}, {0x30000 + 4*n}", f"s_lshl_b32 s{s_t0}, s{s_t0}, 7"] + sc + [f"s_add_u32 s{s_t0}, s{s_t0}, s{s_xoff}"]
    elif kind == 'W':
        o_ = steps[n][0]; srd = [sG, sU, sG, sU]; vb = [vW+o_, vW+o_, vW+2+o_, vW+2+o_]; so = wtab[steps[n][1]]
    else:
        srd = [sD]*4; vb = [vD, vD+1, vD+2, vD+3]
        if n < 7: so = s_rd + n
        else: sc.append(f"s_add_u32 s{s_t0}, s{s_rd + n % 7}, 65536")
    for t in sc: ops.append(('s', lambda t=t: e(t)))
    for i in range(4):
        off = f" offset:{1024*i}" if i else ""
        def ld(i=i, off=off):
            if g.L[-1].strip().startswith("s_add_u32 m0"): e("s_nop 0")
            g.vmem(f"buffer_load_dwordx4 v{vb[i]}, {sr(srd[i])}, s{so} offen{off} lds", (kind, n))
        ops.append(('v', ld))
    return ops
def dma4(kind, n, where):
    ops = dma_item(kind, n, where); pre = [f for k, f in ops if k == 's']; ld = [f for k, f in ops if k == 'v']
    return [lambda: ([f() for f in pre], ld[0]())] + ld[1:]

def h_pattern(vdst, s_idx):
    e(f"v_lshlrev_b32 v{vdst}, 4, v0")
    if args.nos3: return
    e(f"s_and_b32 s{s_idx}, s{s_idx}, 3")
    e(f"s_cmp_eq_u32 s{s_idx}, 3")
    e(f"s_cselect_b32 s{s_idx}, 4, s{s_idx}")
    e(f"s_lshl_b32 s{s_idx}, s{s_idx}, 7")
    e(f"s_add_u32 s{s_idx}, s{s_idx}, {4096 - 384}")
    e("s_mov_b32 exec_lo, 0xff000000")
    e("s_mov_b32 exec_hi, 0")
    e(f"v_add_u32 v{vdst}, s{s_idx}, v{vdst}")
    e("s_mov_b64 exec, -1")

def late_addr_setup():
    e("v_lshrrev_b32 v240, 5, v0")
    e("v_bfe_u32 v241, v0, 4, 1")
    e("v_bfe_u32 v242, v0, 2, 2")
    e("v_and_b32 v243, 3, v0")
    e("v_bfe_u32 v244, v0, 3, 1")
    e("v_lshlrev_b32 v243, 3, v243")
    e("v_lshl_add_u32 v243, v242, 7, v243")
    e("v_lshl_or_b32 v245, v241, 1, v244")
    e("v_lshl_add_u32 v243, v245, 5, v243")
    e(f"v_mul_u32_u24 v{vRW}, {HFS}, v241")
    e(f"v_lshl_add_u32 v{vRW}, v240, 11, v{vRW}")
    e(f"v_add_u32 v{vRW}, v{vRW}, v243")
    e(f"s_and_b32 s{s_a}, s{s_w}, 1")
    e(f"s_lshl_b32 s{s_a}, s{s_a}, 6")
    e(f"v_xor_b32 v{vRW}, s{s_a}, v{vRW}")
    e(f"v_xor_b32 v{vRW+1}, 32, v{vRW}")
    e("v_lshrrev_b32 v246, 4, v0")
    e("v_lshl_add_u32 v245, v246, 9, v243")
    e(f"v_add_u32 v{vRD}, s{s_mP}, v245")
    for nt in range(1, 4): e(f"v_xor_b32 v{vRD+nt}, {32*nt}, v{vRD}")
    e("v_and_b32 v245, 15, v0")
    e("v_bfe_u32 v247, v0, 1, 3")
    e("v_xor_b32 v247, v247, v246")
    e("v_lshlrev_b32 v247, 4, v247")
    e("v_lshl_add_u32 v245, v245, 7, v247")
    e(f"s_lshr_b32 s{s_a}, s{s_w}, 1")
    e(f"s_mul_i32 s{s_a}, s{s_a}, {2*PWS}")
    e(f"s_add_u32 s{s_a}, s{s_a}, {PB}")
    e(f"v_add_u32 v{vRX}, s{s_a}, v245")
    e(f"v_xor_b32 v{vRX+1}, 64, v{vRX}")
    e(f"s_add_u32 s{s_a}, s{s_m64}, s{s_w}")
    h_pattern(vH, s_a)
    e(f"s_lshl_b32 s{s_a}, s{s_w}, 10")
    e(f"v_add_u32 v{vH}, s{s_a}, v{vH}")
    for lam in range(1, 4): e(f"v_xor_b32 v{vH+lam}, {1024*lam}, v{vH}")
    e(f"s_mul_i32 s{s_hld}, s{s_m64}, {HM}")
    e(f"s_mul_i32 s{s_a}, s{s_w}, {HQ}")
    e(f"s_add_u32 s{s_hld}, s{s_hld}, s{s_a}")
    e(f"v_add_u32 v{vFl}, 5, v0")
    e(f"v_lshrrev_b32 v{vFl}, 3, v{vFl}")
    e(f"v_add_u32 v{vFl}, v{vFl}, v0")
    e(f"v_min_u32 v{vFl}, 7, v{vFl}")
    e(f"v_lshlrev_b32 v{vFl}, 7, v{vFl}")
    e(f"s_lshl_b32 s{s_a}, s{s_m64}, 13")
    e(f"s_lshl_b32 s{s_b}, s{s_w}, 11")
    e(f"s_add_u32 s{s_a}, s{s_a}, s{s_b}")
    e(f"s_add_u32 s{s_a}, s{s_a}, {FBASE}")
    e(f"v_add_u32 v{vFl}, s{s_a}, v{vFl}")
    e(f"s_lshl_b32 s{s_a}, s{s_c}, 1")
    e(f"s_add_u32 s{s_a}, s{s_a}, s{s_col}")
    e(f"s_sub_u32 s{s_b}, s{s_a}, 7")
    e(f"s_cmp_ge_u32 s{s_a}, 7")
    e(f"s_cselect_b32 s{s_a}, s{s_b}, s{s_a}")
    for jj in range(7):
        e(f"s_lshl_b32 s{s_b}, s{s_a}, 18")
        e(f"s_add_u32 s{s_rd+jj}, s{s_b}, s{s_doff}")
        if jj < 6:
            e(f"s_add_u32 s{s_a}, s{s_a}, 1")
            e(f"s_cmp_eq_u32 s{s_a}, 7")
            e(f"s_cselect_b32 s{s_a}, 0, s{s_a}")
    e(f"s_lshl_b32 s{s_a}, s{s_m64}, 16")
    e(f"s_lshl_b32 s{s_b}, s{s_w}, 14")
    e(f"s_add_u32 s{s_a}, s{s_a}, s{s_b}")
    e(f"s_add_u32 s{s_oadr}, s{s_a}, s{s_doff}")

def rd2_setup():
    e(f"s_sub_u32 s{s_a}, s{s_mW}, s{s_mP}")
    for nt in range(4): e(f"v_add_u32 v{vRD2+nt}, s{s_a}, v{vRD+nt}")

def d_reads(item, where):
    dfile, dstbase = homes[item]
    ops = []
    for nt in range(4):
        for p in range(2):
            def f(nt=nt, p=p):
                if where[0] == 'P': va = vRD + nt; off = where[1]*4096
                else: va = vRD2 + nt; off = where[1]*8192
                off += p*2048
                r = dstbase + nt*4 + 2*p
                g.ds(f"ds_read_b64_tr_b16 {dfile}[{r}:{r+1}], v{va} offset:{off}", ('Dr', item))
            ops.append(f)
    return ops

def pmask(vaddr): return 3 if vaddr == vMk else 0x7f
def poll(vdst, vaddr, srd, off, tag):
    o = f" offset:{off}" if off else ""
    e(f"s_mov_b64 exec, {pmask(vaddr)}")
    if args.pollmode == "atomic" and vaddr != vMk:
        e(f"v_mov_b32 v{vdst}, 0")
        g.vmem(f"buffer_atomic_add v{vdst}, v{vaddr}, {sr(srd)}, 0 offen{o} sc0 sc1", tag)
    else:
        g.vmem(f"buffer_load_dword v{vdst}, v{vaddr}, {sr(srd)}, 0 offen{o} sc1", tag)
    e("s_mov_b64 exec, -1")
def test(vres, vaddr, target):
    e(f"v_cmp_eq_u32 vcc, 0, v{vres}")
    e(f"s_and_b32 s{s_t1}, vcc_lo, {pmask(vaddr)}")
    e(f"s_cbranch_scc0 {target}")
def spin(label, vaddr, srd, off, sleep=0):
    e(f"s_mov_b32 s{s_spin}, 0x40000")
    g.lab(label)
    poll(vT, vaddr, srd, off, 'sp')
    e("s_waitcnt vmcnt(0)")
    test(vT, vaddr, f"{label}_ok")
    if sleep: e(f"s_sleep {sleep}")
    e(f"s_sub_u32 s{s_spin}, s{s_spin}, 1")
    e(f"s_cmp_lg_u32 s{s_spin}, 0")
    e(f"s_cbranch_scc1 {label}")
    g.lab(label + "_ok")
    g.vm = []
def check_or_spin(label, vres, tag, vaddr, srd, off, pre=None):
    g.need_vm([tag])
    test(vres, vaddr, f"{label}_ok")
    save = list(g.vm)
    if pre: pre()
    spin(label, vaddr, srd, off)
    g.vm = save

def epi_ops(acc, s, mt, packed):
    ops = []; d = EPI + 4*mt
    for ql in range(2):
        a = accr(acc, 2*ql, mt); b = accr(acc, 2*ql + 1, mt)
        if packed:
            for i in range(2): ops.append(lambda a=a, b=b, i=i: e(f"v_pk_mul_f32 v[{a+2*i}:{a+2*i+1}], v[{a+2*i}:{a+2*i+1}], v[{b+2*i}:{b+2*i+1}]"))
        else:
            for i in range(4): ops.append(lambda a=a, b=b, i=i: e(f"v_mul_f32 v{a+i}, v{a+i}, v{b+i}"))
    for ql in range(2):
        a = accr(acc, 2*ql, mt)
        for i in range(2): ops.append(lambda a=a, i=i, ql=ql: e(f"v_cvt_pk_bf16_f32 v{d+2*ql+i}, v{a+2*i}, v{a+2*i+1}"))
    if mt == 0 and s == 1: ops.append(lambda: e(f"s_add_u32 s{s_hst}, s{s_hst}, {HS}"))
    off = f" offset:{1024*mt}" if mt else ""
    ops.append(lambda: g.vmem(f"buffer_store_dwordx4 {vr(d)}, v{vL16}, {sr(sH)}, s{s_hst} offen{off} sc1", ('hs', s)))
    return ops

def flag_store(s):
    e(f"v_mov_b32 v{vT2}, s{s_flag}")
    e(f"v_mov_b32 v{vT}, 1")
    e("s_mov_b64 exec, 1")
    op = "buffer_atomic_or" if args.pollmode == "atomic" else "buffer_store_dword"
    g.vmem(f"{op} v{vT}, v{vT2}, {sr(sH)}, 0 offen offset:{FS*s} sc1", ('fl', s))
    e("s_mov_b64 exec, -1")

def hidx(i):
    s, r_ = divmod(i, 28)
    if s == 0: jj, lam = divmod(r_, 4)
    else: jj, lam = r_ % 7, (r_ // 7 + 1) % 4
    return s, jj, lam, r_
def h_load(i):
    s, jj, lam, r_ = hidx(i)
    dst = ar(hreg[r_]) if s == 0 else vr(HB + r_*4)
    if i == 28:
        for q in range(7): e(f"s_add_u32 s{s_rh+q}, s{s_rh+q}, {HS}")
    g.vmem(f"buffer_load_dwordx4 {dst}, v{vH+lam}, {sr(sH)}, s{s_rh+jj} offen sc1", ('h', i))
def mf(i, nt):
    s, jj, lam, r_ = hidx(i)
    g.need_vm([('h', i)])
    g.need_lg([('Dr', s*7 + jj)])
    f_, base = homes[s*7 + jj]
    r = base + nt*4
    acc = ACC2 + (lam*4 + nt)*4
    c = "0" if i < 4 else vr(acc)
    h = ar(hreg[r_]) if s == 0 else vr(HB + r_*4)
    e(f"{MF} {vr(acc)}, {f_}[{r}:{r+3}], {h}, {c}")
def tail_setup():
    e(f"v_lshlrev_b32 v{vL16}, 4, v0")
    for lam in range(1, 4):
        e(f"s_xor_b32 s{s_a}, s{s_w}, {lam}")
        e(f"s_mul_i32 s{s_a}, s{s_a}, {PWS}")
        e(f"s_add_u32 s{s_a}, s{s_a}, {PB + (lam-1)*4096}")
        e(f"v_add_u32 v{vTR+lam-1}, s{s_a}, v{vL16}")
    e(f"v_add_u32 v{vTW}, s{s_mP}, v{vL16}")
    e(f"v_and_b32 v{vTO}, 15, v0")
    e(f"v_lshlrev_b32 v{vTO}, 10, v{vTO}")
    e(f"v_bfe_u32 v{vTO+1}, v0, 4, 1")
    e(f"v_lshl_add_u32 v{vTO}, v{vTO+1}, 5, v{vTO}")
    e(f"v_lshrrev_b32 v{vTO+1}, 5, v0")
    e(f"v_lshl_add_u32 v{vTO}, v{vTO+1}, 4, v{vTO}")
HD = args.hdepth

e(f"s_cmp_eq_u32 s{s_col}, 0")
e("s_cbranch_scc1 L_spare")

mand = []
for n in range(16):
    for k in range(8):
        if first_k[k] == n: mand.append((n, 'X', k, ('P', k % NXB)))
    mand.append((n, 'W', n, ('W', n % NW)))
for (_, kind, n, where) in mand[:2]:
    for f in dma4(kind, n, where): f()
wtab_setup()
late_addr_setup()
e(f"s_lshr_b32 s{s_a}, s{s_w}, 1")
e(f"s_lshl_b32 s{s_b}, s{s_mb}, 1")
e(f"s_add_u32 s{s_a}, s{s_a}, s{s_b}")
e(f"s_and_b32 s{s_b}, s{s_fb}, 1")
e(f"s_lshl_b32 s{s_b}, s{s_b}, 1")
e(f"s_and_b32 s{s_t1}, s{s_w}, 1")
e(f"s_add_u32 s{s_b}, s{s_b}, s{s_t1}")
e(f"s_mul_i32 s{s_hst}, s{s_a}, {HM}")
e(f"s_mul_i32 s{s_t1}, s{s_b}, {HQ}")
e(f"s_add_u32 s{s_hst}, s{s_hst}, s{s_t1}")
e(f"s_lshr_b32 s{s_t2}, s{s_fb}, 1")
e(f"s_lshl_b32 s{s_t1}, s{s_t2}, 13")
e(f"s_add_u32 s{s_hst}, s{s_hst}, s{s_t1}")
e(f"s_add_u32 s{s_t1}, s{s_a}, s{s_b}")
h_pattern(vL16, s_t1)
e(f"s_cmp_ge_u32 s{s_t2}, 3")
e(f"s_addc_u32 s{s_t2}, s{s_t2}, 0")
e(f"s_lshl_b32 s{s_t2}, s{s_t2}, 7")
e(f"s_lshl_b32 s{s_b}, s{s_b}, 11")
e(f"s_add_u32 s{s_b}, s{s_b}, s{s_t2}")
e(f"s_lshl_b32 s{s_t1}, s{s_a}, 13")
e(f"s_add_u32 s{s_b}, s{s_b}, s{s_t1}")
e(f"s_add_u32 s{s_flag}, s{s_b}, {FBASE}")
e(f"s_lshl_b32 s{s_a}, s{s_a}, 2")
e(f"s_lshl_b32 s{s_b}, s{s_m64}, 2")
e(f"v_mov_b32 v{vMk}, s{s_a}")
e(f"v_mov_b32 v240, s{s_b}")
e("v_cmp_lt_u32 vcc, 0, v0")
e("s_nop 1")
e(f"v_cndmask_b32 v{vMk}, v{vMk}, v240, vcc")

def phase2A(R, stay, dplace, lateops, late, nh, extra):
    dmove = {}; slot_ = 0
    plan = {}; q = [('h', i) for i in range(nh, 28)]; lo = list(lateops); it = args.quiet if R != "S" else 0
    late_done = {}
    def takeD(c):
        c.append(('d', lo.pop(0)))
        if len(lo) % 4 == 0: late_done[late[len(late) - 1 - len(lo)//4]] = it
    while q or lo:
        c = []
        behind = q and q[0][1] - it < 8
        if q: c.append(q.pop(0))
        while len(c) < args.per and (q or lo):
            if q and (behind or not lo):
                if not behind and not lo and it >= 4 + args.quiet: break
                c.append(q.pop(0))
            else: takeD(c)
        for o in c:
            if o[0] == 'h': assert o[1] > it, ("h load late", o, it)
        plan[it] = c; it += 1
    for j in stay:
        p_ = slot_ if j not in reuse else max(4*reuse[j] + 3 + 2, slot_)
        if j in late_done: p_ = max(p_, late_done[j] + 8)
        p_ = min(p_, 26)
        dmove.setdefault(p_, []).append(j); slot_ = p_ + 2
        assert p_ + 1 < min(i for i in range(56) if hidx(i)[0]*7 + hidx(i)[1] == j), ("D move too late", j, p_)
    CB = args.chkB_i
    assert it <= CB, ("issue plan too long", it)
    pend = []
    def vm_(o):
        if o[0] == 'h': h_load(o[1])
        else: o[1]()
    def body(i, loads):
        for j in dmove.get(i, []):
            ops = d_reads(j, dplace[j])
            pend.append(lambda j=j, f=ops[0]: (g.need_vm([('D', j)]), f()))
            pend.extend(ops[1:])
        side = [lambda o=o: vm_(o) for o in loads] + list(extra.get(i, []))
        for nt in range(4):
            mf(i, nt)
            if args.st2 and nt == 0 and i in (0, 8): g.stamp(4 if i == 0 else 6)
            if side: side.pop(0)()
            elif pend: pend.pop(0)()
            if pend: pend.pop(0)()
        for f in side: f()
    def flush():
        while pend: pend.pop(0)()
        g.need_lg(g.lg[:])
    for i in range(CB):
        body(i, plan.get(i, []))
        if i == args.pollB: poll(vP2, vFl, sH, FS, 'pb')
    if args.st2: g.stamp(1)
    g.need_vm(['pb'])
    if args.st2: g.stamp(2)
    test(vP2, vFl, f"L_fastB{R}")
    sv = list(g.vm), list(g.lg), list(pend)
    poll(vP2, vFl, sH, FS, 'pb2')
    for i in range(CB, 28): body(i, [])
    flush()
    g.need_vm(['pb2'])
    test(vP2, vFl, f"L_pb{R}_ok")
    pr = [vT, vT2, vP1, vP2][:args.npoll]
    e(f"s_mov_b32 s{s_spin}, 0x20000")
    for r_ in pr[:-1]:
        poll(r_, vFl, sH, FS, 'x'); e("s_sleep 1")
    g.lab(f"L_pb{R}")
    for k_ in range(len(pr)):
        poll(pr[k_ - 1], vFl, sH, FS, 'x')
        e(f"s_waitcnt vmcnt({len(pr) - 1})")
        test(pr[k_], vFl, f"L_pb{R}_ok")
    e(f"s_sub_u32 s{s_spin}, s{s_spin}, 1")
    e(f"s_cmp_lg_u32 s{s_spin}, 0")
    e(f"s_cbranch_scc1 L_pb{R}")
    g.lab(f"L_pb{R}_ok")
    g.vm = []
    g.stamp(13)
    for i in range(28, 28 + HD): h_load(i)
    e("s_branch L_B")
    g.lab(f"L_fastB{R}")
    g.vm, g.lg = sv[0], sv[1]; pend[:] = sv[2]
    q = list(range(28, 28 + HD)); per = -(-HD // (28 - CB))
    for i in range(CB, 28):
        body(i, [('h', q.pop(0)) for _ in range(min(per, len(q)))])
    assert not q
    flush()
    assert [t for t in g.vm if t[0] != 'h' or t[1] < 28] == [], g.vm

def main_path(R):
    issued = {m[1:3] for m in mand[:2]}
    rest = list(mand[2:])
    for (_, kind, n, where) in rest[:args.pre - 2]:
        assert (n < NW if kind == 'W' else n < NXB)
        for f in dma4(kind, n, where): f()
        issued.add((kind, n))
    rest = rest[args.pre - 2:]
    g.stamp(2)
    rates = [int(x) for x in args.rates.split(",")]
    slotc = {}
    for n in range(16):
        for i in range(rates[n]): slotc[32*n + START + (32*i)//rates[n]] = 1
    st = dict(credit=0, dnext=0, cur=None, nh=0, j=START)
    dma_q = []; lds_q = []; epi_q = []; misc_q = []
    wfree = {n: n < NW for n in range(16)}; xfree = {k: k < NXB for k in range(8)}
    dblocks = [('P', b_) for b_ in range(NXB, NP)]
    pending = []; dplace = {}; dland = []; dread_done = []; log = []; xdone = set(); xrel = []; inreg = []
    epiA_done = set()
    for mt in range(4):
        ops_ = epi_ops(ACC0, 0, mt, False)
        ops_[-1] = (lambda f=ops_[-1], mt=mt: (f(), epiA_done.add(mt)))
        for f in ops_: epi_q.append(((done_at(0, mt) + 8) if args.mergeA else (done_at(0, 3) + 6), 'A', f))
    for mt in range(3):
        for f in epi_ops(ACC1, 1, mt, False): epi_q.append((done_at(1, mt) + 8, 'B', f))
    bar_at = {p: n for n, p in bpos.items()}
    def release(kind, i):
        if kind == 'W':
            if i + NW < 16: wfree[i + NW] = True
            else: dblocks.append(('W', i % NW))
        else:
            if i + NXB < 8: xfree[i + NXB] = True
            else: dblocks.append(('P', i % NXB))
        dblocks.sort(key=lambda b_: b_[0] != 'P')
    def barrier(n):
        tags = [('W', n)] + [('X', k) for k in range(8) if first_k[k] == n]
        assert all(t in issued for t in tags), (R, n)
        g.need_vm(tags)
        for k in list(xrel):
            if all((k, T, mt) in xdone for T in range(2) for mt in range(4)) and not any(t_[0] == 'x' and t_[1] == k for t_ in g.lg[-6:]):
                g.need_lg([('x', k, T, mt) for T in range(2) for mt in range(4)])
                pending.append(('X', k)); xrel.remove(k)
        e("s_barrier")
        for kind, i in pending: release(kind, i)
        pending.clear()
        for k in range(8):
            if first_k[k] == n:
                xrel.append(k)
                for T, mt in sorted(((T, mt) for T in range(2) for mt in range(4)), key=lambda tm: min(j_ for j_, (i, m_) in enumerate(mseq) if m_ == tm[1] and uses[i][:2] == (n, tm[0]))):
                    if True:
                        def f(k=k, T=T, mt=mt):
                            assert k < NXK or st['j'] > xlast[k - NXK], ("x slot busy", k, st['j'])
                            r = ((k % NXK)*8 + T*4 + mt)*4
                            g.ds(f"ds_read_b128 {ar(r)}, v{vRX+T} offset:{(mt >> 1)*PWS + (mt & 1)*2048 + (k % NXB)*4096}", ('x', k, T, mt))
                            xdone.add((k, T, mt))
                        lds_q.append(('x', f))
                lds_q.sort(key=lambda o: o[0] != 'x')
    def wread(i, half):
        n, T, c = uses[i]
        fl, b = wbuf[i]; b += 2*half
        if i in wneed: assert wneed[i] in epiA_done, ('acc0 not free', i, st['j'])
        off = (n % NW) * 8192 + T * 4096 + (c & 1) * 1024 + 512*half
        g.ds(f"ds_read_b64_tr_b16 {fl}[{b}:{b+1}], v{vRW + (c >> 1)} offset:{off}", ('w', i))
    def pick(j):
        d = dorder[st['dnext']] if st['dnext'] < 14 else None
        can_d = d is not None and dblocks and j >= args.dstart
        for idx, (dl, kind, n, where) in enumerate(rest[:3]):
            ok = wfree[n] if kind == 'W' else xfree[n]
            lead = bpos[dl] - j
            extra = 16 if any(r_[0] == dl for r_ in rest[idx+1:idx+2]) else 0
            minl = max(args.minlead, args.latelead) if dl >= args.latefrom else args.minlead
            urgent = lead < minl + 16 + extra
            if ok and (urgent or not can_d):
                rest.pop(idx); log.append(f"{kind}{n}@{j}(-{lead})")
                assert lead > 20, ("late", R, kind, n, j)
                return kind, n, where
            if not ok and lead < 48: return None
            if ok: break
        if can_d:
            blk = dblocks.pop(0 if d in early_ok else -1); st['dnext'] += 1; dplace[d] = blk; log.append(f"D{d}@{j}")
            return 'D', d, blk
        return None
    barrier(0)
    g.stamp(3)
    for j in range(START, NM):
        n0 = len(g.L)
        if j >= 0:
            i, mt = mseq[j]
            n, T, c = uses[i]
            s_, k = steps[n]
            assert (k, T, mt) in xdone, ("x read late", j)
            tg = [('w', i), ('x', k, T, mt)]
            if j == first_use[i] and i % args.wgrp == 0:
                tg += [('w', i_) for i_ in range(i, min(i + args.wgrp, NU)) if g.lg.count(('w', i_)) == 2]
            if mt == 0: tg += [('x', k, T, m_) for m_ in range(4)]
            g.need_lg(tg)
            acc = accr(ACC0 if s_ == 0 else ACC1, c, mt)
            cc = "0" if (k == 0 and T == 0) else vr(acc)
            e(f"{MF} {vr(acc)}, {wbuf[i][0]}[{wbuf[i][1]}:{wbuf[i][1]+3}], {ar(((k % NXK)*8 + T*4 + mt)*4)}, {cc}")
            if i == last_u[n] and j == first_use[i]: pending.append(('W', n))
            if args.stepstamps and j % 64 == 63: g.stamp(4 + j // 64, True)
            nxt_wait = j + 1 < NM and first_use[mseq[j+1][0]] == j + 1 and ('w', mseq[j+1][0]) in g.lg
            n0 = len(g.L) - (1 if nxt_wait else 0)
        used = lambda: len(g.L) - n0
        for i_, h_ in rsched.get(j, []): wread(i_, h_)
        if j in bar_at and bar_at[j] > 0: barrier(bar_at[j])
        if j == args.pollA_at: poll(vP1, vFl, sH, 0, 'pa')
        if j == args.chkA_at:
            assert not misc_q and not rest
            check_or_spin(f"L_pa{R}", vP1, 'pa', vFl, sH, 0)
            g.stamp(8)
        if j >= args.chkA_at and st['nh'] < args.hpre and not dma_q and (j - args.chkA_at) % 4 == 1:
            h_load(st['nh']); st['nh'] += 1
        if j == args.mkat: poll(vP1, vMk, sB, 0, 'mk')
        if j == args.flagA_at:
            assert not any(t_ == 'A' for _, t_, _ in epi_q)
            check_or_spin(f"L_mk{R}", vP1, 'mk', vMk, sB, 0)
            g.need_vm([('hs', 0)])
            flag_store(0)
            g.stamp(4)
        while dland and dland[0][0] <= j and not any(o[0] == 'd' for o in lds_q) and j < NM - 40 and not (args.mergeA and j <= endA and homes[dland[0][1]][0] == 'a' and homes[dland[0][1]][1] >= 192):
            _, it = dland.pop(0)
            ops = d_reads(it, dplace[it]); inreg.append(it)
            lds_q.append(('d', lambda it=it, f=ops[0]: (g.need_vm([('D', it)]), f())))
            for f in ops[1:-1]: lds_q.append(('d', f))
            lds_q.append(('d', lambda it=it, f=ops[-1]: (f(), dread_done.append((st['j'] + 8, it)))))
        st['j'] = j
        while dread_done and dread_done[0][0] <= j:
            _, it = dread_done.pop(0)
            g.need_lg([('Dr', it)]); dblocks.insert(0, dplace[it])
        if j in slotc: st['credit'] = min(st['credit'] + 1, 2)
        if lds_q and lds_q[0][0] == 'x' and used() < args.cap + 1: lds_q.pop(0)[1]()
        if not dma_q and (st['credit'] or any(j + q_ in slotc for q_ in (1, 2, 3))) and j < min(args.chkA_at - 12, args.dstop):
            p_ = pick(j)
            if p_: dma_q = dma_item(*p_); st['cur'] = p_
        while dma_q and dma_q[0][0] == 's' and used() < args.cap + (1 if st['credit'] >= 2 else 0): dma_q.pop(0)[1]()
        if dma_q and dma_q[0][0] == 'v' and st['credit'] and (used() + args.vcost <= args.cap or (st['credit'] >= 2 and used() <= args.cap)) and j < NM - 4 and not g.L[-1].strip().startswith("s_add_u32 m0"):
            dma_q.pop(0)[1](); st['credit'] -= 1
            n0 -= args.vcost - 1
            if not dma_q:
                issued.add(st['cur'][:2])
                if st['cur'][0] == 'D' and st['cur'][1] in early_ok: dland.append((j + (args.dlat if st['dnext'] <= 4 else args.dlat2), st['cur'][1]))
                if st['cur'][:2] == ('X', 7): rd2_setup()
                if st['cur'][0] == 'W' and not any(r_[1] == 'W' for r_ in rest):
                    n1 = len(g.L); rh_setup(); tl = g.L[n1:]; del g.L[n1:]
                    for q_ in range(0, len(tl), 3): misc_q.append(tl[q_:q_+3])
        if lds_q and len(g.lg) < 13 and used() < args.cap and j % 2: lds_q.pop(0)[1]()
        while epi_q and epi_q[0][0] <= j and used() < args.ecap: epi_q.pop(0)[2]()
        while lds_q and len(g.lg) < 13 and used() < args.cap: lds_q.pop(0)[1]()
        if misc_q and used() == 0: g.L += misc_q.pop(0)
    g.stamp(5)
    for t_ in misc_q: g.L += t_
    assert not rest
    for _, f in lds_q: f()
    for _, _, f in epi_q: f()
    e("s_nop 7")
    for f in epi_ops(ACC1, 1, 3, True): f()
    g.stamp(6)
    g.need_lg(g.lg[:])
    for _, it in dread_done: dblocks.append(dplace[it])
    e("s_barrier")
    assert not xrel
    for kind, i in pending: release(kind, i)
    for _, f in dma_q: f()
    post = dorder[st['dnext']:]
    sys.stderr.write(f"{R}: " + " ".join(log) + f"\n   inreg {inreg} post {post} nh {st['nh']}\n")
    lateops = []
    for n in post:
        dplace[n] = dblocks.pop(0)
        lateops += dma4('D', n, dplace[n])
    stay = [j for j in range(14) if j not in inreg]
    assert len(set(dplace[j] for j in stay)) == len(stay)
    def do_flagB():
        g.need_vm([('hs', 1)])
        flag_store(1)
        g.stamp(7)
    extra = {1: [tail_setup]}
    nfirst = min(args.dfirst*4, len(lateops))
    fbd = False
    for i_ in range(nfirst):
        if args.flagB_i < 0 and i_ == -args.flagB_i: do_flagB(); fbd = True
        lateops.pop(0)()
    post = post[nfirst//4:]
    if args.flagB_i < 0 and not fbd: do_flagB()
    if args.chkA_at >= NM:
        check_or_spin(f"L_pa{R}", vP1, 'pa', vFl, sH, 0, pre=(lambda: (g.need_vm([('hs', 1)]), flag_store(1))) if args.flagB_i >= 0 else None)
        g.stamp(8)
        while st['nh'] < args.hpre: h_load(st['nh']); st['nh'] += 1
    if args.flagB_i >= 0: extra.setdefault(args.flagB_i, []).append(do_flagB)
    phase2A(R, stay, dplace, lateops, post, st['nh'], extra)
    e("s_branch L_B")

main_path("F")
stay = sorted(reuse); inreg = [j for j in range(14) if j not in stay]; dplace = {j: ('P', q_) for q_, j in enumerate(stay)}

g.lab("L_spare")
g.vm = []; g.lg = []
e(f"s_cmp_lg_u32 s{s_w}, 0")
e("s_cbranch_scc1 L_sp1")
e(f"s_lshl_b32 s{s_a}, s{s_m64}, 13")
e(f"s_add_u32 s{s_a}, s{s_a}, {FBASE}")
e("v_lshlrev_b32 v240, 7, v0")
e("v_mov_b32 v241, 0")
e(f"buffer_store_dword v241, v240, {sr(sH)}, s{s_a} offen sc1")
g.lab("L_sp1")
def sp_touch():
    e("v_min_u32 v240, 55, v0")
    e(f"s_lshl_b32 s{s_a}, s{s_m64}, 2")
    e(f"s_add_u32 s{s_a}, s{s_a}, s{s_w}")
    e(f"s_and_b32 s{s_b}, s{s_a}, 63")
    e(f"s_lshr_b32 s{s_a}, s{s_a}, 6")
    e(f"s_lshl_b32 s{s_a}, s{s_a}, 7")
    e(f"s_add_u32 s{s_a}, s{s_a}, s{s_b}")
    e(f"s_lshl_b32 s{s_a}, s{s_a}, 10")
    e("v_lshrrev_b32 v242, 3, v240")
    e("v_lshlrev_b32 v242, 18, v242")
    e("v_and_b32 v247, 7, v240")
    e("v_lshl_add_u32 v242, v247, 7, v242")
    g.vmem(f"buffer_load_dword v249, v242, {sr(sD)}, s{s_a} offen", "pf")
    e(f"s_add_u32 s{s_a}, s{s_a}, 65536")
    g.vmem(f"buffer_load_dword v250, v242, {sr(sD)}, s{s_a} offen", "pf")
npf = 0
if args.sppf >= 0:
    e(f"s_lshl_b32 s{s_a}, s{s_mb}, 2")
    e(f"s_add_u32 s{s_a}, s{s_a}, s{s_w}")
    e(f"s_add_u32 s{s_a}, s{s_a}, {64*args.sppf}")
    e(f"s_mul_i32 s{s_a}, s{s_a}, 3584")
    e(f"s_and_b32 s{s_b}, s{s_xcd}, 1")
    e(f"s_mul_i32 s{s_b}, s{s_b}, 1792")
    e(f"s_add_u32 s{s_a}, s{s_a}, s{s_b}")
    e(f"s_lshl_b32 s{s_b}, s{s_m64}, 2")
    e(f"s_add_u32 s{s_b}, s{s_b}, s{s_w}")
    e(f"s_lshl_b32 s{s_b}, s{s_b}, 14")
    e(f"s_add_u32 s{s_b}, s{s_b}, {128*args.sppf - 28*1024 + (1 << 32)}")
    e("v_lshlrev_b32 v243, 10, v0")
    e(f"v_add_u32 v243, s{s_b}, v243")
    e(f"v_mov_b32 v252, s{sX}")
    e(f"v_mov_b32 v253, s{sX+1}")
    e("v_mov_b32 v254, 128")
    e("s_mov_b64 exec, 0xfffffff")
    e("v_lshlrev_b32 v243, 7, v0")
    e(f"s_sub_u32 s{s_b}, s{s_a}, {14*128 - 1024}")
    e(f"v_add_u32 v243, s{s_b}, v243")
    e(f"v_mov_b32 v252, s{sU}")
    e(f"v_mov_b32 v253, s{sU+1}")
    e(f"v_mov_b32 v254, {64*3584}")
    e("s_mov_b64 exec, 0x3fff")
    e("v_lshlrev_b32 v243, 7, v0")
    e(f"v_add_u32 v243, s{s_a}, v243")
    e(f"v_mov_b32 v252, s{sG}")
    e(f"v_mov_b32 v253, s{sG+1}")
    e("s_mov_b32 exec_lo, -1")
    e("s_mov_b32 exec_hi, 0xfff")
    e("v_add_co_u32 v252, vcc, v252, v243")
    e("v_addc_co_u32 v253, vcc, 0, v253, vcc")
    for kb in range(args.sppf, 8):
        if kb == args.sppfd:
            e("s_mov_b64 exec, -1"); sp_touch(); npf += 2
            e("s_mov_b32 exec_hi, 0xfff")
        g.vmem("global_load_dword v251, v[252:253], off", "pf"); npf += 1
        if kb < 7:
            e("v_add_co_u32 v252, vcc, v252, v254")
            e("v_addc_co_u32 v253, vcc, 0, v253, vcc")
    e("s_mov_b64 exec, -1")
def s3_touch():
    e(f"s_lshl_b32 s{s_a}, s{s_c}, 2")
    e(f"s_add_u32 s{s_a}, s{s_a}, s{s_w}")
    e(f"s_and_b32 s{s_b}, s{s_xcd}, 1")
    e(f"s_mul_i32 s{s_b}, s{s_b}, 3")
    e("v_bfe_u32 v243, v0, 1, 2")
    e(f"v_add_u32 v243, s{s_b}, v243")
    e("v_and_b32 v244, 1, v243")
    e("v_lshrrev_b32 v245, 3, v0")
    e("v_lshl_add_u32 v244, v245, 6, v244")
    e("v_and_b32 v245, 1, v0")
    e("v_lshl_add_u32 v244, v245, 1, v244")
    e("v_mul_u32_u24 v244, 3584, v244")
    e("v_lshl_add_u32 v244, v243, 9, v244")
    e(f"s_mul_i32 s{s_b}, s{s_a}, {4*3584}")
    g.vmem(f"buffer_load_dword v251, v244, {sr(sG)}, s{s_b} offen offset:384", "pf")
    g.vmem(f"buffer_load_dword v252, v244, {sr(sU)}, s{s_b} offen offset:{384+1024}", "pf")
    e(f"s_lshr_b32 s{s_b}, s{s_xcd}, 1")
    e(f"s_lshl_b32 s{s_b}, s{s_b}, 4")
    e(f"s_add_u32 s{s_b}, s{s_b}, s{s_a}")
    e(f"s_lshl_b32 s{s_b}, s{s_b}, 15")
    e("v_lshlrev_b32 v244, 10, v0")
    e("s_mov_b32 exec_hi, 0")
    g.vmem(f"buffer_load_dword v253, v244, {sr(sX)}, s{s_b} offen offset:384", "pf")
    e("s_mov_b64 exec, -1")
if args.s3pf == 1: s3_touch(); npf += 3
if not args.nomall and args.spt == 0:
    if not (args.sppf <= args.sppfd < 8): sp_touch(); npf += 2
    if args.s3pf == 2: s3_touch(); npf += 3
    e(f"s_waitcnt vmcnt({npf})")
else:
    e("s_waitcnt vmcnt(0)")
e(f"s_cmp_lg_u32 s{s_w}, 0")
e("s_cbranch_scc1 L_sp2")
e(f"s_lshl_b32 s{s_a}, s{s_m64}, 2")
e(f"v_mov_b32 v247, s{s_a}")
e("v_mov_b32 v248, 1")
e("s_mov_b64 exec, 1")
e(f"buffer_store_dword v248, v247, {sr(sB)}, 0 offen sc1")
e("s_mov_b64 exec, -1")
g.lab("L_sp2")
g.stamp(4)
late_addr_setup()
rh_setup()
free2 = [('P', NP - 1), ('P', NP - 2)]
assert len(stay) <= NP - 2
prev = None
for q_, j in enumerate(dorder):
    if not args.nomall and args.spt and q_ == args.spt: sp_touch()
    blk = dplace[j] if j in stay else free2[q_ % 2]
    for f in dma4('D', j, blk):
        f()
        if len(g.vm) > args.sppace:
            e(f"s_waitcnt vmcnt({args.sppace})"); g.vm = g.vm[-args.sppace:] if args.sppace else []
    if prev is not None:
        g.need_vm([('D', prev[0])])
        for f in d_reads(*prev): f()
        g.need_lg(g.lg[:])
    prev = (j, blk) if j in inreg else None
if prev is not None:
    g.need_vm([('D', prev[0])])
    for f in d_reads(*prev): f()
    g.need_lg(g.lg[:])
e(f"s_lshl_b32 s{s_a}, s{s_m64}, 2")
e(f"v_mov_b32 v{vMk}, s{s_a}")
spin("L_smk", vMk, sB, 0, sleep=8)
g.stamp(5)
spin("L_spa", vFl, sH, 0, sleep=args.spsleep)
g.stamp(8)
for i in range(HD): h_load(i)
g.lg = []
phase2A("S", stay, dplace, [], [], HD, {0: [tail_setup]})

g.lab("L_B")
g.stamp(9)
g.vm = [('h', i) for i in range(28, 28 + HD)]; g.lg = []
def wr(lam, a):
    r = ACC2 + lam*16 + a*4
    g.ds(f"ds_write_b128 v{vTW}, {vr(r)} offset:{(lam-1)*4096 + a*1024}", ('wr', lam))
def rd(sl, a):
    g.ds(f"ds_read_b128 {vr(ACC2 + 16 + 4*(sl*4+a))}, v{vTR+sl} offset:{a*1024}", ('rd', sl*4+a))
def padd(d, t):
    e(f"v_pk_add_f32 v[{d}:{d+1}], v[{d}:{d+1}], v[{t}:{t+1}]")
    e(f"v_pk_add_f32 v[{d+2}:{d+3}], v[{d+2}:{d+3}], v[{t+2}:{t+3}]")
def sync():
    g.need_lg(g.lg[:]); e("s_barrier")
    for a in range(4):
        for sl in range(3): rd(sl, a)
def sum_(a):
    g.need_lg([('rd', 8 + a)])
    padd(ACC2 + 16 + 4*a, ACC2 + 32 + 4*a); padd(ACC2 + 16 + 4*a, ACC2 + 48 + 4*a)
side = {}
for lam in (1, 2):
    for a in range(4): side.setdefault((28 + 7*lam + 2 + a, 1), []).append(lambda lam=lam, a=a: wr(lam, a))
for a in range(4): side.setdefault((51, a), []).append(lambda a=a: wr(3, a))
side.setdefault((53, 1), []).append(sync)
nxt = 28 + HD
for i in range(28, 56):
    for nt in range(4):
        mf(i, nt)
        if nt == 0 and nxt < 56: h_load(nxt); nxt += 1
        for f in side.get((i, nt), []): f()
g.stamp(10)
for a in range(4): sum_(a)
for a in range(4): padd(ACC2 + 4*a, ACC2 + 16 + 4*a)
for i in range(8):
    e(f"v_cvt_pk_bf16_f32 v{EPI+i}, v{ACC2+2*i}, v{ACC2+2*i+1}")
e("s_nop 1")
e(f"v_permlane16_swap_b32 v{EPI}, v{EPI+2}")
e(f"v_permlane16_swap_b32 v{EPI+1}, v{EPI+3}")
e(f"v_permlane16_swap_b32 v{EPI+4}, v{EPI+6}")
e(f"v_permlane16_swap_b32 v{EPI+5}, v{EPI+7}")
e(f"buffer_store_dwordx4 {vr(EPI)}, v{vTO}, {sr(sO)}, s{s_oadr} offen {args.outflags}")
e(f"buffer_store_dwordx4 {vr(EPI+4)}, v{vTO}, {sr(sO)}, s{s_oadr} offen offset:64 {args.outflags}")
if args.stamps:
    g.stamp(11)
    e("s_waitcnt vmcnt(0)")
    g.stamp(12)
    e("s_waitcnt lgkmcnt(0)")
if args.diag:
    a_, b_, K_, wg_ = map(int, args.diag.split(","))
    if wg_ >= 0: e(f"s_cmp_lg_u32 s2, {wg_}")
    else: e(f"s_cmp_eq_u32 s{s_col}, 0")
    e("s_cbranch_scc1 L_end")
    e(f"s_sub_u32 s46, s{s_st+2*b_}, s{s_st+2*a_}")
    e(f"s_mul_i32 s46, s46, {K_}")
    e(f"s_add_u32 s46, s46, 5000")
    e(f"s_min_u32 s46, s46, 100000")
    g.lab("L_diag")
    e("s_memrealtime s[48:49]")
    e("s_waitcnt lgkmcnt(0)")
    e(f"s_sub_u32 s47, s48, s{s_st}")
    e("s_cmp_lt_u32 s47, s46")
    e("s_cbranch_scc1 L_diag")
elif args.stamps:
    NS = 14
    for i in range(2*NS): e(f"v_mov_b32 v{64+i}, s{s_st+i}")
    e(f"s_lshl_b32 s46, s2, 2")
    e(f"s_add_u32 s46, s46, s{s_w}")
    e(f"s_mul_i32 s46, s46, {NS*8}")
    e(f"s_add_u32 s46, s46, {STAMP_OFF}")
    e("v_mov_b32 v5, 0")
    e("s_mov_b64 exec, 1")
    for i in range(NS//2): e(f"buffer_store_dwordx4 {vr(64+4*i)}, v5, {sr(sH)}, s46 offen offset:{16*i}")
g.lab("L_end")
e("s_endpgm")
g.lab("L_codeend")

hdr = f"""; Fused bilinear GLU: out = ((x Wg) * (x Wu)) Wd   (generated)
; @launch grid=(256,1,1) block=(256,1,1) lds={LDS}
.amdgcn_target "amdgcn-amd-amdhsa--gfx950"
.text
.globl {KN}
.p2align 8
.type {KN},@function
{KN}:"""
tail = f""".section .rodata,"a"
.p2align 6
.amdhsa_kernel {KN}
  .amdhsa_next_free_vgpr 512
  .amdhsa_next_free_sgpr 102
  .amdhsa_accum_offset 256
  .amdhsa_group_segment_fixed_size 0
  .amdhsa_kernarg_size 56
  .amdhsa_user_sgpr_count 2
  .amdhsa_user_sgpr_kernarg_segment_ptr 1
  .amdhsa_system_sgpr_workgroup_id_x 1
.end_amdhsa_kernel"""
print(hdr); print("\n".join(g.L)); print(tail)
```

```python
import sys, argparse

ap = argparse.ArgumentParser()
A = ap.add_argument
A("--stamps", action="store_true"); A("--stepstamps", action="store_true"); A("--cycstamps", action="store_true")
A("--st2", action="store_true"); A("--diag", default="")
A("--la", type=int, default=16)
A("--cap", type=int, default=2); A("--ecap", type=int, default=4)
A("--outflags", default=""); A("--noprefetch", action="store_true"); A("--nomall", action="store_true")
A("--order", default="0101001010001111"); A("--nxk", type=int, default=4)
A("--merge", type=int, default=2); A("--mtm", type=int, default=8)
A("--hdepth", type=int, default=10); A("--pollB", type=int, default=13); A("--chkB_i", type=int, default=23)
A("--mkat", type=int, default=256); A("--spsleep", type=int, default=8); A("--sppace", type=int, default=4)
A("--flagA_at", type=int, default=442); A("--pollA_at", type=int, default=496); A("--chkA_at", type=int, default=512)
A("--hpre", type=int, default=10); A("--dfirst", type=int, default=1); A("--flagB_i", type=int, default=0)
A("--quiet", type=int, default=0); A("--dstop", type=int, default=496); A("--npoll", type=int, default=3); A("--per", type=int, default=2)
A("--nw", type=int, default=5); A("--nxb", type=int, default=3)
A("--rates", default="7,7,7,8,8,8,8,8,8,8,8,8,7,7,7,7"); A("--pre", type=int, default=4)
A("--minlead", type=int, default=56); A("--dstart", type=int, default=120); A("--dlat", type=int, default=64)
A("--latelead", type=int, default=80); A("--latefrom", type=int, default=13)
A("--spt", type=int, default=0)
A("--early", type=int, default=16)
A("--dorder", default="0,1,7,8,2,3,4,5,6,9,10,11,12,13")
A("--oldmerge", action="store_true")
A("--dlat2", type=int, default=28)
A("--vcost", type=int, default=2)
A("--wgrp", type=int, default=2)
A("--sppf", type=int, default=-1)
A("--sppfd", type=int, default=99)
A("--perm", default="01234567,03456712,05671234,07123456")
A("--pfq", type=int, default=1)
A("--mergeA", type=int, default=0)
A("--s3pf", type=int, default=0)
A("--lf", action="store_true")
A("--l_rates", default=""); A("--l_pre", type=int, default=6); A("--l_minlead", type=int, default=100); A("--l_dstart", type=int, default=100)
A("--maxlead", type=int, default=999)
A("--touch", default="")
A("--tpos", type=int, default=0)
A("--touch2", default="")
A("--pollmode", default="atomic"); A("--krot", type=int, default=1); A("--nos3", action="store_true")
args = ap.parse_args()
if args.diag: args.stamps = True
assert args.pollA_at > args.flagA_at > args.mkat

KN = "standalone__glu_gated_bilinear__prompt_kernel"
NW = args.nw; NP = 10 - NW; NXB = args.nxb
HFS = NW * 8192; PB = 2 * HFS; PWS = NP * 4096; LDS = PB + 4 * PWS
assert LDS == 163840 and NP >= 3
FBASE = 0x1000000; STAMP_OFF = 0x8000000; FS = 1024
HM, HQ, HS, HP = 458752, 114688, 57344, 8192
LA = args.la; NBUF = 8; NM = 512

sX, sG, sU, sD, sH, sO, sB = 8, 12, 16, 20, 24, 28, 32
s_w, s_mb, s_fb, s_m64, s_n64 = 36, 37, 38, 39, 40
s_xoff, s_woff, s_doff = 41, 42, 43
s_mP, s_mW = 44, 45
s_t0, s_t1, s_t2, s_t3 = 46, 47, 48, 49
s_hst, s_spin, s_hld, s_flag = 50, 51, 52, 53
s_oadr, s_xcd, s_col, s_c = 54, 55, 56, 57
s_a, s_b = 58, 59
s_st = 60
s_rh, s_rd = 88, 95
s_kr = 6
s_mX = 7
wtab = [88, 89, 90, 91, 92, 93, 94, 49]
vX, vW, vD = 1, 5, 9
vRW, vRX, vRD, vH = 13, 15, 17, 21
vL16, vFl, vMk, vT, vT2, vP1, vP2 = 25, 26, 27, 28, 29, 30, 31
vRD2 = 1
vTR, vTW, vTO = 5, 8, 13
WBUF = 32
ACC0, ACC1 = 64, 128
ACC2 = ACC0
HB = 128
EPI = 240
NXK = args.nxk
NREG = 3 + (256 - 32*NXK)//16

class G:
    def __init__(s): s.L = []; s.lg = []; s.vm = []
    def e(s, t): s.L.append("    " + t)
    def lab(s, t): s.L.append(t + ":")
    def ds(s, t, tag):
        if len(s.lg) >= 14:
            s.e("s_waitcnt lgkmcnt(12)"); s.lg = s.lg[-12:]
        s.e(t); s.lg.append(tag)
    def vmem(s, t, tag): s.e(t); s.vm.append(tag); assert len(s.vm) <= 63, "vm overflow"
    def need_lg(s, tags):
        idx = max((i for i, t in enumerate(s.lg) if t in tags), default=-1)
        if idx >= 0:
            s.e(f"s_waitcnt lgkmcnt({len(s.lg)-1-idx})"); s.lg = s.lg[idx+1:]
    def need_vm(s, tags):
        idx = max((i for i, t in enumerate(s.vm) if t in tags), default=-1)
        if idx >= 0:
            s.e(f"s_waitcnt vmcnt({len(s.vm)-1-idx})"); s.vm = s.vm[idx+1:]
    def stamp(s, k, force=False):
        if args.stepstamps and 4 <= k <= 11 and not force: return
        if args.stamps: s.e(("s_memtime" if args.cycstamps else "s_memrealtime") + f" s[{s_st+2*k}:{s_st+2*k+1}]")
g = G(); e = g.e
def vr(b, n=4): return f"v[{b}:{b+n-1}]"
def ar(b, n=4): return f"a[{b}:{b+n-1}]"
def sr(b, n=4): return f"s[{b}:{b+n-1}]"
MF = "v_mfma_f32_16x16x32_bf16"

order = [int(c) for c in args.order]
assert len(order) == 16 and sum(order) == 8
steps = []; cnt = [0, 0]
for s_ in order: steps.append((s_, cnt[s_])); cnt[s_] += 1
first_k = {}
for n, (s_, k) in enumerate(steps): first_k.setdefault(k, n)
last_k = {k: max(n for n, (s_, kk) in enumerate(steps) if kk == k) for k in range(8)}
uses = []
mseq = []
nm = 16 - args.merge
lastA = max(n for n in range(16) if steps[n][0] == 0)
regA = list(range(lastA + 1 - args.mergeA, lastA + 1)); regB = list(range(nm, 16))
assert all(steps[n][0] == 0 for n in regA) and all(steps[n][0] == 1 for n in regB) and args.merge <= 2 and args.mergeA <= 2
def accr(acc, c, mt): return acc + (c*4 + mt)*4
wbuf = {}; wneed = {}; region_of = {}; ringprev = {}; ring = []
n = 0
while n < 16:
    reg = regA if regA and n == regA[0] else (regB if regB and n == regB[0] else None)
    if reg:
        b0 = len(uses)
        for n_ in reg:
            for T in range(2):
                for c in range(4):
                    q_ = len(uses) - b0; i_ = len(uses); uses.append((n_, T, c)); region_of[i_] = (b0, 8*len(reg))
                    if reg is regB: wbuf[i_] = ("v", accr(ACC0, q_ % 4, q_ // 4)); wneed[i_] = q_ // 4
                    else: wbuf[i_] = ("a", 192 + 4*q_)
        mseq += [(i, mt) for mt in range(4) for i in range(b0, len(uses))]
        n = reg[-1] + 1
    else:
        for T in range(2):
            for c in range(4):
                i_ = len(uses); uses.append((n, T, c)); mseq += [(i_, mt) for mt in range(4)]
                wbuf[i_] = ("v", WBUF + (len(ring) % NBUF)*4)
                if len(ring) >= NBUF: ringprev[i_] = ring[-NBUF]
                ring.append(i_)
        n += 1
assert len(mseq) == NM
NU = len(uses)
first_use = {}
for j_, (i_, mt_) in enumerate(mseq): first_use.setdefault(i_, j_)
last_use = {i_: j_ for j_, (i_, mt_) in enumerate(mseq)}
rsched = {}; rpos = {}
for i_ in range(NU):
    p_ = first_use[i_] - LA
    if i_ in region_of:
        b0, ln = region_of[i_]
        p_ = first_use[b0] - LA - args.early + ((i_ - b0)*(ln + args.early))//ln
    if i_ in ringprev: p_ = max(p_, last_use[ringprev[i_]] + 1)
    p2 = p_ + (2 if i_ not in region_of else 1)
    assert p2 <= first_use[i_] - 5, ("w read late", i_)
    rsched.setdefault(p_, []).append((i_, 0)); rsched.setdefault(p2, []).append((i_, 1)); rpos[i_] = p_
endA = max(last_use[i] for i in range(NU) if uses[i][0] == lastA)
xlast = {k: max(j_ for j_, (i, mt) in enumerate(mseq) if steps[uses[i][0]][1] == k) for k in range(8)}
first_u = {n: min(i for i, u in enumerate(uses) if u[0] == n) for n in range(16)}
last_u = {n: max(i for i, u in enumerate(uses) if u[0] == n) for n in range(16)}
bpos = {n: rpos[first_u[n]] - 1 for n in range(16)}
START = -LA
def done_at(s_, mt): return max(j for j, (i, m_) in enumerate(mseq) if m_ == mt and steps[uses[i][0]][0] == s_)
busy = sorted({steps[uses[i][0]][1] % NXK for j_, (i, mt) in enumerate(mseq) if j_ >= min(args.chkA_at, NM - 1) - 4})
slots_order = [s_ for s_ in range(NXK) if s_ not in busy] + busy
xregs = [32*s_ + 4*q for s_ in slots_order for q in range(8)]
hreg = xregs[:28]
NFREE = 8*(NXK - len(busy))
spare16 = xregs[28:]
dorder = [int(x) for x in args.dorder.split(",")]
assert sorted(dorder) == list(range(14))
ahomes = [("a", 32*NXK + 16*j) for j in range(NREG - 3)]
phomes = []
for j in range(len(spare16)//4):
    grp = spare16[4*j:4*j+4]
    assert grp == [grp[0] + 4*q for q in range(4)]
    phomes.append(("a", grp[0]))
homes = {j: ("v", 192 + 16*j) for j in range(3)}
early_ok = {0, 1, 2}
reuse = {}; rq = []
for j in dorder:
    if j < 3: continue
    if ahomes: homes[j] = ahomes.pop(0); early_ok.add(j)
    elif phomes: homes[j] = phomes.pop(0)
    else: rq.append(j)
for q_, j in enumerate(sorted(rq)):
    assert j >= 7 and 3 + q_ in homes
    reuse[j] = 3 + q_; homes[j] = homes[3 + q_]
assert args.hpre <= NFREE or args.chkA_at >= NM

e("s_cmp_ge_u32 s2, 256")
e("s_cbranch_scc1 L_end")
if args.stamps:
    for i in range(1, 14): e(f"s_mov_b64 s[{s_st+2*i}:{s_st+2*i+1}], 0")
g.stamp(0)
e("s_load_dwordx8 s[88:95], s[0:1], 0")
e("s_load_dwordx4 s[96:99], s[0:1], 32")
e("s_load_dwordx2 s[100:101], s[0:1], 48")
if not args.noprefetch:
    e("s_getpc_b64 s[4:5]")
    e("s_and_b32 s4, s4, 0xffffff00")
    e(f"s_mov_b32 s6, L_codeend-{KN}")
    e("s_mov_b32 s7, 0x20000")
    if args.pfq == 1:
        e("s_bfe_u32 s3, s2, 0x20003")
        e("s_lshl_b32 s3, s3, 7")
        e("v_lshrrev_b32 v30, 6, v0")
        e("v_and_b32 v29, 15, v0")
        e("v_lshl_add_u32 v30, v30, 4, v29")
        e("v_lshlrev_b32 v30, 9, v30")
        e("s_mov_b64 exec, 0xffff")
        g.vmem("buffer_load_dword v31, v30, s[4:7], s3 offen", "pf")
        e("s_mov_b64 exec, -1")
    elif args.pfq == 2:
        e("s_cmp_lt_u32 s2, 32")
        e("s_cselect_b32 s6, s6, 0")
        e("v_lshlrev_b32 v30, 7, v0")
        g.vmem("buffer_load_dword v31, v30, s[4:7], 0 offen", "pf")
    else:
        e("v_lshlrev_b32 v30, 7, v0")
        g.vmem("buffer_load_dword v31, v30, s[4:7], 0 offen", "pf")
        if args.lf:
            e("v_add_u32 v30, 0x8000, v30")
            g.vmem("buffer_load_dword v31, v30, s[4:7], 0 offen", "pf")
e("v_lshrrev_b32 v30, 6, v0")
e("v_and_b32 v0, 63, v0")
e(f"v_readfirstlane_b32 s{s_w}, v30")
e(f"s_and_b32 s{s_xcd}, s2, 7")
e(f"s_bfe_u32 s{s_c}, s2, 0x20003")
e(f"s_lshr_b32 s{s_col}, s2, 5")
e(f"s_lshl_b32 s{s_m64}, s{s_xcd}, 2")
e(f"s_add_u32 s{s_m64}, s{s_m64}, s{s_c}")
e(f"s_lshr_b32 s{s_mb}, s{s_xcd}, 1")
e(f"s_lshl_b32 s{s_mb}, s{s_mb}, 2")
e(f"s_add_u32 s{s_mb}, s{s_mb}, s{s_c}")
e(f"s_and_b32 s{s_fb}, s{s_xcd}, 1")
e(f"s_mul_i32 s{s_fb}, s{s_fb}, 7")
e(f"s_add_u32 s{s_fb}, s{s_fb}, s{s_col}")
e(f"s_sub_u32 s{s_fb}, s{s_fb}, 1")
e(f"s_xor_b32 s{s_n64}, s{s_col}, 3")
e("v_lshrrev_b32 v240, 3, v0")
e("v_and_b32 v241, 7, v0")
e("v_lshrrev_b32 v242, 4, v0")
e(f"s_xor_b32 s{s_b}, s{s_w}, s{s_col}")
e(f"s_and_b32 s{s_b}, s{s_b}, 3")
e(f"s_mul_i32 s{s_mX}, s{s_b}, {PWS}")
e(f"s_add_u32 s{s_mX}, s{s_mX}, {PB}")
e(f"s_lshl_b32 s{s_a}, s{s_b}, 15")
e("v_xor_b32 v243, v241, v242")
e("v_lshlrev_b32 v243, 4, v243")
e(f"v_lshl_add_u32 v{vX}, v240, 10, v243")
e(f"v_add_u32 v{vX}, s{s_a}, v{vX}")
e(f"v_xor_b32 v{vX+1}, 64, v{vX}")
e(f"v_add_u32 v{vX+1}, {7*1024}, v{vX+1}")
e(f"v_add_u32 v{vX+2}, {14*1024}, v{vX}")
e(f"v_add_u32 v{vX+3}, {14*1024}, v{vX+1}")
e(f"s_lshr_b32 s{s_a}, s{s_w}, 1")
e(f"s_lshl_b32 s{s_a}, s{s_a}, 5")
e(f"s_and_b32 s{s_b}, s{s_w}, 1")
e(f"s_lshl_b32 s{s_t0}, s{s_b}, 3")
e(f"s_add_u32 s{s_a}, s{s_a}, s{s_t0}")
e(f"s_mul_i32 s{s_a}, s{s_a}, 3584")
e(f"s_lshl_b32 s{s_b}, s{s_b}, 6")
e(f"v_mul_u32_u24 v{vW}, 3584, v240")
e("v_and_b32 v244, 1, v242")
e("v_lshlrev_b32 v245, 4, v241")
e("v_lshlrev_b32 v246, 5, v244")
e("v_xor_b32 v246, v245, v246")
e(f"v_xor_b32 v246, s{s_b}, v246")
e(f"v_add3_u32 v{vW}, v{vW}, v246, s{s_a}")
e(f"v_add_u32 v{vW+2}, {16*3584-2048}, v{vW}")
e(f"v_add_u32 v{vW+1}, 128, v{vW}")
e(f"v_add_u32 v{vW+3}, 128, v{vW+2}")
e(f"s_lshr_b32 s{s_a}, s{s_w}, 1")
e(f"s_lshl_b32 s{s_a}, s{s_a}, 17")
e(f"s_and_b32 s{s_b}, s{s_w}, 1")
e(f"s_lshl_b32 s{s_b}, s{s_b}, 15")
e(f"s_add_u32 s{s_a}, s{s_a}, s{s_b}")
e("v_lshlrev_b32 v246, 5, v242")
e("v_xor_b32 v246, v245, v246")
e(f"v_lshl_add_u32 v{vD}, v240, 10, v246")
e(f"v_add_u32 v{vD}, s{s_a}, v{vD}")
for i in range(1, 4): e(f"v_add_u32 v{vD+i}, {7*1024*i}, v{vD}")
e(f"s_mul_i32 s{s_mP}, s{s_w}, {PWS}")
e(f"s_add_u32 s{s_mP}, s{s_mP}, {PB}")
e(f"s_and_b32 s{s_b}, s{s_w}, 1")
e(f"s_mul_i32 s{s_mW}, s{s_b}, {HFS}")
e(f"s_lshr_b32 s{s_a}, s{s_w}, 1")
e(f"s_lshl_b32 s{s_a}, s{s_a}, 12")
e(f"s_add_u32 s{s_mW}, s{s_mW}, s{s_a}")
perms = [[int(c) for c in p] for p in args.perm.split(",")]
assert all(sorted(p) == list(range(8)) for p in perms) and len(perms) in (4, 8)
pk = [sum(v << (4*i) for i, v in enumerate(p)) for p in perms]
if len(perms) == 4:
    e(f"s_lshr_b32 s{s_a}, s{s_xcd}, 1")
    e(f"s_and_b32 s{s_b}, s{s_xcd}, 1")
    e(f"s_lshl_b32 s{s_b}, s{s_b}, 1")
    e(f"s_xor_b32 s{s_a}, s{s_a}, s{s_b}")
else:
    e(f"s_mov_b32 s{s_a}, s{s_xcd}")
e(f"s_mov_b32 s{s_kr}, {pk[0]}")
for q_ in range(1, len(perms)):
    e(f"s_cmp_eq_u32 s{s_a}, {q_}")
    e(f"s_cselect_b32 s{s_kr}, {pk[q_]}, s{s_kr}")
e(f"s_lshl_b32 s{s_xoff}, s{s_mb}, 17")
e(f"s_lshl_b32 s{s_woff}, s{s_fb}, 8")
e(f"s_and_b32 s{s_t2}, s{s_kr}, 7")
e(f"s_mul_i32 s{s_t2}, s{s_t2}, {64*3584}")
e(f"s_add_u32 s{s_t2}, s{s_t2}, s{s_woff}")
e(f"s_lshl_b32 s{s_doff}, s{s_n64}, 7")
for b, n in ((sX, 2048*1024), (sG, 512*3584), (sU, 512*3584+1024), (sD, 1792*1024), (sH, 0x10000000), (sO, 2048*1024), (sB, 256)):
    e(f"s_mov_b32 s{b+2}, {n}")
    e(f"s_mov_b32 s{b+3}, 0x20000")
e("s_waitcnt lgkmcnt(0)")
e(f"s_mov_b64 s[{sX}:{sX+1}], s[88:89]")
e(f"s_mov_b64 s[{sG}:{sG+1}], s[90:91]")
e(f"s_sub_u32 s{sU}, s92, 1024")
e(f"s_subb_u32 s{sU+1}, s93, 0")
e(f"s_mov_b64 s[{sD}:{sD+1}], s[94:95]")
e(f"s_mov_b64 s[{sO}:{sO+1}], s[96:97]")
e(f"s_mov_b64 s[{sB}:{sB+1}], s[98:99]")
e(f"s_mov_b64 s[{sH}:{sH+1}], s[100:101]")
e(f"s_mov_b32 s{wtab[0]}, s{s_t2}")
g.stamp(1)
def wtab_setup():
    for k in range(1, 8):
        e(f"s_bfe_u32 s{s_a}, s{s_kr}, {0x30000 + 4*k}")
        e(f"s_mul_i32 s{s_a}, s{s_a}, {64*3584}")
        e(f"s_add_u32 s{wtab[k]}, s{s_a}, s{s_woff}")
def rh_setup():
    for jj in range(7):
        e(f"s_sub_u32 s{s_a}, s{s_rd+jj}, s{s_doff}")
        e(f"s_lshr_b32 s{s_a}, s{s_a}, 5")
        e(f"s_add_u32 s{s_rh+jj}, s{s_a}, s{s_hld}")

def dma_item(kind, n, where):
    m0 = (s_mX if kind == 'X' else s_mP, where[1] * 4096) if where[0] == 'P' else (s_mW, where[1] * 8192)
    ops = []
    sc = [f"s_add_u32 m0, s{m0[0]}, {m0[1]}"]
    so = s_t0
    if kind == 'X':
        srd = [sX]*4; vb = [vX, vX+1, vX+2, vX+3]; sc = [f"s_bfe_u32 s{s_t0}, s{s_kr}, {0x30000 + 4*n}", f"s_lshl_b32 s{s_t0}, s{s_t0}, 7"] + sc + [f"s_add_u32 s{s_t0}, s{s_t0}, s{s_xoff}"]
    elif kind == 'W':
        o_ = steps[n][0]; srd = [sG, sU, sG, sU]; vb = [vW+o_, vW+o_, vW+2+o_, vW+2+o_]; so = wtab[steps[n][1]]
    else:
        srd = [sD]*4; vb = [vD, vD+1, vD+2, vD+3]
        if n < 7: so = s_rd + n
        else: sc.append(f"s_add_u32 s{s_t0}, s{s_rd + n % 7}, 65536")
    for t in sc: ops.append(('s', lambda t=t: e(t)))
    for i in range(4):
        off = f" offset:{1024*i}" if i else ""
        def ld(i=i, off=off):
            if g.L[-1].strip().startswith("s_add_u32 m0"): e("s_nop 0")
            g.vmem(f"buffer_load_dwordx4 v{vb[i]}, {sr(srd[i])}, s{so} offen{off} lds", (kind, n))
        ops.append(('v', ld))
    return ops
def dma4(kind, n, where):
    ops = dma_item(kind, n, where); pre = [f for k, f in ops if k == 's']; ld = [f for k, f in ops if k == 'v']
    return [lambda: ([f() for f in pre], ld[0]())] + ld[1:]

def h_pattern(vdst, s_idx):
    e(f"v_lshlrev_b32 v{vdst}, 4, v0")
    if args.nos3: return
    e(f"s_and_b32 s{s_idx}, s{s_idx}, 3")
    e(f"s_cmp_eq_u32 s{s_idx}, 3")
    e(f"s_cselect_b32 s{s_idx}, 4, s{s_idx}")
    e(f"s_lshl_b32 s{s_idx}, s{s_idx}, 7")
    e(f"s_add_u32 s{s_idx}, s{s_idx}, {4096 - 384}")
    e("s_mov_b32 exec_lo, 0xff000000")
    e("s_mov_b32 exec_hi, 0")
    e(f"v_add_u32 v{vdst}, s{s_idx}, v{vdst}")
    e("s_mov_b64 exec, -1")

def late_addr_setup():
    e("v_lshrrev_b32 v240, 5, v0")
    e("v_bfe_u32 v241, v0, 4, 1")
    e("v_bfe_u32 v242, v0, 2, 2")
    e("v_and_b32 v243, 3, v0")
    e("v_bfe_u32 v244, v0, 3, 1")
    e("v_lshlrev_b32 v243, 3, v243")
    e("v_lshl_add_u32 v243, v242, 7, v243")
    e("v_lshl_or_b32 v245, v241, 1, v244")
    e("v_lshl_add_u32 v243, v245, 5, v243")
    e(f"v_mul_u32_u24 v{vRW}, {HFS}, v241")
    e(f"v_lshl_add_u32 v{vRW}, v240, 11, v{vRW}")
    e(f"v_add_u32 v{vRW}, v{vRW}, v243")
    e(f"s_and_b32 s{s_a}, s{s_w}, 1")
    e(f"s_lshl_b32 s{s_a}, s{s_a}, 6")
    e(f"v_xor_b32 v{vRW}, s{s_a}, v{vRW}")
    e(f"v_xor_b32 v{vRW+1}, 32, v{vRW}")
    e("v_lshrrev_b32 v246, 4, v0")
    e("v_lshl_add_u32 v245, v246, 9, v243")
    e(f"v_add_u32 v{vRD}, s{s_mP}, v245")
    for nt in range(1, 4): e(f"v_xor_b32 v{vRD+nt}, {32*nt}, v{vRD}")
    e("v_and_b32 v245, 15, v0")
    e("v_bfe_u32 v247, v0, 1, 3")
    e("v_xor_b32 v247, v247, v246")
    e("v_lshlrev_b32 v247, 4, v247")
    e("v_lshl_add_u32 v245, v245, 7, v247")
    e(f"s_lshr_b32 s{s_a}, s{s_w}, 1")
    e(f"s_mul_i32 s{s_a}, s{s_a}, {2*PWS}")
    e(f"s_add_u32 s{s_a}, s{s_a}, {PB}")
    e(f"v_add_u32 v{vRX}, s{s_a}, v245")
    e(f"v_xor_b32 v{vRX+1}, 64, v{vRX}")
    e(f"s_add_u32 s{s_a}, s{s_m64}, s{s_w}")
    h_pattern(vH, s_a)
    e(f"s_lshl_b32 s{s_a}, s{s_w}, 10")
    e(f"v_add_u32 v{vH}, s{s_a}, v{vH}")
    for lam in range(1, 4): e(f"v_xor_b32 v{vH+lam}, {1024*lam}, v{vH}")
    e(f"s_mul_i32 s{s_hld}, s{s_m64}, {HM}")
    e(f"s_mul_i32 s{s_a}, s{s_w}, {HQ}")
    e(f"s_add_u32 s{s_hld}, s{s_hld}, s{s_a}")
    e(f"v_add_u32 v{vFl}, 5, v0")
    e(f"v_lshrrev_b32 v{vFl}, 3, v{vFl}")
    e(f"v_add_u32 v{vFl}, v{vFl}, v0")
    e(f"v_min_u32 v{vFl}, 7, v{vFl}")
    e(f"v_lshlrev_b32 v{vFl}, 7, v{vFl}")
    e(f"s_lshl_b32 s{s_a}, s{s_m64}, 13")
    e(f"s_lshl_b32 s{s_b}, s{s_w}, 11")
    e(f"s_add_u32 s{s_a}, s{s_a}, s{s_b}")
    e(f"s_add_u32 s{s_a}, s{s_a}, {FBASE}")
    e(f"v_add_u32 v{vFl}, s{s_a}, v{vFl}")
    e(f"s_lshl_b32 s{s_a}, s{s_c}, 1")
    e(f"s_add_u32 s{s_a}, s{s_a}, s{s_col}")
    e(f"s_sub_u32 s{s_b}, s{s_a}, 7")
    e(f"s_cmp_ge_u32 s{s_a}, 7")
    e(f"s_cselect_b32 s{s_a}, s{s_b}, s{s_a}")
    for jj in range(7):
        e(f"s_lshl_b32 s{s_b}, s{s_a}, 18")
        e(f"s_add_u32 s{s_rd+jj}, s{s_b}, s{s_doff}")
        if jj < 6:
            e(f"s_add_u32 s{s_a}, s{s_a}, 1")
            e(f"s_cmp_eq_u32 s{s_a}, 7")
            e(f"s_cselect_b32 s{s_a}, 0, s{s_a}")
    e(f"s_lshl_b32 s{s_a}, s{s_m64}, 16")
    e(f"s_lshl_b32 s{s_b}, s{s_w}, 14")
    e(f"s_add_u32 s{s_a}, s{s_a}, s{s_b}")
    e(f"s_add_u32 s{s_oadr}, s{s_a}, s{s_doff}")

def rd2_setup():
    e(f"s_sub_u32 s{s_a}, s{s_mW}, s{s_mP}")
    for nt in range(4): e(f"v_add_u32 v{vRD2+nt}, s{s_a}, v{vRD+nt}")

def d_reads(item, where):
    dfile, dstbase = homes[item]
    ops = []
    for nt in range(4):
        for p in range(2):
            def f(nt=nt, p=p):
                if where[0] == 'P': va = vRD + nt; off = where[1]*4096
                else: va = vRD2 + nt; off = where[1]*8192
                off += p*2048
                r = dstbase + nt*4 + 2*p
                g.ds(f"ds_read_b64_tr_b16 {dfile}[{r}:{r+1}], v{va} offset:{off}", ('Dr', item))
            ops.append(f)
    return ops

def pmask(vaddr): return 3 if vaddr == vMk else 0x7f
def poll(vdst, vaddr, srd, off, tag):
    o = f" offset:{off}" if off else ""
    e(f"s_mov_b64 exec, {pmask(vaddr)}")
    if args.pollmode == "atomic" and vaddr != vMk:
        e(f"v_mov_b32 v{vdst}, 0")
        g.vmem(f"buffer_atomic_add v{vdst}, v{vaddr}, {sr(srd)}, 0 offen{o} sc0 sc1", tag)
    else:
        g.vmem(f"buffer_load_dword v{vdst}, v{vaddr}, {sr(srd)}, 0 offen{o} sc1", tag)
    e("s_mov_b64 exec, -1")
def test(vres, vaddr, target):
    e(f"v_cmp_eq_u32 vcc, 0, v{vres}")
    e(f"s_and_b32 s{s_t1}, vcc_lo, {pmask(vaddr)}")
    e(f"s_cbranch_scc0 {target}")
def spin(label, vaddr, srd, off, sleep=0):
    e(f"s_mov_b32 s{s_spin}, 0x40000")
    g.lab(label)
    poll(vT, vaddr, srd, off, 'sp')
    e("s_waitcnt vmcnt(0)")
    test(vT, vaddr, f"{label}_ok")
    if sleep: e(f"s_sleep {sleep}")
    e(f"s_sub_u32 s{s_spin}, s{s_spin}, 1")
    e(f"s_cmp_lg_u32 s{s_spin}, 0")
    e(f"s_cbranch_scc1 {label}")
    g.lab(label + "_ok")
    g.vm = []
def check_or_spin(label, vres, tag, vaddr, srd, off, pre=None):
    g.need_vm([tag])
    test(vres, vaddr, f"{label}_ok")
    save = list(g.vm)
    if pre: pre()
    spin(label, vaddr, srd, off)
    g.vm = save

def epi_ops(acc, s, mt, packed):
    ops = []; d = EPI + 4*mt
    for ql in range(2):
        a = accr(acc, 2*ql, mt); b = accr(acc, 2*ql + 1, mt)
        if packed:
            for i in range(2): ops.append(lambda a=a, b=b, i=i: e(f"v_pk_mul_f32 v[{a+2*i}:{a+2*i+1}], v[{a+2*i}:{a+2*i+1}], v[{b+2*i}:{b+2*i+1}]"))
        else:
            for i in range(4): ops.append(lambda a=a, b=b, i=i: e(f"v_mul_f32 v{a+i}, v{a+i}, v{b+i}"))
    for ql in range(2):
        a = accr(acc, 2*ql, mt)
        for i in range(2): ops.append(lambda a=a, i=i, ql=ql: e(f"v_cvt_pk_bf16_f32 v{d+2*ql+i}, v{a+2*i}, v{a+2*i+1}"))
    if mt == 0 and s == 1: ops.append(lambda: e(f"s_add_u32 s{s_hst}, s{s_hst}, {HS}"))
    off = f" offset:{1024*mt}" if mt else ""
    ops.append(lambda: g.vmem(f"buffer_store_dwordx4 {vr(d)}, v{vL16}, {sr(sH)}, s{s_hst} offen{off} sc1", ('hs', s)))
    return ops

def flag_store(s):
    e(f"v_mov_b32 v{vT2}, s{s_flag}")
    e(f"v_mov_b32 v{vT}, 1")
    e("s_mov_b64 exec, 1")
    op = "buffer_atomic_or" if args.pollmode == "atomic" else "buffer_store_dword"
    g.vmem(f"{op} v{vT}, v{vT2}, {sr(sH)}, 0 offen offset:{FS*s} sc1", ('fl', s))
    e("s_mov_b64 exec, -1")

def hidx(i):
    s, r_ = divmod(i, 28)
    if s == 0: jj, lam = divmod(r_, 4)
    else: jj, lam = r_ % 7, (r_ // 7 + 1) % 4
    return s, jj, lam, r_
def h_load(i):
    s, jj, lam, r_ = hidx(i)
    dst = ar(hreg[r_]) if s == 0 else vr(HB + r_*4)
    if i == 28:
        for q in range(7): e(f"s_add_u32 s{s_rh+q}, s{s_rh+q}, {HS}")
    g.vmem(f"buffer_load_dwordx4 {dst}, v{vH+lam}, {sr(sH)}, s{s_rh+jj} offen sc1", ('h', i))
def mf(i, nt):
    s, jj, lam, r_ = hidx(i)
    g.need_vm([('h', i)])
    g.need_lg([('Dr', s*7 + jj)])
    f_, base = homes[s*7 + jj]
    r = base + nt*4
    acc = ACC2 + (lam*4 + nt)*4
    c = "0" if i < 4 else vr(acc)
    h = ar(hreg[r_]) if s == 0 else vr(HB + r_*4)
    e(f"{MF} {vr(acc)}, {f_}[{r}:{r+3}], {h}, {c}")
def tail_setup():
    e(f"v_lshlrev_b32 v{vL16}, 4, v0")
    for lam in range(1, 4):
        e(f"s_xor_b32 s{s_a}, s{s_w}, {lam}")
        e(f"s_mul_i32 s{s_a}, s{s_a}, {PWS}")
        e(f"s_add_u32 s{s_a}, s{s_a}, {PB + (lam-1)*4096}")
        e(f"v_add_u32 v{vTR+lam-1}, s{s_a}, v{vL16}")
    e(f"v_add_u32 v{vTW}, s{s_mP}, v{vL16}")
    e(f"v_and_b32 v{vTO}, 15, v0")
    e(f"v_lshlrev_b32 v{vTO}, 10, v{vTO}")
    e(f"v_bfe_u32 v{vTO+1}, v0, 4, 1")
    e(f"v_lshl_add_u32 v{vTO}, v{vTO+1}, 5, v{vTO}")
    e(f"v_lshrrev_b32 v{vTO+1}, 5, v0")
    e(f"v_lshl_add_u32 v{vTO}, v{vTO+1}, 4, v{vTO}")
HD = args.hdepth

e(f"s_cmp_eq_u32 s{s_col}, 0")
e("s_cbranch_scc1 L_spare")

mand = []
for n in range(16):
    for k in range(8):
        if first_k[k] == n: mand.append((n, 'X', k, ('P', k % NXB)))
    mand.append((n, 'W', n, ('W', n % NW)))
for (_, kind, n, where) in mand[:2]:
    for f in dma4(kind, n, where): f()
def touch_setup(k0):
    e(f"s_lshl_b32 s{s_a}, s{s_mb}, 2")
    e(f"s_add_u32 s{s_a}, s{s_a}, s{s_w}")
    e(f"s_add_u32 s{s_a}, s{s_a}, {64*k0}")
    e(f"s_mul_i32 s{s_a}, s{s_a}, 3584")
    e(f"s_add_u32 s{s_a}, s{s_a}, s{s_woff}")
    e("v_lshrrev_b32 v242, 3, v0")
    e("v_and_b32 v243, 7, v0")
    e("v_and_b32 v240, 1, v0")
    e("v_lshlrev_b32 v240, 7, v240")
    e(f"v_mul_u32_u24 v244, {64*3584}, v242")
    e(f"v_add3_u32 v240, v240, v244, s{s_a}")
    e(f"s_lshl_b32 s{s_a}, s{s_fb}, 2")
    e(f"s_add_u32 s{s_a}, s{s_a}, s{s_w}")
    e(f"s_mul_i32 s{s_a}, s{s_a}, 3")
    e(f"s_sub_u32 s{s_a}, s{s_a}, 4")
    e("v_max_u32 v241, 4, v243")
    e(f"v_add_u32 v241, s{s_a}, v241")
    e("v_min_u32 v241, 127, v241")
    e("v_lshlrev_b32 v241, 10, v241")
    e("v_lshl_add_u32 v241, v242, 7, v241")
    e(f"s_add_u32 s{s_a}, s{s_xoff}, {128*k0}")
    e(f"v_add_u32 v241, s{s_a}, v241")
def touch(n, n0=0):
    m = sum(1 << (8*j_) for j_ in range(n0, n))
    for bits, srd, v_, off in ((3, sG, 240, 0), (12, sU, 240, 1024), (0x70, sX, 241, 0)):
        mk = m * bits
        e(f"s_mov_b32 exec_lo, {mk & 0xffffffff}")
        e(f"s_mov_b32 exec_hi, {mk >> 32}")
        g.vmem(f"buffer_load_dword v250, v{v_+8}, {sr(srd)}, 0 offen offset:{off}", "pf")
    e("s_mov_b64 exec, -1")
if args.touch:
    tk0, tn = map(int, args.touch.split(","))
    touch_setup(tk0)
    e("v_mov_b32 v248, v240"); e("v_mov_b32 v249, v241")
    if args.tpos == 0: touch(tn)
wtab_setup()
late_addr_setup()
e(f"s_lshr_b32 s{s_a}, s{s_w}, 1")
e(f"s_lshl_b32 s{s_b}, s{s_mb}, 1")
e(f"s_add_u32 s{s_a}, s{s_a}, s{s_b}")
e(f"s_and_b32 s{s_b}, s{s_fb}, 1")
e(f"s_lshl_b32 s{s_b}, s{s_b}, 1")
e(f"s_and_b32 s{s_t1}, s{s_w}, 1")
e(f"s_add_u32 s{s_b}, s{s_b}, s{s_t1}")
e(f"s_mul_i32 s{s_hst}, s{s_a}, {HM}")
e(f"s_mul_i32 s{s_t1}, s{s_b}, {HQ}")
e(f"s_add_u32 s{s_hst}, s{s_hst}, s{s_t1}")
e(f"s_lshr_b32 s{s_t2}, s{s_fb}, 1")
e(f"s_lshl_b32 s{s_t1}, s{s_t2}, 13")
e(f"s_add_u32 s{s_hst}, s{s_hst}, s{s_t1}")
e(f"s_add_u32 s{s_t1}, s{s_a}, s{s_b}")
h_pattern(vL16, s_t1)
e(f"s_cmp_ge_u32 s{s_t2}, 3")
e(f"s_addc_u32 s{s_t2}, s{s_t2}, 0")
e(f"s_lshl_b32 s{s_t2}, s{s_t2}, 7")
e(f"s_lshl_b32 s{s_b}, s{s_b}, 11")
e(f"s_add_u32 s{s_b}, s{s_b}, s{s_t2}")
e(f"s_lshl_b32 s{s_t1}, s{s_a}, 13")
e(f"s_add_u32 s{s_b}, s{s_b}, s{s_t1}")
e(f"s_add_u32 s{s_flag}, s{s_b}, {FBASE}")
e(f"s_lshl_b32 s{s_a}, s{s_a}, 2")
e(f"s_lshl_b32 s{s_b}, s{s_m64}, 2")
e(f"v_mov_b32 v{vMk}, s{s_a}")
e(f"v_mov_b32 v240, s{s_b}")
e("v_cmp_lt_u32 vcc, 0, v0")
e("s_nop 1")
e(f"v_cndmask_b32 v{vMk}, v{vMk}, v240, vcc")

def phase2A(R, stay, dplace, lateops, late, nh, extra):
    dmove = {}; slot_ = 0
    plan = {}; q = [('h', i) for i in range(nh, 28)]; lo = list(lateops); it = args.quiet if R != "S" else 0
    late_done = {}
    def takeD(c):
        c.append(('d', lo.pop(0)))
        if len(lo) % 4 == 0: late_done[late[len(late) - 1 - len(lo)//4]] = it
    while q or lo:
        c = []
        behind = q and q[0][1] - it < 8
        if q: c.append(q.pop(0))
        while len(c) < args.per and (q or lo):
            if q and (behind or not lo):
                if not behind and not lo and it >= 4 + args.quiet: break
                c.append(q.pop(0))
            else: takeD(c)
        for o in c:
            if o[0] == 'h': assert o[1] > it, ("h load late", o, it)
        plan[it] = c; it += 1
    for j in stay:
        p_ = slot_ if j not in reuse else max(4*reuse[j] + 3 + 2, slot_)
        if j in late_done: p_ = max(p_, late_done[j] + 8)
        p_ = min(p_, 26)
        dmove.setdefault(p_, []).append(j); slot_ = p_ + 2
        assert p_ + 1 < min(i for i in range(56) if hidx(i)[0]*7 + hidx(i)[1] == j), ("D move too late", j, p_)
    CB = args.chkB_i
    assert it <= CB, ("issue plan too long", it)
    pend = []
    def vm_(o):
        if o[0] == 'h': h_load(o[1])
        else: o[1]()
    def body(i, loads):
        for j in dmove.get(i, []):
            ops = d_reads(j, dplace[j])
            pend.append(lambda j=j, f=ops[0]: (g.need_vm([('D', j)]), f()))
            pend.extend(ops[1:])
        side = [lambda o=o: vm_(o) for o in loads] + list(extra.get(i, []))
        for nt in range(4):
            mf(i, nt)
            if args.st2 and nt == 0 and i in (0, 8): g.stamp(4 if i == 0 else 6)
            if side: side.pop(0)()
            elif pend: pend.pop(0)()
            if pend: pend.pop(0)()
        for f in side: f()
    def flush():
        while pend: pend.pop(0)()
        g.need_lg(g.lg[:])
    for i in range(CB):
        body(i, plan.get(i, []))
        if i == args.pollB: poll(vP2, vFl, sH, FS, 'pb')
    if args.st2: g.stamp(1)
    g.need_vm(['pb'])
    if args.st2: g.stamp(2)
    test(vP2, vFl, f"L_fastB{R}")
    sv = list(g.vm), list(g.lg), list(pend)
    poll(vP2, vFl, sH, FS, 'pb2')
    for i in range(CB, 28): body(i, [])
    flush()
    g.need_vm(['pb2'])
    test(vP2, vFl, f"L_pb{R}_ok")
    pr = [vT, vT2, vP1, vP2][:args.npoll]
    e(f"s_mov_b32 s{s_spin}, 0x20000")
    for r_ in pr[:-1]:
        poll(r_, vFl, sH, FS, 'x'); e("s_sleep 1")
    g.lab(f"L_pb{R}")
    for k_ in range(len(pr)):
        poll(pr[k_ - 1], vFl, sH, FS, 'x')
        e(f"s_waitcnt vmcnt({len(pr) - 1})")
        test(pr[k_], vFl, f"L_pb{R}_ok")
    e(f"s_sub_u32 s{s_spin}, s{s_spin}, 1")
    e(f"s_cmp_lg_u32 s{s_spin}, 0")
    e(f"s_cbranch_scc1 L_pb{R}")
    g.lab(f"L_pb{R}_ok")
    g.vm = []
    g.stamp(13)
    for i in range(28, 28 + HD): h_load(i)
    e("s_branch L_B")
    g.lab(f"L_fastB{R}")
    g.vm, g.lg = sv[0], sv[1]; pend[:] = sv[2]
    q = list(range(28, 28 + HD)); per = -(-HD // (28 - CB))
    for i in range(CB, 28):
        body(i, [('h', q.pop(0)) for _ in range(min(per, len(q)))])
    assert not q
    flush()
    assert [t for t in g.vm if t[0] != 'h' or t[1] < 28] == [], g.vm

vm0 = list(g.vm)
def main_path(R):
    g.vm = list(vm0); g.lg = []
    L_ = R == "L"
    pre_ = args.l_pre if L_ else args.pre
    minlead_ = args.l_minlead if L_ else args.minlead
    maxlead_ = 999 if L_ else args.maxlead
    dstart_ = args.l_dstart if L_ else args.dstart
    issued = {m[1:3] for m in mand[:2]}
    rest = list(mand[2:])
    for (_, kind, n, where) in rest[:pre_ - 2]:
        assert (n < NW if kind == 'W' else n < NXB)
        for f in dma4(kind, n, where): f()
        issued.add((kind, n))
    rest = rest[pre_ - 2:]
    if args.touch and args.tpos == 1: touch(tn)
    g.stamp(2)
    rates = [int(x) for x in (args.l_rates if L_ and args.l_rates else args.rates).split(",")]
    slotc = {}
    for n in range(16):
        for i in range(rates[n]): slotc[32*n + START + (32*i)//rates[n]] = 1
    st = dict(credit=0, dnext=0, cur=None, nh=0, j=START)
    dma_q = []; lds_q = []; epi_q = []; misc_q = []
    wfree = {n: n < NW for n in range(16)}; xfree = {k: k < NXB for k in range(8)}
    dblocks = [('P', b_) for b_ in range(NXB, NP)]
    pending = []; dplace = {}; dland = []; dread_done = []; log = []; xdone = set(); xrel = []; inreg = []
    epiA_done = set()
    for mt in range(4):
        ops_ = epi_ops(ACC0, 0, mt, False)
        ops_[-1] = (lambda f=ops_[-1], mt=mt: (f(), epiA_done.add(mt)))
        for f in ops_: epi_q.append(((done_at(0, mt) + 8) if args.mergeA else (done_at(0, 3) + 6), 'A', f))
    for mt in range(3):
        for f in epi_ops(ACC1, 1, mt, False): epi_q.append((done_at(1, mt) + 8, 'B', f))
    bar_at = {p: n for n, p in bpos.items()}
    def release(kind, i):
        if kind == 'W':
            if i + NW < 16: wfree[i + NW] = True
            else: dblocks.append(('W', i % NW))
        else:
            if i + NXB < 8: xfree[i + NXB] = True
            else: dblocks.append(('P', i % NXB))
        dblocks.sort(key=lambda b_: b_[0] != 'P')
    def barrier(n):
        tags = [('W', n)] + [('X', k) for k in range(8) if first_k[k] == n]
        assert all(t in issued for t in tags), (R, n)
        g.need_vm(tags)
        for k in list(xrel):
            if args.lf: assert all((k, T, mt) in xdone for T in range(2) for mt in range(4))
            if args.lf or (all((k, T, mt) in xdone for T in range(2) for mt in range(4)) and not any(t_[0] == 'x' and t_[1] == k for t_ in g.lg[-6:])):
                g.need_lg([('x', k, T, mt) for T in range(2) for mt in range(4)])
                pending.append(('X', k)); xrel.remove(k)
        e("s_barrier")
        for kind, i in pending: release(kind, i)
        pending.clear()
        for k in range(8):
            if first_k[k] == n:
                xrel.append(k)
                for T, mt in sorted(((T, mt) for T in range(2) for mt in range(4)), key=lambda tm: min(j_ for j_, (i, m_) in enumerate(mseq) if m_ == tm[1] and uses[i][:2] == (n, tm[0]))):
                    if True:
                        def f(k=k, T=T, mt=mt):
                            assert k < NXK or st['j'] > xlast[k - NXK], ("x slot busy", k, st['j'])
                            r = ((k % NXK)*8 + T*4 + mt)*4
                            g.ds(f"ds_read_b128 {ar(r)}, v{vRX+T} offset:{(mt >> 1)*PWS + (mt & 1)*2048 + (k % NXB)*4096}", ('x', k, T, mt))
                            xdone.add((k, T, mt))
                        lds_q.append(('x', f))
                lds_q.sort(key=lambda o: o[0] != 'x')
    def wread(i, half):
        n, T, c = uses[i]
        fl, b = wbuf[i]; b += 2*half
        if i in wneed: assert wneed[i] in epiA_done, ('acc0 not free', i, st['j'])
        off = (n % NW) * 8192 + T * 4096 + (c & 1) * 1024 + 512*half
        g.ds(f"ds_read_b64_tr_b16 {fl}[{b}:{b+1}], v{vRW + (c >> 1)} offset:{off}", ('w', i))
    def pick(j):
        d = dorder[st['dnext']] if st['dnext'] < 14 else None
        can_d = d is not None and dblocks and j >= dstart_
        for idx, (dl, kind, n, where) in enumerate(rest[:3]):
            ok = wfree[n] if kind == 'W' else xfree[n]
            lead = bpos[dl] - j
            extra = 16 if any(r_[0] == dl for r_ in rest[idx+1:idx+2]) else 0
            minl = max(minlead_, args.latelead) if dl >= args.latefrom else minlead_
            maxl = max(maxlead_, args.latelead + 16) if dl >= args.latefrom else maxlead_
            urgent = lead < minl + 16 + extra
            if ok and lead <= maxl + extra and (urgent or not can_d):
                rest.pop(idx); log.append(f"{kind}{n}@{j}(-{lead})")
                assert lead > 20, ("late", R, kind, n, j)
                return kind, n, where
            if not ok and lead < 48: return None
            if ok: break
        if can_d:
            blk = dblocks.pop(0 if d in early_ok else -1); st['dnext'] += 1; dplace[d] = blk; log.append(f"D{d}@{j}")
            return 'D', d, blk
        return None
    barrier(0)
    g.stamp(3)
    for j in range(START, NM):
        n0 = len(g.L)
        if j >= 0:
            i, mt = mseq[j]
            n, T, c = uses[i]
            s_, k = steps[n]
            assert (k, T, mt) in xdone, ("x read late", j)
            tg = [('w', i), ('x', k, T, mt)]
            if j == first_use[i] and i % args.wgrp == 0:
                tg += [('w', i_) for i_ in range(i, min(i + args.wgrp, NU)) if g.lg.count(('w', i_)) == 2]
            if mt == 0: tg += [('x', k, T, m_) for m_ in range(4)]
            g.need_lg(tg)
            acc = accr(ACC0 if s_ == 0 else ACC1, c, mt)
            cc = "0" if (k == 0 and T == 0) else vr(acc)
            e(f"{MF} {vr(acc)}, {wbuf[i][0]}[{wbuf[i][1]}:{wbuf[i][1]+3}], {ar(((k % NXK)*8 + T*4 + mt)*4)}, {cc}")
            if i == last_u[n] and j == first_use[i]: pending.append(('W', n))
            if args.stepstamps and j % 64 == 63: g.stamp(4 + j // 64, True)
            nxt_wait = j + 1 < NM and first_use[mseq[j+1][0]] == j + 1 and ('w', mseq[j+1][0]) in g.lg
            n0 = len(g.L) - (1 if nxt_wait else 0)
        used = lambda: len(g.L) - n0
        for i_, h_ in rsched.get(j, []): wread(i_, h_)
        if j in bar_at and bar_at[j] > 0: barrier(bar_at[j])
        if j == args.pollA_at: poll(vP1, vFl, sH, 0, 'pa')
        if j == args.chkA_at:
            assert not misc_q and not rest
            check_or_spin(f"L_pa{R}", vP1, 'pa', vFl, sH, 0)
            g.stamp(8)
        if j >= args.chkA_at and st['nh'] < args.hpre and not dma_q and (j - args.chkA_at) % 4 == 1:
            h_load(st['nh']); st['nh'] += 1
        if args.touch2 and j == int(args.touch2): touch(8 - tk0, tn)
        if j == args.mkat: poll(vP1, vMk, sB, 0, 'mk')
        if j == args.flagA_at:
            assert not any(t_ == 'A' for _, t_, _ in epi_q)
            check_or_spin(f"L_mk{R}", vP1, 'mk', vMk, sB, 0)
            g.need_vm([('hs', 0)])
            flag_store(0)
            g.stamp(4)
        while dland and dland[0][0] <= j and not any(o[0] == 'd' for o in lds_q) and j < NM - 40 and not (args.mergeA and j <= endA and homes[dland[0][1]][0] == 'a' and homes[dland[0][1]][1] >= 192):
            _, it = dland.pop(0)
            ops = d_reads(it, dplace[it]); inreg.append(it)
            lds_q.append(('d', lambda it=it, f=ops[0]: (g.need_vm([('D', it)]), f())))
            for f in ops[1:-1]: lds_q.append(('d', f))
            lds_q.append(('d', lambda it=it, f=ops[-1]: (f(), dread_done.append((st['j'] + 8, it)))))
        st['j'] = j
        while dread_done and dread_done[0][0] <= j:
            _, it = dread_done.pop(0)
            g.need_lg([('Dr', it)]); dblocks.insert(0, dplace[it])
        if j in slotc: st['credit'] = min(st['credit'] + 1, 2)
        if lds_q and lds_q[0][0] == 'x' and used() < args.cap + 1: lds_q.pop(0)[1]()
        if not dma_q and (st['credit'] or any(j + q_ in slotc for q_ in (1, 2, 3))) and j < min(args.chkA_at - 12, args.dstop):
            p_ = pick(j)
            if p_: dma_q = dma_item(*p_); st['cur'] = p_
        while dma_q and dma_q[0][0] == 's' and used() < args.cap + (1 if st['credit'] >= 2 else 0): dma_q.pop(0)[1]()
        if dma_q and dma_q[0][0] == 'v' and st['credit'] and (used() + args.vcost <= args.cap or (st['credit'] >= 2 and used() <= args.cap)) and j < NM - 4 and not g.L[-1].strip().startswith("s_add_u32 m0"):
            dma_q.pop(0)[1](); st['credit'] -= 1
            n0 -= args.vcost - 1
            if not dma_q:
                issued.add(st['cur'][:2])
                if st['cur'][0] == 'D' and st['cur'][1] in early_ok: dland.append((j + (args.dlat if st['dnext'] <= 4 else args.dlat2), st['cur'][1]))
                if st['cur'][:2] == ('X', 7): rd2_setup()
                if st['cur'][0] == 'W' and not any(r_[1] == 'W' for r_ in rest):
                    n1 = len(g.L); rh_setup(); tl = g.L[n1:]; del g.L[n1:]
                    for q_ in range(0, len(tl), 3): misc_q.append(tl[q_:q_+3])
        if lds_q and len(g.lg) < 13 and used() < args.cap and j % 2: lds_q.pop(0)[1]()
        while epi_q and epi_q[0][0] <= j and used() < args.ecap: epi_q.pop(0)[2]()
        while lds_q and len(g.lg) < 13 and used() < args.cap: lds_q.pop(0)[1]()
        if misc_q and used() == 0: g.L += misc_q.pop(0)
    g.stamp(5)
    for t_ in misc_q: g.L += t_
    assert not rest
    for _, f in lds_q: f()
    for _, _, f in epi_q: f()
    e("s_nop 7")
    for f in epi_ops(ACC1, 1, 3, True): f()
    g.stamp(6)
    g.need_lg(g.lg[:])
    for _, it in dread_done: dblocks.append(dplace[it])
    e("s_barrier")
    assert not xrel
    for kind, i in pending: release(kind, i)
    for _, f in dma_q: f()
    post = dorder[st['dnext']:]
    sys.stderr.write(f"{R}: " + " ".join(log) + f"\n   inreg {inreg} post {post} nh {st['nh']}\n")
    lateops = []
    for n in post:
        dplace[n] = dblocks.pop(0)
        lateops += dma4('D', n, dplace[n])
    stay = [j for j in range(14) if j not in inreg]
    assert len(set(dplace[j] for j in stay)) == len(stay)
    def do_flagB():
        g.need_vm([('hs', 1)])
        flag_store(1)
        g.stamp(7)
    extra = {1: [tail_setup]}
    nfirst = min(args.dfirst*4, len(lateops))
    fbd = False
    for i_ in range(nfirst):
        if args.flagB_i < 0 and i_ == -args.flagB_i: do_flagB(); fbd = True
        lateops.pop(0)()
    post = post[nfirst//4:]
    if args.flagB_i < 0 and not fbd: do_flagB()
    if args.chkA_at >= NM:
        check_or_spin(f"L_pa{R}", vP1, 'pa', vFl, sH, 0, pre=(lambda: (g.need_vm([('hs', 1)]), flag_store(1))) if args.flagB_i >= 0 else None)
        g.stamp(8)
        while st['nh'] < args.hpre: h_load(st['nh']); st['nh'] += 1
    if args.flagB_i >= 0: extra.setdefault(args.flagB_i, []).append(do_flagB)
    phase2A(R, stay, dplace, lateops, post, st['nh'], extra)
    e("s_branch L_B")

xrel_log = {}
if args.lf:
    e(f"s_cmp_lg_u32 s{s_w}, s{s_c}")
    e("s_cbranch_scc1 L_follow")
    main_path("L")
    g.lab("L_follow")
main_path("F")
stay = sorted(reuse); inreg = [j for j in range(14) if j not in stay]; dplace = {j: ('P', q_) for q_, j in enumerate(stay)}

g.lab("L_spare")
g.vm = []; g.lg = []
e(f"s_cmp_lg_u32 s{s_w}, 0")
e("s_cbranch_scc1 L_sp1")
e(f"s_lshl_b32 s{s_a}, s{s_m64}, 13")
e(f"s_add_u32 s{s_a}, s{s_a}, {FBASE}")
e("v_lshlrev_b32 v240, 7, v0")
e("v_mov_b32 v241, 0")
e(f"buffer_store_dword v241, v240, {sr(sH)}, s{s_a} offen sc1")
g.lab("L_sp1")
def sp_touch():
    e("v_min_u32 v240, 55, v0")
    e(f"s_lshl_b32 s{s_a}, s{s_m64}, 2")
    e(f"s_add_u32 s{s_a}, s{s_a}, s{s_w}")
    e(f"s_and_b32 s{s_b}, s{s_a}, 63")
    e(f"s_lshr_b32 s{s_a}, s{s_a}, 6")
    e(f"s_lshl_b32 s{s_a}, s{s_a}, 7")
    e(f"s_add_u32 s{s_a}, s{s_a}, s{s_b}")
    e(f"s_lshl_b32 s{s_a}, s{s_a}, 10")
    e("v_lshrrev_b32 v242, 3, v240")
    e("v_lshlrev_b32 v242, 18, v242")
    e("v_and_b32 v247, 7, v240")
    e("v_lshl_add_u32 v242, v247, 7, v242")
    g.vmem(f"buffer_load_dword v249, v242, {sr(sD)}, s{s_a} offen", "pf")
    e(f"s_add_u32 s{s_a}, s{s_a}, 65536")
    g.vmem(f"buffer_load_dword v250, v242, {sr(sD)}, s{s_a} offen", "pf")
npf = 0
if args.sppf >= 0:
    e(f"s_lshl_b32 s{s_a}, s{s_mb}, 2")
    e(f"s_add_u32 s{s_a}, s{s_a}, s{s_w}")
    e(f"s_add_u32 s{s_a}, s{s_a}, {64*args.sppf}")
    e(f"s_mul_i32 s{s_a}, s{s_a}, 3584")
    e(f"s_and_b32 s{s_b}, s{s_xcd}, 1")
    e(f"s_mul_i32 s{s_b}, s{s_b}, 1792")
    e(f"s_add_u32 s{s_a}, s{s_a}, s{s_b}")
    e(f"s_lshl_b32 s{s_b}, s{s_m64}, 2")
    e(f"s_add_u32 s{s_b}, s{s_b}, s{s_w}")
    e(f"s_lshl_b32 s{s_b}, s{s_b}, 14")
    e(f"s_add_u32 s{s_b}, s{s_b}, {128*args.sppf - 28*1024 + (1 << 32)}")
    e("v_lshlrev_b32 v243, 10, v0")
    e(f"v_add_u32 v243, s{s_b}, v243")
    e(f"v_mov_b32 v252, s{sX}")
    e(f"v_mov_b32 v253, s{sX+1}")
    e("v_mov_b32 v254, 128")
    e("s_mov_b64 exec, 0xfffffff")
    e("v_lshlrev_b32 v243, 7, v0")
    e(f"s_sub_u32 s{s_b}, s{s_a}, {14*128 - 1024}")
    e(f"v_add_u32 v243, s{s_b}, v243")
    e(f"v_mov_b32 v252, s{sU}")
    e(f"v_mov_b32 v253, s{sU+1}")
    e(f"v_mov_b32 v254, {64*3584}")
    e("s_mov_b64 exec, 0x3fff")
    e("v_lshlrev_b32 v243, 7, v0")
    e(f"v_add_u32 v243, s{s_a}, v243")
    e(f"v_mov_b32 v252, s{sG}")
    e(f"v_mov_b32 v253, s{sG+1}")
    e("s_mov_b32 exec_lo, -1")
    e("s_mov_b32 exec_hi, 0xfff")
    e("v_add_co_u32 v252, vcc, v252, v243")
    e("v_addc_co_u32 v253, vcc, 0, v253, vcc")
    for kb in range(args.sppf, 8):
        if kb == args.sppfd:
            e("s_mov_b64 exec, -1"); sp_touch(); npf += 2
            e("s_mov_b32 exec_hi, 0xfff")
        g.vmem("global_load_dword v251, v[252:253], off", "pf"); npf += 1
        if kb < 7:
            e("v_add_co_u32 v252, vcc, v252, v254")
            e("v_addc_co_u32 v253, vcc, 0, v253, vcc")
    e("s_mov_b64 exec, -1")
def s3_touch():
    e(f"s_lshl_b32 s{s_a}, s{s_c}, 2")
    e(f"s_add_u32 s{s_a}, s{s_a}, s{s_w}")
    e(f"s_and_b32 s{s_b}, s{s_xcd}, 1")
    e(f"s_mul_i32 s{s_b}, s{s_b}, 3")
    e("v_bfe_u32 v243, v0, 1, 2")
    e(f"v_add_u32 v243, s{s_b}, v243")
    e("v_and_b32 v244, 1, v243")
    e("v_lshrrev_b32 v245, 3, v0")
    e("v_lshl_add_u32 v244, v245, 6, v244")
    e("v_and_b32 v245, 1, v0")
    e("v_lshl_add_u32 v244, v245, 1, v244")
    e("v_mul_u32_u24 v244, 3584, v244")
    e("v_lshl_add_u32 v244, v243, 9, v244")
    e(f"s_mul_i32 s{s_b}, s{s_a}, {4*3584}")
    g.vmem(f"buffer_load_dword v251, v244, {sr(sG)}, s{s_b} offen offset:384", "pf")
    g.vmem(f"buffer_load_dword v252, v244, {sr(sU)}, s{s_b} offen offset:{384+1024}", "pf")
    e(f"s_lshr_b32 s{s_b}, s{s_xcd}, 1")
    e(f"s_lshl_b32 s{s_b}, s{s_b}, 4")
    e(f"s_add_u32 s{s_b}, s{s_b}, s{s_a}")
    e(f"s_lshl_b32 s{s_b}, s{s_b}, 15")
    e("v_lshlrev_b32 v244, 10, v0")
    e("s_mov_b32 exec_hi, 0")
    g.vmem(f"buffer_load_dword v253, v244, {sr(sX)}, s{s_b} offen offset:384", "pf")
    e("s_mov_b64 exec, -1")
if args.s3pf == 1: s3_touch(); npf += 3
if not args.nomall and args.spt == 0:
    if not (args.sppf <= args.sppfd < 8): sp_touch(); npf += 2
    if args.s3pf == 2: s3_touch(); npf += 3
    e(f"s_waitcnt vmcnt({npf})")
else:
    e("s_waitcnt vmcnt(0)")
e(f"s_cmp_lg_u32 s{s_w}, 0")
e("s_cbranch_scc1 L_sp2")
e(f"s_lshl_b32 s{s_a}, s{s_m64}, 2")
e(f"v_mov_b32 v247, s{s_a}")
e("v_mov_b32 v248, 1")
e("s_mov_b64 exec, 1")
e(f"buffer_store_dword v248, v247, {sr(sB)}, 0 offen sc1")
e("s_mov_b64 exec, -1")
g.lab("L_sp2")
g.stamp(4)
late_addr_setup()
rh_setup()
free2 = [('P', NP - 1), ('P', NP - 2)]
assert len(stay) <= NP - 2
prev = None
for q_, j in enumerate(dorder):
    if not args.nomall and args.spt and q_ == args.spt: sp_touch()
    blk = dplace[j] if j in stay else free2[q_ % 2]
    for f in dma4('D', j, blk):
        f()
        if len(g.vm) > args.sppace:
            e(f"s_waitcnt vmcnt({args.sppace})"); g.vm = g.vm[-args.sppace:] if args.sppace else []
    if prev is not None:
        g.need_vm([('D', prev[0])])
        for f in d_reads(*prev): f()
        g.need_lg(g.lg[:])
    prev = (j, blk) if j in inreg else None
if prev is not None:
    g.need_vm([('D', prev[0])])
    for f in d_reads(*prev): f()
    g.need_lg(g.lg[:])
e(f"s_lshl_b32 s{s_a}, s{s_m64}, 2")
e(f"v_mov_b32 v{vMk}, s{s_a}")
spin("L_smk", vMk, sB, 0, sleep=8)
g.stamp(5)
spin("L_spa", vFl, sH, 0, sleep=args.spsleep)
g.stamp(8)
for i in range(HD): h_load(i)
g.lg = []
phase2A("S", stay, dplace, [], [], HD, {0: [tail_setup]})

g.lab("L_B")
g.stamp(9)
g.vm = [('h', i) for i in range(28, 28 + HD)]; g.lg = []
def wr(lam, a):
    r = ACC2 + lam*16 + a*4
    g.ds(f"ds_write_b128 v{vTW}, {vr(r)} offset:{(lam-1)*4096 + a*1024}", ('wr', lam))
def rd(sl, a):
    g.ds(f"ds_read_b128 {vr(ACC2 + 16 + 4*(sl*4+a))}, v{vTR+sl} offset:{a*1024}", ('rd', sl*4+a))
def padd(d, t):
    e(f"v_pk_add_f32 v[{d}:{d+1}], v[{d}:{d+1}], v[{t}:{t+1}]")
    e(f"v_pk_add_f32 v[{d+2}:{d+3}], v[{d+2}:{d+3}], v[{t+2}:{t+3}]")
def sync():
    g.need_lg(g.lg[:]); e("s_barrier")
    for a in range(4):
        for sl in range(3): rd(sl, a)
def sum_(a):
    g.need_lg([('rd', 8 + a)])
    padd(ACC2 + 16 + 4*a, ACC2 + 32 + 4*a); padd(ACC2 + 16 + 4*a, ACC2 + 48 + 4*a)
side = {}
for lam in (1, 2):
    for a in range(4): side.setdefault((28 + 7*lam + 2 + a, 1), []).append(lambda lam=lam, a=a: wr(lam, a))
for a in range(4): side.setdefault((51, a), []).append(lambda a=a: wr(3, a))
side.setdefault((53, 1), []).append(sync)
nxt = 28 + HD
for i in range(28, 56):
    for nt in range(4):
        mf(i, nt)
        if nt == 0 and nxt < 56: h_load(nxt); nxt += 1
        for f in side.get((i, nt), []): f()
g.stamp(10)
for a in range(4): sum_(a)
for a in range(4): padd(ACC2 + 4*a, ACC2 + 16 + 4*a)
for i in range(8):
    e(f"v_cvt_pk_bf16_f32 v{EPI+i}, v{ACC2+2*i}, v{ACC2+2*i+1}")
e("s_nop 1")
e(f"v_permlane16_swap_b32 v{EPI}, v{EPI+2}")
e(f"v_permlane16_swap_b32 v{EPI+1}, v{EPI+3}")
e(f"v_permlane16_swap_b32 v{EPI+4}, v{EPI+6}")
e(f"v_permlane16_swap_b32 v{EPI+5}, v{EPI+7}")
e(f"buffer_store_dwordx4 {vr(EPI)}, v{vTO}, {sr(sO)}, s{s_oadr} offen {args.outflags}")
e(f"buffer_store_dwordx4 {vr(EPI+4)}, v{vTO}, {sr(sO)}, s{s_oadr} offen offset:64 {args.outflags}")
if args.stamps:
    g.stamp(11)
    e("s_waitcnt vmcnt(0)")
    g.stamp(12)
    e("s_waitcnt lgkmcnt(0)")
if args.diag:
    a_, b_, K_, wg_ = map(int, args.diag.split(","))
    if wg_ >= 0: e(f"s_cmp_lg_u32 s2, {wg_}")
    else: e(f"s_cmp_eq_u32 s{s_col}, 0")
    e("s_cbranch_scc1 L_end")
    e(f"s_sub_u32 s46, s{s_st+2*b_}, s{s_st+2*a_}")
    e(f"s_mul_i32 s46, s46, {K_}")
    e(f"s_add_u32 s46, s46, 5000")
    e(f"s_min_u32 s46, s46, 100000")
    g.lab("L_diag")
    e("s_memrealtime s[48:49]")
    e("s_waitcnt lgkmcnt(0)")
    e(f"s_sub_u32 s47, s48, s{s_st}")
    e("s_cmp_lt_u32 s47, s46")
    e("s_cbranch_scc1 L_diag")
elif args.stamps:
    NS = 14
    for i in range(2*NS): e(f"v_mov_b32 v{64+i}, s{s_st+i}")
    e(f"s_lshl_b32 s46, s2, 2")
    e(f"s_add_u32 s46, s46, s{s_w}")
    e(f"s_mul_i32 s46, s46, {NS*8}")
    e(f"s_add_u32 s46, s46, {STAMP_OFF}")
    e("v_mov_b32 v5, 0")
    e("s_mov_b64 exec, 1")
    for i in range(NS//2): e(f"buffer_store_dwordx4 {vr(64+4*i)}, v5, {sr(sH)}, s46 offen offset:{16*i}")
g.lab("L_end")
e("s_endpgm")
g.lab("L_codeend")

hdr = f"""; Fused bilinear GLU: out = ((x Wg) * (x Wu)) Wd   (generated)
; @launch grid=(256,1,1) block=(256,1,1) lds={LDS}
.amdgcn_target "amdgcn-amd-amdhsa--gfx950"
.text
.globl {KN}
.p2align 8
.type {KN},@function
{KN}:"""
tail = f""".section .rodata,"a"
.p2align 6
.amdhsa_kernel {KN}
  .amdhsa_next_free_vgpr 512
  .amdhsa_next_free_sgpr 102
  .amdhsa_accum_offset 256
  .amdhsa_group_segment_fixed_size 0
  .amdhsa_kernarg_size 56
  .amdhsa_user_sgpr_count 2
  .amdhsa_user_sgpr_kernarg_segment_ptr 1
  .amdhsa_system_sgpr_workgroup_id_x 1
.end_amdhsa_kernel"""
print(hdr); print("\n".join(g.L)); print(tail)
```

```python
import sys, argparse

ap = argparse.ArgumentParser()
A = ap.add_argument
A("--stamps", action="store_true"); A("--stepstamps", action="store_true"); A("--cycstamps", action="store_true")
A("--st2", action="store_true"); A("--diag", default="")
A("--la", type=int, default=16)
A("--cap", type=int, default=2); A("--ecap", type=int, default=4)
A("--outflags", default=""); A("--noprefetch", action="store_true"); A("--nomall", action="store_true")
A("--order", default="0101001010001111"); A("--nxk", type=int, default=4)
A("--merge", type=int, default=2); A("--mtm", type=int, default=8)
A("--hdepth", type=int, default=12); A("--pollB", type=int, default=12); A("--chkB_i", type=int, default=20)
A("--mkat", type=int, default=256); A("--spsleep", type=int, default=8); A("--sppace", type=int, default=4)
A("--flagA_at", type=int, default=442); A("--pollA_at", type=int, default=508); A("--chkA_at", type=int, default=512)
A("--hpre", type=int, default=10); A("--dfirst", type=int, default=3); A("--flagB_i", type=int, default=-10)
A("--quiet", type=int, default=0); A("--dstop", type=int, default=496); A("--npoll", type=int, default=3); A("--per", type=int, default=2)
A("--nw", type=int, default=5); A("--nxb", type=int, default=3)
A("--rates", default="7,7,7,8,8,8,8,8,8,8,8,8,7,7,7,7"); A("--pre", type=int, default=4)
A("--minlead", type=int, default=56); A("--dstart", type=int, default=120); A("--dlat", type=int, default=64)
A("--latelead", type=int, default=80); A("--latefrom", type=int, default=13)
A("--spt", type=int, default=0)
A("--early", type=int, default=16)
A("--dorder", default="0,1,7,8,2,3,4,5,6,9,10,11,12,13")
A("--oldmerge", action="store_true")
A("--dlat2", type=int, default=28)
A("--vcost", type=int, default=2)
A("--wgrp", type=int, default=2)
A("--sppf", type=int, default=-1)
A("--sppfd", type=int, default=99)
A("--perm", default="01234567,23016745,45670123,67452301")
A("--pfq", type=int, default=0)
A("--mergeA", type=int, default=0)
A("--s3pf", type=int, default=0)
A("--lf", action="store_true")
A("--l_rates", default=""); A("--l_pre", type=int, default=6); A("--l_minlead", type=int, default=100); A("--l_dstart", type=int, default=100)
A("--maxlead", type=int, default=999)
A("--touch", default="")
A("--tpos", type=int, default=0)
A("--touch2", default="")
A("--x_nd", type=int, default=14)
A("--fine", default="")
A("--rotc", type=int, default=2)
A("--pk", action="store_true")
A("--pollmode", default="atomic"); A("--krot", type=int, default=1); A("--nos3", action="store_true")
args = ap.parse_args()
if args.diag: args.stamps = True
assert args.pollA_at > args.flagA_at > args.mkat

KN = "standalone__glu_gated_bilinear__prompt_kernel"
NW = args.nw; NP = 10 - NW; NXB = args.nxb
HFS = NW * 8192; PB = 2 * HFS; PWS = NP * 4096; LDS = PB + 4 * PWS
assert LDS == 163840 and NP >= 3
FBASE = 0x1000000; STAMP_OFF = 0x8000000; FS = 1024
HM, HQ, HS, HP = 458752, 114688, 57344, 8192
LA = args.la; NBUF = 8; NM = 512

sX, sG, sU, sD, sH, sO, sB = 8, 12, 16, 20, 24, 28, 32
s_w, s_mb, s_fb, s_m64, s_n64 = 36, 37, 38, 39, 40
s_xoff, s_woff, s_doff = 41, 42, 43
s_mP, s_mW = 44, 45
s_t0, s_t1, s_t2, s_t3 = 46, 47, 48, 49
s_hst, s_spin, s_hld, s_flag = 50, 51, 52, 53
s_oadr, s_xcd, s_col, s_c = 54, 55, 56, 57
s_a, s_b = 58, 59
s_st = 60
s_rh, s_rd = 88, 95
s_kr = 6
s_mX = 7
wtab = [88, 89, 90, 91, 92, 93, 94, 49]
vX, vW, vD = 1, 5, 9
vRW, vRX, vRD, vH = 13, 15, 17, 21
vL16, vFl, vMk, vT, vT2, vP1, vP2 = 25, 26, 27, 28, 29, 30, 31
vRD2 = 1
vTR, vTW, vTO = 5, 8, 13
WBUF = 32
ACC0, ACC1 = 64, 128
ACC2 = ACC0
HB = 128
EPI = 240
NXK = args.nxk
NREG = 3 + (256 - 32*NXK)//16

class G:
    def __init__(s): s.L = []; s.lg = []; s.vm = []
    def e(s, t): s.L.append("    " + t)
    def lab(s, t): s.L.append(t + ":")
    def ds(s, t, tag):
        if len(s.lg) >= 14:
            s.e("s_waitcnt lgkmcnt(12)"); s.lg = s.lg[-12:]
        s.e(t); s.lg.append(tag)
    def vmem(s, t, tag): s.e(t); s.vm.append(tag); assert len(s.vm) <= 63, "vm overflow"
    def need_lg(s, tags):
        idx = max((i for i, t in enumerate(s.lg) if t in tags), default=-1)
        if idx >= 0:
            s.e(f"s_waitcnt lgkmcnt({len(s.lg)-1-idx})"); s.lg = s.lg[idx+1:]
    def need_vm(s, tags):
        idx = max((i for i, t in enumerate(s.vm) if t in tags), default=-1)
        if idx >= 0:
            s.e(f"s_waitcnt vmcnt({len(s.vm)-1-idx})"); s.vm = s.vm[idx+1:]
    def stamp(s, k, force=False):
        if args.stepstamps and 4 <= k <= 11 and not force: return
        if args.stamps: s.e(("s_memtime" if args.cycstamps else "s_memrealtime") + f" s[{s_st+2*k}:{s_st+2*k+1}]")
g = G(); e = g.e
def vr(b, n=4): return f"v[{b}:{b+n-1}]"
def ar(b, n=4): return f"a[{b}:{b+n-1}]"
def sr(b, n=4): return f"s[{b}:{b+n-1}]"
MF = "v_mfma_f32_16x16x32_bf16"

order = [int(c) for c in args.order]
assert len(order) == 16 and sum(order) == 8
steps = []; cnt = [0, 0]
for s_ in order: steps.append((s_, cnt[s_])); cnt[s_] += 1
first_k = {}
for n, (s_, k) in enumerate(steps): first_k.setdefault(k, n)
last_k = {k: max(n for n, (s_, kk) in enumerate(steps) if kk == k) for k in range(8)}
uses = []
mseq = []
nm = 16 - args.merge
lastA = max(n for n in range(16) if steps[n][0] == 0)
regA = list(range(lastA + 1 - args.mergeA, lastA + 1)); regB = list(range(nm, 16))
assert all(steps[n][0] == 0 for n in regA) and all(steps[n][0] == 1 for n in regB) and args.merge <= 2 and args.mergeA <= 2
def accr(acc, c, mt): return acc + (c*4 + mt)*4
wbuf = {}; wneed = {}; region_of = {}; ringprev = {}; ring = []
n = 0
while n < 16:
    reg = regA if regA and n == regA[0] else (regB if regB and n == regB[0] else None)
    if reg:
        b0 = len(uses)
        for n_ in reg:
            for T in range(2):
                for c in range(4):
                    q_ = len(uses) - b0; i_ = len(uses); uses.append((n_, T, c)); region_of[i_] = (b0, 8*len(reg))
                    if reg is regB: wbuf[i_] = ("v", accr(ACC0, q_ % 4, q_ // 4)); wneed[i_] = q_ // 4
                    else: wbuf[i_] = ("a", 192 + 4*q_)
        mseq += [(i, mt) for mt in range(4) for i in range(b0, len(uses))]
        n = reg[-1] + 1
    else:
        for T in range(2):
            for c in range(4):
                i_ = len(uses); uses.append((n, T, c)); mseq += [(i_, mt) for mt in range(4)]
                wbuf[i_] = ("v", WBUF + (len(ring) % NBUF)*4)
                if len(ring) >= NBUF: ringprev[i_] = ring[-NBUF]
                ring.append(i_)
        n += 1
assert len(mseq) == NM
NU = len(uses)
first_use = {}
for j_, (i_, mt_) in enumerate(mseq): first_use.setdefault(i_, j_)
last_use = {i_: j_ for j_, (i_, mt_) in enumerate(mseq)}
rsched = {}; rpos = {}
for i_ in range(NU):
    p_ = first_use[i_] - LA
    if i_ in region_of:
        b0, ln = region_of[i_]
        p_ = first_use[b0] - LA - args.early + ((i_ - b0)*(ln + args.early))//ln
    if i_ in ringprev: p_ = max(p_, last_use[ringprev[i_]] + 1)
    p2 = p_ + (2 if i_ not in region_of else 1)
    assert p2 <= first_use[i_] - 5, ("w read late", i_)
    rsched.setdefault(p_, []).append((i_, 0)); rsched.setdefault(p2, []).append((i_, 1)); rpos[i_] = p_
endA = max(last_use[i] for i in range(NU) if uses[i][0] == lastA)
xlast = {k: max(j_ for j_, (i, mt) in enumerate(mseq) if steps[uses[i][0]][1] == k) for k in range(8)}
first_u = {n: min(i for i, u in enumerate(uses) if u[0] == n) for n in range(16)}
last_u = {n: max(i for i, u in enumerate(uses) if u[0] == n) for n in range(16)}
bpos = {n: rpos[first_u[n]] - 1 for n in range(16)}
START = -LA
def done_at(s_, mt): return max(j for j, (i, m_) in enumerate(mseq) if m_ == mt and steps[uses[i][0]][0] == s_)
busy = sorted({steps[uses[i][0]][1] % NXK for j_, (i, mt) in enumerate(mseq) if j_ >= min(args.chkA_at, NM - 1) - 4})
slots_order = [s_ for s_ in range(NXK) if s_ not in busy] + busy
xregs = [32*s_ + 4*q for s_ in slots_order for q in range(8)]
hreg = xregs[:28]
NFREE = 8*(NXK - len(busy))
spare16 = xregs[28:]
dorder = [int(x) for x in args.dorder.split(",")]
assert sorted(dorder) == list(range(14))
ahomes = [("a", 32*NXK + 16*j) for j in range(NREG - 3)]
phomes = []
for j in range(len(spare16)//4):
    grp = spare16[4*j:4*j+4]
    assert grp == [grp[0] + 4*q for q in range(4)]
    phomes.append(("a", grp[0]))
homes = {j: ("v", 192 + 16*j) for j in range(3)}
early_ok = {0, 1, 2}
reuse = {}; rq = []
for j in dorder:
    if j < 3: continue
    if ahomes: homes[j] = ahomes.pop(0); early_ok.add(j)
    elif phomes: homes[j] = phomes.pop(0)
    else: rq.append(j)
for q_, j in enumerate(sorted(rq)):
    assert j >= 7 and 3 + q_ in homes
    reuse[j] = 3 + q_; homes[j] = homes[3 + q_]
assert args.hpre <= NFREE or args.chkA_at >= NM

g.stamp(0)
for b_, o_ in ((sX, 0), (sG, 8), (sU, 16), (sD, 24), (sO, 32), (sB, 40), (sH, 48)):
    e(f"s_load_dwordx2 s[{b_}:{b_+1}], s[0:1], {o_}")
e("s_cmp_ge_u32 s2, 256")
e("s_cbranch_scc1 L_end")
if not args.noprefetch:
    e("s_getpc_b64 s[4:5]")
    e("s_and_b32 s4, s4, 0xffffff00")
    e(f"s_mov_b32 s6, L_codeend-{KN}")
    e("s_mov_b32 s7, 0x20000")
    if args.pfq == 1:
        e("s_bfe_u32 s3, s2, 0x20003")
        e("s_lshl_b32 s3, s3, 7")
        e("v_lshrrev_b32 v30, 6, v0")
        e("v_and_b32 v29, 15, v0")
        e("v_lshl_add_u32 v30, v30, 4, v29")
        e("v_lshlrev_b32 v30, 9, v30")
        e("s_mov_b64 exec, 0xffff")
        g.vmem("buffer_load_dword v31, v30, s[4:7], s3 offen", "pf")
        e("s_mov_b64 exec, -1")
    elif args.pfq == 2:
        e("s_cmp_lt_u32 s2, 32")
        e("s_cselect_b32 s6, s6, 0")
        e("v_lshlrev_b32 v30, 7, v0")
        g.vmem("buffer_load_dword v31, v30, s[4:7], 0 offen", "pf")
    else:
        e("v_lshlrev_b32 v30, 7, v0")
        g.vmem("buffer_load_dword v31, v30, s[4:7], 0 offen", "pf")
        if args.lf:
            e("v_add_u32 v30, 0x8000, v30")
            g.vmem("buffer_load_dword v31, v30, s[4:7], 0 offen", "pf")
e("v_lshrrev_b32 v30, 6, v0")
e("v_and_b32 v0, 63, v0")
e(f"v_readfirstlane_b32 s{s_w}, v30")
e(f"s_and_b32 s{s_xcd}, s2, 7")
e(f"s_bfe_u32 s{s_c}, s2, 0x20003")
e(f"s_lshr_b32 s{s_col}, s2, 5")
e(f"s_lshr_b32 s{s_mb}, s{s_xcd}, 1")
e(f"s_lshl_b32 s{s_mb}, s{s_mb}, 2")
e(f"s_add_u32 s{s_mb}, s{s_mb}, s{s_c}")
e(f"s_and_b32 s{s_fb}, s{s_xcd}, 1")
e(f"s_mul_i32 s{s_fb}, s{s_fb}, 7")
e(f"s_add_u32 s{s_fb}, s{s_fb}, s{s_col}")
e(f"s_sub_u32 s{s_fb}, s{s_fb}, 1")
e("v_lshrrev_b32 v240, 3, v0")
e("v_and_b32 v241, 7, v0")
e("v_lshrrev_b32 v242, 4, v0")
e(f"s_xor_b32 s{s_b}, s{s_w}, s{s_col}")
e(f"s_and_b32 s{s_b}, s{s_b}, 3")
e(f"s_mul_i32 s{s_mX}, s{s_b}, {PWS}")
e(f"s_add_u32 s{s_mX}, s{s_mX}, {PB}")
e(f"s_lshl_b32 s{s_a}, s{s_b}, 15")
e("v_xor_b32 v243, v241, v242")
e("v_lshlrev_b32 v243, 4, v243")
e(f"v_lshl_add_u32 v{vX}, v240, 10, v243")
e(f"v_add_u32 v{vX}, s{s_a}, v{vX}")
e(f"v_xor_b32 v{vX+1}, 64, v{vX}")
e(f"v_add_u32 v{vX+1}, {7*1024}, v{vX+1}")
e(f"v_add_u32 v{vX+2}, {14*1024}, v{vX}")
e(f"v_add_u32 v{vX+3}, {14*1024}, v{vX+1}")
e(f"s_lshr_b32 s{s_a}, s{s_w}, 1")
e(f"s_lshl_b32 s{s_a}, s{s_a}, 5")
e(f"s_and_b32 s{s_b}, s{s_w}, 1")
e(f"s_lshl_b32 s{s_t0}, s{s_b}, 3")
e(f"s_add_u32 s{s_a}, s{s_a}, s{s_t0}")
e(f"s_mul_i32 s{s_a}, s{s_a}, 3584")
e(f"s_lshl_b32 s{s_b}, s{s_b}, 6")
e(f"v_mul_u32_u24 v{vW}, 3584, v240")
e("v_and_b32 v244, 1, v242")
e("v_lshlrev_b32 v245, 4, v241")
e("v_lshlrev_b32 v246, 5, v244")
e("v_xor_b32 v246, v245, v246")
e(f"v_xor_b32 v246, s{s_b}, v246")
e(f"v_add3_u32 v{vW}, v{vW}, v246, s{s_a}")
e(f"v_add_u32 v{vW+2}, {16*3584-2048}, v{vW}")
e(f"s_and_b32 s{s_b}, s{s_w}, 1")
e(f"s_mul_i32 s{s_mW}, s{s_b}, {HFS}")
e(f"s_lshr_b32 s{s_a}, s{s_w}, 1")
e(f"s_lshl_b32 s{s_a}, s{s_a}, 12")
e(f"s_add_u32 s{s_mW}, s{s_mW}, s{s_a}")
perms = [[int(c) for c in p] for p in args.perm.split(",")]
assert all(sorted(p) == list(range(8)) for p in perms) and len(perms) in (4, 8)
pk = [sum(v << (4*i) for i, v in enumerate(p)) for p in perms]
if len(perms) == 4:
    e(f"s_lshr_b32 s{s_a}, s{s_xcd}, 1")
    e(f"s_and_b32 s{s_b}, s{s_xcd}, 1")
    e(f"s_lshl_b32 s{s_b}, s{s_b}, 1")
    e(f"s_xor_b32 s{s_a}, s{s_a}, s{s_b}")
else:
    e(f"s_mov_b32 s{s_a}, s{s_xcd}")
e(f"s_mov_b32 s{s_kr}, {pk[0]}")
for q_ in range(1, len(perms)):
    e(f"s_cmp_eq_u32 s{s_a}, {q_}")
    e(f"s_cselect_b32 s{s_kr}, {pk[q_]}, s{s_kr}")
e(f"s_lshl_b32 s{s_xoff}, s{s_mb}, 17")
e(f"s_lshl_b32 s{s_woff}, s{s_fb}, 8")
e(f"s_and_b32 s{s_t2}, s{s_kr}, 7")
e(f"s_mul_i32 s{s_t2}, s{s_t2}, {64*3584}")
e(f"s_add_u32 s{wtab[0]}, s{s_t2}, s{s_woff}")
for b, n in ((sX, 2048*1024), (sG, 512*3584), (sU, 512*3584+1024)):
    e(f"s_mov_b32 s{b+2}, {n}")
    e(f"s_mov_b32 s{b+3}, 0x20000")
e(f"s_cmp_eq_u32 s{s_col}, 0")
e("s_cbranch_scc1 L_spare")
def after_kernarg():
    e("s_waitcnt lgkmcnt(0)")
    e(f"s_sub_u32 s{sU}, s{sU}, 1024")
    e(f"s_subb_u32 s{sU+1}, s{sU+1}, 0")
def setup2():
    if args.stamps:
        for i in range(2, 14): e(f"s_mov_b64 s[{s_st+2*i}:{s_st+2*i+1}], 0")
    e(f"s_lshl_b32 s{s_m64}, s{s_xcd}, 2")
    e(f"s_add_u32 s{s_m64}, s{s_m64}, s{s_c}")
    e(f"s_xor_b32 s{s_n64}, s{s_col}, 3")
    e(f"v_add_u32 v{vW+1}, 128, v{vW}")
    e(f"v_add_u32 v{vW+3}, 128, v{vW+2}")
    e(f"s_lshr_b32 s{s_a}, s{s_w}, 1")
    e(f"s_lshl_b32 s{s_a}, s{s_a}, 17")
    e(f"s_and_b32 s{s_b}, s{s_w}, 1")
    e(f"s_lshl_b32 s{s_b}, s{s_b}, 15")
    e(f"s_add_u32 s{s_a}, s{s_a}, s{s_b}")
    e("v_lshlrev_b32 v246, 5, v242")
    e("v_xor_b32 v246, v245, v246")
    e(f"v_lshl_add_u32 v{vD}, v240, 10, v246")
    e(f"v_add_u32 v{vD}, s{s_a}, v{vD}")
    for i in range(1, 4): e(f"v_add_u32 v{vD+i}, {7*1024*i}, v{vD}")
    e(f"s_mul_i32 s{s_mP}, s{s_w}, {PWS}")
    e(f"s_add_u32 s{s_mP}, s{s_mP}, {PB}")
    e(f"s_lshl_b32 s{s_doff}, s{s_n64}, 7")

    for b, n in ((sD, 1792*1024), (sH, 0x10000000), (sO, 2048*1024), (sB, 256)):
        e(f"s_mov_b32 s{b+2}, {n}")
        e(f"s_mov_b32 s{b+3}, 0x20000")
def wtab_setup():
    for k in range(1, 8):
        e(f"s_bfe_u32 s{s_a}, s{s_kr}, {0x30000 + 4*k}")
        e(f"s_mul_i32 s{s_a}, s{s_a}, {64*3584}")
        e(f"s_add_u32 s{wtab[k]}, s{s_a}, s{s_woff}")
def rh_setup():
    for jj in range(7):
        e(f"s_sub_u32 s{s_a}, s{s_rd+jj}, s{s_doff}")
        e(f"s_lshr_b32 s{s_a}, s{s_a}, 5")
        e(f"s_add_u32 s{s_rh+jj}, s{s_a}, s{s_hld}")

def dma_item(kind, n, where):
    m0 = (s_mX if kind == 'X' else s_mP, where[1] * 4096) if where[0] == 'P' else (s_mW, where[1] * 8192)
    ops = []
    sc = [f"s_add_u32 m0, s{m0[0]}, {m0[1]}"]
    so = s_t0
    if kind == 'X':
        srd = [sX]*4; vb = [vX, vX+1, vX+2, vX+3]; sc = [f"s_bfe_u32 s{s_t0}, s{s_kr}, {0x30000 + 4*n}", f"s_lshl_b32 s{s_t0}, s{s_t0}, 7"] + sc + [f"s_add_u32 s{s_t0}, s{s_t0}, s{s_xoff}"]
    elif kind == 'W':
        o_ = steps[n][0]; srd = [sG, sU, sG, sU]; vb = [vW+o_, vW+o_, vW+2+o_, vW+2+o_]; so = wtab[steps[n][1]]
    else:
        srd = [sD]*4; vb = [vD, vD+1, vD+2, vD+3]
        if n < 7: so = s_rd + n
        else: sc.append(f"s_add_u32 s{s_t0}, s{s_rd + n % 7}, 65536")
    for t in sc: ops.append(('s', lambda t=t: e(t)))
    for i in range(4):
        off = f" offset:{1024*i}" if i else ""
        def ld(i=i, off=off):
            if g.L[-1].strip().startswith("s_add_u32 m0"): e("s_nop 0")
            g.vmem(f"buffer_load_dwordx4 v{vb[i]}, {sr(srd[i])}, s{so} offen{off} lds", (kind, n))
        ops.append(('v', ld))
    return ops
def dma4(kind, n, where):
    ops = dma_item(kind, n, where); pre = [f for k, f in ops if k == 's']; ld = [f for k, f in ops if k == 'v']
    return [lambda: ([f() for f in pre], ld[0]())] + ld[1:]

def h_pattern(vdst, s_idx):
    e(f"v_lshlrev_b32 v{vdst}, 4, v0")
    if args.nos3: return
    e(f"s_and_b32 s{s_idx}, s{s_idx}, 3")
    e(f"s_cmp_eq_u32 s{s_idx}, 3")
    e(f"s_cselect_b32 s{s_idx}, 4, s{s_idx}")
    e(f"s_lshl_b32 s{s_idx}, s{s_idx}, 7")
    e(f"s_add_u32 s{s_idx}, s{s_idx}, {4096 - 384}")
    e("s_mov_b32 exec_lo, 0xff000000")
    e("s_mov_b32 exec_hi, 0")
    e(f"v_add_u32 v{vdst}, s{s_idx}, v{vdst}")
    e("s_mov_b64 exec, -1")

def late_addr_setup(spare_=False):
    e("v_lshrrev_b32 v240, 5, v0")
    e("v_bfe_u32 v241, v0, 4, 1")
    e("v_bfe_u32 v242, v0, 2, 2")
    e("v_and_b32 v243, 3, v0")
    e("v_bfe_u32 v244, v0, 3, 1")
    e("v_lshlrev_b32 v243, 3, v243")
    e("v_lshl_add_u32 v243, v242, 7, v243")
    e("v_lshl_or_b32 v245, v241, 1, v244")
    e("v_lshl_add_u32 v243, v245, 5, v243")
    e(f"v_mul_u32_u24 v{vRW}, {HFS}, v241")
    e(f"v_lshl_add_u32 v{vRW}, v240, 11, v{vRW}")
    e(f"v_add_u32 v{vRW}, v{vRW}, v243")
    e(f"s_and_b32 s{s_a}, s{s_w}, 1")
    e(f"s_lshl_b32 s{s_a}, s{s_a}, 6")
    e(f"v_xor_b32 v{vRW}, s{s_a}, v{vRW}")
    e(f"v_xor_b32 v{vRW+1}, 32, v{vRW}")
    e("v_lshrrev_b32 v246, 4, v0")
    e("v_lshl_add_u32 v245, v246, 9, v243")
    e(f"v_add_u32 v{vRD}, s{s_mP}, v245")
    for nt in range(1, 4): e(f"v_xor_b32 v{vRD+nt}, {32*nt}, v{vRD}")
    e("v_and_b32 v245, 15, v0")
    e("v_bfe_u32 v247, v0, 1, 3")
    e("v_xor_b32 v247, v247, v246")
    e("v_lshlrev_b32 v247, 4, v247")
    e("v_lshl_add_u32 v245, v245, 7, v247")
    e(f"s_lshr_b32 s{s_a}, s{s_w}, 1")
    e(f"s_mul_i32 s{s_a}, s{s_a}, {2*PWS}")
    e(f"s_add_u32 s{s_a}, s{s_a}, {PB}")
    e(f"v_add_u32 v{vRX}, s{s_a}, v245")
    e(f"v_xor_b32 v{vRX+1}, 64, v{vRX}")
    e(f"s_add_u32 s{s_a}, s{s_m64}, s{s_w}")
    h_pattern(vH, s_a)
    e(f"s_lshl_b32 s{s_a}, s{s_w}, 10")
    e(f"v_add_u32 v{vH}, s{s_a}, v{vH}")
    for lam in range(1, 4): e(f"v_xor_b32 v{vH+lam}, {1024*lam}, v{vH}")
    e(f"s_mul_i32 s{s_hld}, s{s_m64}, {HM}")
    e(f"s_mul_i32 s{s_a}, s{s_w}, {HQ}")
    e(f"s_add_u32 s{s_hld}, s{s_hld}, s{s_a}")
    e(f"v_add_u32 v{vFl}, 5, v0")
    e(f"v_lshrrev_b32 v{vFl}, 3, v{vFl}")
    e(f"v_add_u32 v{vFl}, v{vFl}, v0")
    e(f"v_min_u32 v{vFl}, 7, v{vFl}")
    e(f"v_lshlrev_b32 v{vFl}, 7, v{vFl}")
    e(f"s_lshl_b32 s{s_a}, s{s_m64}, 13")
    e(f"s_lshl_b32 s{s_b}, s{s_w}, 11")
    e(f"s_add_u32 s{s_a}, s{s_a}, s{s_b}")
    e(f"s_add_u32 s{s_a}, s{s_a}, {FBASE}")
    e(f"v_add_u32 v{vFl}, s{s_a}, v{vFl}")
    if args.rotc == 4:
        e(f"s_and_b32 s{s_a}, s{s_c}, 1")
        e(f"s_lshl_b32 s{s_a}, s{s_a}, 2")
    else:
        e(f"s_mul_i32 s{s_a}, s{s_c}, {args.rotc}")
    if spare_: e(f"s_lshl_b32 s{s_a}, s{s_c}, 1")
    e(f"s_add_u32 s{s_a}, s{s_a}, s{s_col}")
    e(f"s_sub_u32 s{s_b}, s{s_a}, 7")
    e(f"s_cmp_ge_u32 s{s_a}, 7")
    e(f"s_cselect_b32 s{s_a}, s{s_b}, s{s_a}")
    for jj in range(7):
        e(f"s_lshl_b32 s{s_b}, s{s_a}, 18")
        e(f"s_add_u32 s{s_rd+jj}, s{s_b}, s{s_doff}")
        if jj < 6:
            e(f"s_add_u32 s{s_a}, s{s_a}, 1")
            e(f"s_cmp_eq_u32 s{s_a}, 7")
            e(f"s_cselect_b32 s{s_a}, 0, s{s_a}")
    e(f"s_lshl_b32 s{s_a}, s{s_m64}, 16")
    e(f"s_lshl_b32 s{s_b}, s{s_w}, 14")
    e(f"s_add_u32 s{s_a}, s{s_a}, s{s_b}")
    e(f"s_add_u32 s{s_oadr}, s{s_a}, s{s_doff}")

def rd2_setup():
    e(f"s_sub_u32 s{s_a}, s{s_mW}, s{s_mP}")
    for nt in range(4): e(f"v_add_u32 v{vRD2+nt}, s{s_a}, v{vRD+nt}")

def d_reads(item, where):
    dfile, dstbase = homes[item]
    ops = []
    for nt in range(4):
        for p in range(2):
            def f(nt=nt, p=p):
                if where[0] == 'P': va = vRD + nt; off = where[1]*4096
                else: va = vRD2 + nt; off = where[1]*8192
                off += p*2048
                r = dstbase + nt*4 + 2*p
                g.ds(f"ds_read_b64_tr_b16 {dfile}[{r}:{r+1}], v{va} offset:{off}", ('Dr', item))
            ops.append(f)
    return ops

def pmask(vaddr): return 3 if vaddr == vMk else 0x7f
def poll(vdst, vaddr, srd, off, tag):
    o = f" offset:{off}" if off else ""
    e(f"s_mov_b64 exec, {pmask(vaddr)}")
    if args.pollmode == "atomic" and vaddr != vMk:
        e(f"v_mov_b32 v{vdst}, 0")
        g.vmem(f"buffer_atomic_add v{vdst}, v{vaddr}, {sr(srd)}, 0 offen{o} sc0 sc1", tag)
    else:
        g.vmem(f"buffer_load_dword v{vdst}, v{vaddr}, {sr(srd)}, 0 offen{o} sc1", tag)
    e("s_mov_b64 exec, -1")
def test(vres, vaddr, target):
    e(f"v_cmp_eq_u32 vcc, 0, v{vres}")
    e(f"s_and_b32 s{s_t1}, vcc_lo, {pmask(vaddr)}")
    e(f"s_cbranch_scc0 {target}")
def spin(label, vaddr, srd, off, sleep=0):
    e(f"s_mov_b32 s{s_spin}, 0x40000")
    g.lab(label)
    poll(vT, vaddr, srd, off, 'sp')
    e("s_waitcnt vmcnt(0)")
    test(vT, vaddr, f"{label}_ok")
    if sleep: e(f"s_sleep {sleep}")
    e(f"s_sub_u32 s{s_spin}, s{s_spin}, 1")
    e(f"s_cmp_lg_u32 s{s_spin}, 0")
    e(f"s_cbranch_scc1 {label}")
    g.lab(label + "_ok")
    g.vm = []
def check_or_spin(label, vres, tag, vaddr, srd, off, pre=None):
    g.need_vm([tag])
    test(vres, vaddr, f"{label}_ok")
    save = list(g.vm)
    if pre: pre()
    spin(label, vaddr, srd, off)
    g.vm = save

def epi_ops(acc, s, mt, packed):
    ops = []; d = EPI + 4*mt
    for ql in range(2):
        a = accr(acc, 2*ql, mt); b = accr(acc, 2*ql + 1, mt)
        if packed:
            for i in range(2): ops.append(lambda a=a, b=b, i=i: e(f"v_pk_mul_f32 v[{a+2*i}:{a+2*i+1}], v[{a+2*i}:{a+2*i+1}], v[{b+2*i}:{b+2*i+1}]"))
        else:
            for i in range(4): ops.append(lambda a=a, b=b, i=i: e(f"v_mul_f32 v{a+i}, v{a+i}, v{b+i}"))
    for ql in range(2):
        a = accr(acc, 2*ql, mt)
        for i in range(2): ops.append(lambda a=a, i=i, ql=ql: e(f"v_cvt_pk_bf16_f32 v{d+2*ql+i}, v{a+2*i}, v{a+2*i+1}"))
    if mt == 0 and s == 1: ops.append(lambda: e(f"s_add_u32 s{s_hst}, s{s_hst}, {HS}"))
    off = f" offset:{1024*mt}" if mt else ""
    ops.append(lambda: g.vmem(f"buffer_store_dwordx4 {vr(d)}, v{vL16}, {sr(sH)}, s{s_hst} offen{off} sc1", ('hs', s)))
    return ops

def flag_store(s):
    e(f"v_mov_b32 v{vT2}, s{s_flag}")
    e(f"v_mov_b32 v{vT}, 1")
    e("s_mov_b64 exec, 1")
    op = "buffer_atomic_or" if args.pollmode == "atomic" else "buffer_store_dword"
    g.vmem(f"{op} v{vT}, v{vT2}, {sr(sH)}, 0 offen offset:{FS*s} sc1", ('fl', s))
    e("s_mov_b64 exec, -1")

def hidx(i):
    s, r_ = divmod(i, 28)
    if s == 0: jj, lam = divmod(r_, 4)
    else: jj, lam = r_ % 7, (r_ // 7 + 1) % 4
    return s, jj, lam, r_
def h_load(i):
    s, jj, lam, r_ = hidx(i)
    dst = ar(hreg[r_]) if s == 0 else vr(HB + r_*4)
    if i == 28:
        for q in range(7): e(f"s_add_u32 s{s_rh+q}, s{s_rh+q}, {HS}")
    g.vmem(f"buffer_load_dwordx4 {dst}, v{vH+lam}, {sr(sH)}, s{s_rh+jj} offen sc1", ('h', i))
def mf(i, nt):
    s, jj, lam, r_ = hidx(i)
    g.need_vm([('h', i)])
    g.need_lg([('Dr', s*7 + jj)])
    f_, base = homes[s*7 + jj]
    r = base + nt*4
    acc = ACC2 + (lam*4 + nt)*4
    c = "0" if i < 4 else vr(acc)
    h = ar(hreg[r_]) if s == 0 else vr(HB + r_*4)
    e(f"{MF} {vr(acc)}, {f_}[{r}:{r+3}], {h}, {c}")
def tail_setup():
    e(f"v_lshlrev_b32 v{vL16}, 4, v0")
    for lam in range(1, 4):
        e(f"s_xor_b32 s{s_a}, s{s_w}, {lam}")
        e(f"s_mul_i32 s{s_a}, s{s_a}, {PWS}")
        e(f"s_add_u32 s{s_a}, s{s_a}, {PB + (lam-1)*4096}")
        e(f"v_add_u32 v{vTR+lam-1}, s{s_a}, v{vL16}")
    e(f"v_add_u32 v{vTW}, s{s_mP}, v{vL16}")
    e(f"v_and_b32 v{vTO}, 15, v0")
    e(f"v_lshlrev_b32 v{vTO}, 10, v{vTO}")
    e(f"v_bfe_u32 v{vTO+1}, v0, 4, 1")
    e(f"v_lshl_add_u32 v{vTO}, v{vTO+1}, 5, v{vTO}")
    e(f"v_lshrrev_b32 v{vTO+1}, 5, v0")
    e(f"v_lshl_add_u32 v{vTO}, v{vTO+1}, 4, v{vTO}")
HD = args.hdepth

mand = []
for n in range(16):
    for k in range(8):
        if first_k[k] == n: mand.append((n, 'X', k, ('P', k % NXB)))
    mand.append((n, 'W', n, ('W', n % NW)))
ops0 = dma_item(*mand[0][1:])
for k_, f in ops0:
    if k_ == 's': f()
after_kernarg()
g.stamp(1)
for k_, f in ops0:
    if k_ == 'v': f()
for f in dma4(*mand[1][1:]): f()
setup2()
def touch_setup(k0):
    e(f"s_lshl_b32 s{s_a}, s{s_mb}, 2")
    e(f"s_add_u32 s{s_a}, s{s_a}, s{s_w}")
    e(f"s_add_u32 s{s_a}, s{s_a}, {64*k0}")
    e(f"s_mul_i32 s{s_a}, s{s_a}, 3584")
    e(f"s_add_u32 s{s_a}, s{s_a}, s{s_woff}")
    e("v_lshrrev_b32 v242, 3, v0")
    e("v_and_b32 v243, 7, v0")
    e("v_and_b32 v240, 1, v0")
    e("v_lshlrev_b32 v240, 7, v240")
    e(f"v_mul_u32_u24 v244, {64*3584}, v242")
    e(f"v_add3_u32 v240, v240, v244, s{s_a}")
    e(f"s_lshl_b32 s{s_a}, s{s_fb}, 2")
    e(f"s_add_u32 s{s_a}, s{s_a}, s{s_w}")
    e(f"s_mul_i32 s{s_a}, s{s_a}, 3")
    e(f"s_sub_u32 s{s_a}, s{s_a}, 4")
    e("v_max_u32 v241, 4, v243")
    e(f"v_add_u32 v241, s{s_a}, v241")
    e("v_min_u32 v241, 127, v241")
    e("v_lshlrev_b32 v241, 10, v241")
    e("v_lshl_add_u32 v241, v242, 7, v241")
    e(f"s_add_u32 s{s_a}, s{s_xoff}, {128*k0}")
    e(f"v_add_u32 v241, s{s_a}, v241")
def touch(n, n0=0):
    m = sum(1 << (8*j_) for j_ in range(n0, n))
    for bits, srd, v_, off in ((3, sG, 240, 0), (12, sU, 240, 1024), (0x70, sX, 241, 0)):
        mk = m * bits
        e(f"s_mov_b32 exec_lo, {mk & 0xffffffff}")
        e(f"s_mov_b32 exec_hi, {mk >> 32}")
        g.vmem(f"buffer_load_dword v250, v{v_+8}, {sr(srd)}, 0 offen offset:{off}", "pf")
    e("s_mov_b64 exec, -1")
if args.touch:
    tk0, tn = map(int, args.touch.split(","))
    touch_setup(tk0)
    e("v_mov_b32 v248, v240"); e("v_mov_b32 v249, v241")
    if args.tpos == 0: touch(tn)
wtab_setup()
late_addr_setup()
e(f"s_lshr_b32 s{s_a}, s{s_w}, 1")
e(f"s_lshl_b32 s{s_b}, s{s_mb}, 1")
e(f"s_add_u32 s{s_a}, s{s_a}, s{s_b}")
e(f"s_and_b32 s{s_b}, s{s_fb}, 1")
e(f"s_lshl_b32 s{s_b}, s{s_b}, 1")
e(f"s_and_b32 s{s_t1}, s{s_w}, 1")
e(f"s_add_u32 s{s_b}, s{s_b}, s{s_t1}")
e(f"s_mul_i32 s{s_hst}, s{s_a}, {HM}")
e(f"s_mul_i32 s{s_t1}, s{s_b}, {HQ}")
e(f"s_add_u32 s{s_hst}, s{s_hst}, s{s_t1}")
e(f"s_lshr_b32 s{s_t2}, s{s_fb}, 1")
e(f"s_lshl_b32 s{s_t1}, s{s_t2}, 13")
e(f"s_add_u32 s{s_hst}, s{s_hst}, s{s_t1}")
e(f"s_add_u32 s{s_t1}, s{s_a}, s{s_b}")
h_pattern(vL16, s_t1)
e(f"s_cmp_ge_u32 s{s_t2}, 3")
e(f"s_addc_u32 s{s_t2}, s{s_t2}, 0")
e(f"s_lshl_b32 s{s_t2}, s{s_t2}, 7")
e(f"s_lshl_b32 s{s_b}, s{s_b}, 11")
e(f"s_add_u32 s{s_b}, s{s_b}, s{s_t2}")
e(f"s_lshl_b32 s{s_t1}, s{s_a}, 13")
e(f"s_add_u32 s{s_b}, s{s_b}, s{s_t1}")
e(f"s_add_u32 s{s_flag}, s{s_b}, {FBASE}")
e(f"s_lshl_b32 s{s_a}, s{s_a}, 2")
e(f"s_lshl_b32 s{s_b}, s{s_m64}, 2")
e(f"v_mov_b32 v{vMk}, s{s_a}")
e(f"v_mov_b32 v240, s{s_b}")
e("v_cmp_lt_u32 vcc, 0, v0")
e("s_nop 1")
e(f"v_cndmask_b32 v{vMk}, v{vMk}, v240, vcc")

def phase2A(R, stay, dplace, lateops, late, nh, extra):
    dmove = {}; slot_ = 0
    plan = {}; q = [('h', i) for i in range(nh, 28)]; lo = list(lateops); it = args.quiet if R != "S" else 0
    late_done = {}
    def takeD(c):
        c.append(('d', lo.pop(0)))
        if len(lo) % 4 == 0: late_done[late[len(late) - 1 - len(lo)//4]] = it
    while q or lo:
        c = []
        behind = q and q[0][1] - it < 8
        if q: c.append(q.pop(0))
        while len(c) < args.per and (q or lo):
            if q and (behind or not lo):
                if not behind and not lo and it >= 4 + args.quiet: break
                c.append(q.pop(0))
            else: takeD(c)
        for o in c:
            if o[0] == 'h': assert o[1] > it, ("h load late", o, it)
        plan[it] = c; it += 1
    for j in stay:
        p_ = slot_ if j not in reuse else max(4*reuse[j] + 3 + 2, slot_)
        if j in late_done: p_ = max(p_, late_done[j] + 8)
        p_ = min(p_, 26)
        dmove.setdefault(p_, []).append(j); slot_ = p_ + 2
        assert p_ + 1 < min(i for i in range(56) if hidx(i)[0]*7 + hidx(i)[1] == j), ("D move too late", j, p_)
    CB = args.chkB_i
    assert it <= CB, ("issue plan too long", it)
    pend = []
    def vm_(o):
        if o[0] == 'h': h_load(o[1])
        else: o[1]()
    def body(i, loads):
        for j in dmove.get(i, []):
            ops = d_reads(j, dplace[j])
            pend.append(lambda j=j, f=ops[0]: (g.need_vm([('D', j)]), f()))
            pend.extend(ops[1:])
        side = [lambda o=o: vm_(o) for o in loads] + list(extra.get(i, []))
        for nt in range(4):
            mf(i, nt)
            if args.st2 and nt == 0 and i in (0, 8): g.stamp(4 if i == 0 else 6)
            if side: side.pop(0)()
            elif pend: pend.pop(0)()
            if pend: pend.pop(0)()
        for f in side: f()
    def flush():
        while pend: pend.pop(0)()
        g.need_lg(g.lg[:])
    for i in range(CB):
        body(i, plan.get(i, []))
        if i == args.pollB: poll(vP2, vFl, sH, FS, 'pb')
    if args.st2: g.stamp(1)
    g.need_vm(['pb'])
    if args.st2: g.stamp(2)
    test(vP2, vFl, f"L_fastB{R}")
    sv = list(g.vm), list(g.lg), list(pend)
    poll(vP2, vFl, sH, FS, 'pb2')
    for i in range(CB, 28): body(i, [])
    flush()
    g.need_vm(['pb2'])
    test(vP2, vFl, f"L_pb{R}_ok")
    pr = [vT, vT2, vP1, vP2][:args.npoll]
    e(f"s_mov_b32 s{s_spin}, 0x20000")
    for r_ in pr[:-1]:
        poll(r_, vFl, sH, FS, 'x'); e("s_sleep 1")
    g.lab(f"L_pb{R}")
    for k_ in range(len(pr)):
        poll(pr[k_ - 1], vFl, sH, FS, 'x')
        e(f"s_waitcnt vmcnt({len(pr) - 1})")
        test(pr[k_], vFl, f"L_pb{R}_ok")
    e(f"s_sub_u32 s{s_spin}, s{s_spin}, 1")
    e(f"s_cmp_lg_u32 s{s_spin}, 0")
    e(f"s_cbranch_scc1 L_pb{R}")
    g.lab(f"L_pb{R}_ok")
    g.vm = []
    g.stamp(13)
    for i in range(28, 28 + HD): h_load(i)
    e("s_branch L_B")
    g.lab(f"L_fastB{R}")
    g.vm, g.lg = sv[0], sv[1]; pend[:] = sv[2]
    q = list(range(28, 28 + HD)); per = -(-HD // (28 - CB))
    for i in range(CB, 28):
        body(i, [('h', q.pop(0)) for _ in range(min(per, len(q)))])
    assert not q
    flush()
    assert [t for t in g.vm if t[0] != 'h' or t[1] < 28] == [], g.vm

vm0 = list(g.vm)
def main_path(R):
    g.vm = list(vm0); g.lg = []
    L_ = R == "L"
    pre_ = args.l_pre if L_ else args.pre
    minlead_ = args.l_minlead if L_ else args.minlead
    maxlead_ = 999 if L_ else args.maxlead
    dstart_ = args.l_dstart if L_ else args.dstart
    issued = {m[1:3] for m in mand[:2]}
    rest = list(mand[2:])
    for (_, kind, n, where) in rest[:pre_ - 2]:
        assert (n < NW if kind == 'W' else n < NXB)
        for f in dma4(kind, n, where): f()
        issued.add((kind, n))
    rest = rest[pre_ - 2:]
    if args.touch and args.tpos == 1: touch(tn)
    g.stamp(2)
    rates = [int(x) for x in (args.l_rates if L_ and args.l_rates else args.rates).split(",")]
    slotc = {}
    for n in range(16):
        for i in range(rates[n]): slotc[32*n + START + (32*i)//rates[n]] = 1
    st = dict(credit=0, dnext=0, cur=None, nh=0, j=START)
    dma_q = []; lds_q = []; epi_q = []; misc_q = []
    wfree = {n: n < NW for n in range(16)}; xfree = {k: k < NXB for k in range(8)}
    dblocks = [('P', b_) for b_ in range(NXB, NP)]
    pending = []; dplace = {}; dland = []; dread_done = []; log = []; xdone = set(); xrel = []; inreg = []
    epiA_done = set()
    for mt in range(4):
        ops_ = epi_ops(ACC0, 0, mt, args.pk)
        ops_[-1] = (lambda f=ops_[-1], mt=mt: (f(), epiA_done.add(mt)))
        for f in ops_: epi_q.append(((done_at(0, mt) + 8) if args.mergeA else (done_at(0, 3) + 6), 'A', f))
    for mt in range(3):
        for f in epi_ops(ACC1, 1, mt, args.pk): epi_q.append((done_at(1, mt) + 8, 'B', f))
    bar_at = {p: n for n, p in bpos.items()}
    def release(kind, i):
        if kind == 'W':
            if i + NW < 16: wfree[i + NW] = True
            else: dblocks.append(('W', i % NW))
        else:
            if i + NXB < 8: xfree[i + NXB] = True
            else: dblocks.append(('P', i % NXB))
        dblocks.sort(key=lambda b_: b_[0] != 'P')
    def barrier(n):
        tags = [('W', n)] + [('X', k) for k in range(8) if first_k[k] == n]
        assert all(t in issued for t in tags), (R, n)
        g.need_vm(tags)
        for k in list(xrel):
            if args.lf: assert all((k, T, mt) in xdone for T in range(2) for mt in range(4))
            if args.lf or (all((k, T, mt) in xdone for T in range(2) for mt in range(4)) and not any(t_[0] == 'x' and t_[1] == k for t_ in g.lg[-6:])):
                g.need_lg([('x', k, T, mt) for T in range(2) for mt in range(4)])
                pending.append(('X', k)); xrel.remove(k)
        e("s_barrier")
        for kind, i in pending: release(kind, i)
        pending.clear()
        for k in range(8):
            if first_k[k] == n:
                xrel.append(k)
                for T, mt in sorted(((T, mt) for T in range(2) for mt in range(4)), key=lambda tm: min(j_ for j_, (i, m_) in enumerate(mseq) if m_ == tm[1] and uses[i][:2] == (n, tm[0]))):
                    if True:
                        def f(k=k, T=T, mt=mt):
                            assert k < NXK or st['j'] > xlast[k - NXK], ("x slot busy", k, st['j'])
                            r = ((k % NXK)*8 + T*4 + mt)*4
                            g.ds(f"ds_read_b128 {ar(r)}, v{vRX+T} offset:{(mt >> 1)*PWS + (mt & 1)*2048 + (k % NXB)*4096}", ('x', k, T, mt))
                            xdone.add((k, T, mt))
                        lds_q.append(('x', f))
                lds_q.sort(key=lambda o: o[0] != 'x')
    def wread(i, half):
        n, T, c = uses[i]
        fl, b = wbuf[i]; b += 2*half
        if i in wneed: assert wneed[i] in epiA_done, ('acc0 not free', i, st['j'])
        off = (n % NW) * 8192 + T * 4096 + (c & 1) * 1024 + 512*half
        g.ds(f"ds_read_b64_tr_b16 {fl}[{b}:{b+1}], v{vRW + (c >> 1)} offset:{off}", ('w', i))
    def pick(j):
        d = dorder[st['dnext']] if st['dnext'] < args.x_nd else None
        can_d = d is not None and dblocks and j >= dstart_
        for idx, (dl, kind, n, where) in enumerate(rest[:3]):
            ok = wfree[n] if kind == 'W' else xfree[n]
            lead = bpos[dl] - j
            extra = 16 if any(r_[0] == dl for r_ in rest[idx+1:idx+2]) else 0
            minl = max(minlead_, args.latelead) if dl >= args.latefrom else minlead_
            maxl = max(maxlead_, args.latelead + 16) if dl >= args.latefrom else maxlead_
            urgent = lead < minl + 16 + extra
            if ok and lead <= maxl + extra and (urgent or not can_d):
                rest.pop(idx); log.append(f"{kind}{n}@{j}(-{lead})")
                assert lead > 20, ("late", R, kind, n, j)
                return kind, n, where
            if not ok and lead < 48: return None
            if ok: break
        if can_d:
            blk = dblocks.pop(0 if d in early_ok else -1); st['dnext'] += 1; dplace[d] = blk; log.append(f"D{d}@{j}")
            return 'D', d, blk
        return None
    barrier(0)
    g.stamp(3)
    for j in range(START, NM):
        n0 = len(g.L)
        if j >= 0:
            i, mt = mseq[j]
            n, T, c = uses[i]
            s_, k = steps[n]
            assert (k, T, mt) in xdone, ("x read late", j)
            tg = [('w', i), ('x', k, T, mt)]
            if j == first_use[i] and i % args.wgrp == 0:
                tg += [('w', i_) for i_ in range(i, min(i + args.wgrp, NU)) if g.lg.count(('w', i_)) == 2]
            if mt == 0: tg += [('x', k, T, m_) for m_ in range(4)]
            g.need_lg(tg)
            acc = accr(ACC0 if s_ == 0 else ACC1, c, mt)
            cc = "0" if (k == 0 and T == 0) else vr(acc)
            e(f"{MF} {vr(acc)}, {wbuf[i][0]}[{wbuf[i][1]}:{wbuf[i][1]+3}], {ar(((k % NXK)*8 + T*4 + mt)*4)}, {cc}")
            if i == last_u[n] and j == first_use[i]: pending.append(('W', n))
            if args.fine:
                f0, fs = map(int, args.fine.split(","))
                if j >= f0 and (j - f0) % fs == 0 and (j - f0)//fs < 8: g.stamp(4 + (j - f0)//fs, True)
            elif args.stepstamps and j % 64 == 63: g.stamp(4 + j // 64, True)
            nxt_wait = j + 1 < NM and first_use[mseq[j+1][0]] == j + 1 and ('w', mseq[j+1][0]) in g.lg
            n0 = len(g.L) - (1 if nxt_wait else 0)
        used = lambda: len(g.L) - n0
        for i_, h_ in rsched.get(j, []): wread(i_, h_)
        if j in bar_at and bar_at[j] > 0: barrier(bar_at[j])
        if j == args.pollA_at: poll(vP1, vFl, sH, 0, 'pa')
        if j == args.chkA_at:
            assert not rest
            while misc_q: g.L += misc_q.pop(0)
            check_or_spin(f"L_pa{R}", vP1, 'pa', vFl, sH, 0)
            g.stamp(8)
        if j >= args.chkA_at and st['nh'] < args.hpre and not dma_q and (j - args.chkA_at) % 4 == 1:
            h_load(st['nh']); st['nh'] += 1
        if args.touch2 and j == int(args.touch2): touch(8 - tk0, tn)
        if j == args.mkat: poll(vP1, vMk, sB, 0, 'mk')
        if j == args.flagA_at:
            assert not any(t_ == 'A' for _, t_, _ in epi_q)
            check_or_spin(f"L_mk{R}", vP1, 'mk', vMk, sB, 0)
            g.need_vm([('hs', 0)])
            flag_store(0)
            g.stamp(4)
        while dland and dland[0][0] <= j and not any(o[0] == 'd' for o in lds_q) and j < NM - 40 and not (args.mergeA and j <= endA and homes[dland[0][1]][0] == 'a' and homes[dland[0][1]][1] >= 192):
            _, it = dland.pop(0)
            ops = d_reads(it, dplace[it]); inreg.append(it)
            lds_q.append(('d', lambda it=it, f=ops[0]: (g.need_vm([('D', it)]), f())))
            for f in ops[1:-1]: lds_q.append(('d', f))
            lds_q.append(('d', lambda it=it, f=ops[-1]: (f(), dread_done.append((st['j'] + 8, it)))))
        st['j'] = j
        while dread_done and dread_done[0][0] <= j:
            _, it = dread_done.pop(0)
            g.need_lg([('Dr', it)]); dblocks.insert(0, dplace[it])
        if j in slotc: st['credit'] = min(st['credit'] + 1, 2)
        if lds_q and lds_q[0][0] == 'x' and used() < args.cap + 1: lds_q.pop(0)[1]()
        if not dma_q and (st['credit'] or any(j + q_ in slotc for q_ in (1, 2, 3))) and j < min(args.chkA_at - 12, args.dstop):
            p_ = pick(j)
            if p_: dma_q = dma_item(*p_); st['cur'] = p_
        while dma_q and dma_q[0][0] == 's' and used() < args.cap + (1 if st['credit'] >= 2 else 0): dma_q.pop(0)[1]()
        if dma_q and dma_q[0][0] == 'v' and st['credit'] and (used() + args.vcost <= args.cap or (st['credit'] >= 2 and used() <= args.cap)) and j < NM - 4 and not g.L[-1].strip().startswith("s_add_u32 m0"):
            dma_q.pop(0)[1](); st['credit'] -= 1
            n0 -= args.vcost - 1
            if not dma_q:
                issued.add(st['cur'][:2])
                if st['cur'][0] == 'D' and st['cur'][1] in early_ok: dland.append((j + (args.dlat if st['dnext'] <= 4 else args.dlat2), st['cur'][1]))
                if st['cur'][:2] == ('X', 7): rd2_setup()
                if st['cur'][0] == 'W' and not any(r_[1] == 'W' for r_ in rest):
                    n1 = len(g.L); rh_setup(); tl = g.L[n1:]; del g.L[n1:]
                    for q_ in range(0, len(tl), 3): misc_q.append(tl[q_:q_+3])
        if lds_q and len(g.lg) < 13 and used() < args.cap and j % 2: lds_q.pop(0)[1]()
        while epi_q and epi_q[0][0] <= j and used() < args.ecap: epi_q.pop(0)[2]()
        while lds_q and len(g.lg) < 13 and used() < args.cap: lds_q.pop(0)[1]()
        if misc_q and used() == 0: g.L += misc_q.pop(0)
    g.stamp(5)
    for t_ in misc_q: g.L += t_
    assert not rest
    for _, f in lds_q: f()
    for _, _, f in epi_q: f()
    e("s_nop 7")
    for f in epi_ops(ACC1, 1, 3, True): f()
    g.stamp(6)
    g.need_lg(g.lg[:])
    for _, it in dread_done: dblocks.append(dplace[it])
    e("s_barrier")
    assert not xrel
    for kind, i in pending: release(kind, i)
    for _, f in dma_q: f()
    post = dorder[st['dnext']:args.x_nd]
    sys.stderr.write(f"{R}: " + " ".join(log) + f"\n   inreg {inreg} post {post} nh {st['nh']}\n")
    lateops = []
    for n in post:
        dplace[n] = dblocks.pop(0)
        lateops += dma4('D', n, dplace[n])
    stay = [j for j in range(14) if j not in inreg and j in dorder[:args.x_nd]]
    assert len(set(dplace[j] for j in stay)) == len(stay)
    def do_flagB():
        g.need_vm([('hs', 1)])
        flag_store(1)
        g.stamp(7)
    extra = {1: [tail_setup]}
    nfirst = min(args.dfirst*4, len(lateops))
    fbd = False
    for i_ in range(nfirst):
        if args.flagB_i < 0 and i_ == -args.flagB_i: do_flagB(); fbd = True
        lateops.pop(0)()
    post = post[nfirst//4:]
    if args.flagB_i < 0 and not fbd: do_flagB()
    if args.chkA_at >= NM:
        check_or_spin(f"L_pa{R}", vP1, 'pa', vFl, sH, 0, pre=(lambda: (g.need_vm([('hs', 1)]), flag_store(1))) if args.flagB_i >= 0 else None)
        g.stamp(8)
        while st['nh'] < args.hpre: h_load(st['nh']); st['nh'] += 1
    if args.flagB_i >= 0: extra.setdefault(args.flagB_i, []).append(do_flagB)
    phase2A(R, stay, dplace, lateops, post, st['nh'], extra)
    e("s_branch L_B")

xrel_log = {}
if args.lf:
    e(f"s_cmp_lg_u32 s{s_w}, s{s_c}")
    e("s_cbranch_scc1 L_follow")
    main_path("L")
    g.lab("L_follow")
main_path("F")
stay = sorted(reuse); inreg = [j for j in range(14) if j not in stay]; dplace = {j: ('P', q_) for q_, j in enumerate(stay)}

g.lab("L_spare")
g.vm = []; g.lg = []
setup2()
after_kernarg()
g.stamp(1)
e(f"s_cmp_lg_u32 s{s_w}, 0")
e("s_cbranch_scc1 L_sp1")
e(f"s_lshl_b32 s{s_a}, s{s_m64}, 13")
e(f"s_add_u32 s{s_a}, s{s_a}, {FBASE}")
e("v_lshlrev_b32 v240, 7, v0")
e("v_mov_b32 v241, 0")
e(f"buffer_store_dword v241, v240, {sr(sH)}, s{s_a} offen sc1")
g.lab("L_sp1")
def sp_touch():
    e("v_min_u32 v240, 55, v0")
    e(f"s_lshl_b32 s{s_a}, s{s_m64}, 2")
    e(f"s_add_u32 s{s_a}, s{s_a}, s{s_w}")
    e(f"s_and_b32 s{s_b}, s{s_a}, 63")
    e(f"s_lshr_b32 s{s_a}, s{s_a}, 6")
    e(f"s_lshl_b32 s{s_a}, s{s_a}, 7")
    e(f"s_add_u32 s{s_a}, s{s_a}, s{s_b}")
    e(f"s_lshl_b32 s{s_a}, s{s_a}, 10")
    e("v_lshrrev_b32 v242, 3, v240")
    e("v_lshlrev_b32 v242, 18, v242")
    e("v_and_b32 v247, 7, v240")
    e("v_lshl_add_u32 v242, v247, 7, v242")
    g.vmem(f"buffer_load_dword v249, v242, {sr(sD)}, s{s_a} offen", "pf")
    e(f"s_add_u32 s{s_a}, s{s_a}, 65536")
    g.vmem(f"buffer_load_dword v250, v242, {sr(sD)}, s{s_a} offen", "pf")
npf = 0
if args.sppf >= 0:
    e(f"s_lshl_b32 s{s_a}, s{s_mb}, 2")
    e(f"s_add_u32 s{s_a}, s{s_a}, s{s_w}")
    e(f"s_add_u32 s{s_a}, s{s_a}, {64*args.sppf}")
    e(f"s_mul_i32 s{s_a}, s{s_a}, 3584")
    e(f"s_and_b32 s{s_b}, s{s_xcd}, 1")
    e(f"s_mul_i32 s{s_b}, s{s_b}, 1792")
    e(f"s_add_u32 s{s_a}, s{s_a}, s{s_b}")
    e(f"s_lshl_b32 s{s_b}, s{s_m64}, 2")
    e(f"s_add_u32 s{s_b}, s{s_b}, s{s_w}")
    e(f"s_lshl_b32 s{s_b}, s{s_b}, 14")
    e(f"s_add_u32 s{s_b}, s{s_b}, {128*args.sppf - 28*1024 + (1 << 32)}")
    e("v_lshlrev_b32 v243, 10, v0")
    e(f"v_add_u32 v243, s{s_b}, v243")
    e(f"v_mov_b32 v252, s{sX}")
    e(f"v_mov_b32 v253, s{sX+1}")
    e("v_mov_b32 v254, 128")
    e("s_mov_b64 exec, 0xfffffff")
    e("v_lshlrev_b32 v243, 7, v0")
    e(f"s_sub_u32 s{s_b}, s{s_a}, {14*128 - 1024}")
    e(f"v_add_u32 v243, s{s_b}, v243")
    e(f"v_mov_b32 v252, s{sU}")
    e(f"v_mov_b32 v253, s{sU+1}")
    e(f"v_mov_b32 v254, {64*3584}")
    e("s_mov_b64 exec, 0x3fff")
    e("v_lshlrev_b32 v243, 7, v0")
    e(f"v_add_u32 v243, s{s_a}, v243")
    e(f"v_mov_b32 v252, s{sG}")
    e(f"v_mov_b32 v253, s{sG+1}")
    e("s_mov_b32 exec_lo, -1")
    e("s_mov_b32 exec_hi, 0xfff")
    e("v_add_co_u32 v252, vcc, v252, v243")
    e("v_addc_co_u32 v253, vcc, 0, v253, vcc")
    for kb in range(args.sppf, 8):
        if kb == args.sppfd:
            e("s_mov_b64 exec, -1"); sp_touch(); npf += 2
            e("s_mov_b32 exec_hi, 0xfff")
        g.vmem("global_load_dword v251, v[252:253], off", "pf"); npf += 1
        if kb < 7:
            e("v_add_co_u32 v252, vcc, v252, v254")
            e("v_addc_co_u32 v253, vcc, 0, v253, vcc")
    e("s_mov_b64 exec, -1")
def s3_touch():
    e(f"s_lshl_b32 s{s_a}, s{s_c}, 2")
    e(f"s_add_u32 s{s_a}, s{s_a}, s{s_w}")
    e(f"s_and_b32 s{s_b}, s{s_xcd}, 1")
    e(f"s_mul_i32 s{s_b}, s{s_b}, 3")
    e("v_bfe_u32 v243, v0, 1, 2")
    e(f"v_add_u32 v243, s{s_b}, v243")
    e("v_and_b32 v244, 1, v243")
    e("v_lshrrev_b32 v245, 3, v0")
    e("v_lshl_add_u32 v244, v245, 6, v244")
    e("v_and_b32 v245, 1, v0")
    e("v_lshl_add_u32 v244, v245, 1, v244")
    e("v_mul_u32_u24 v244, 3584, v244")
    e("v_lshl_add_u32 v244, v243, 9, v244")
    e(f"s_mul_i32 s{s_b}, s{s_a}, {4*3584}")
    g.vmem(f"buffer_load_dword v251, v244, {sr(sG)}, s{s_b} offen offset:384", "pf")
    g.vmem(f"buffer_load_dword v252, v244, {sr(sU)}, s{s_b} offen offset:{384+1024}", "pf")
    e(f"s_lshr_b32 s{s_b}, s{s_xcd}, 1")
    e(f"s_lshl_b32 s{s_b}, s{s_b}, 4")
    e(f"s_add_u32 s{s_b}, s{s_b}, s{s_a}")
    e(f"s_lshl_b32 s{s_b}, s{s_b}, 15")
    e("v_lshlrev_b32 v244, 10, v0")
    e("s_mov_b32 exec_hi, 0")
    g.vmem(f"buffer_load_dword v253, v244, {sr(sX)}, s{s_b} offen offset:384", "pf")
    e("s_mov_b64 exec, -1")
if args.s3pf == 1: s3_touch(); npf += 3
if not args.nomall and args.spt == 0:
    if not (args.sppf <= args.sppfd < 8): sp_touch(); npf += 2
    if args.s3pf == 2: s3_touch(); npf += 3
    e(f"s_waitcnt vmcnt({npf})")
else:
    e("s_waitcnt vmcnt(0)")
e(f"s_cmp_lg_u32 s{s_w}, 0")
e("s_cbranch_scc1 L_sp2")
e(f"s_lshl_b32 s{s_a}, s{s_m64}, 2")
e(f"v_mov_b32 v247, s{s_a}")
e("v_mov_b32 v248, 1")
e("s_mov_b64 exec, 1")
e(f"buffer_store_dword v248, v247, {sr(sB)}, 0 offen sc1")
e("s_mov_b64 exec, -1")
g.lab("L_sp2")
g.stamp(4)
late_addr_setup(True)
rh_setup()
free2 = [('P', NP - 1), ('P', NP - 2)]
assert len(stay) <= NP - 2
prev = None
for q_, j in enumerate(dorder):
    if q_ >= args.x_nd and j not in stay: continue
    if not args.nomall and args.spt and q_ == args.spt: sp_touch()
    blk = dplace[j] if j in stay else free2[q_ % 2]
    for f in dma4('D', j, blk):
        f()
        if len(g.vm) > args.sppace:
            e(f"s_waitcnt vmcnt({args.sppace})"); g.vm = g.vm[-args.sppace:] if args.sppace else []
    if prev is not None:
        g.need_vm([('D', prev[0])])
        for f in d_reads(*prev): f()
        g.need_lg(g.lg[:])
    prev = (j, blk) if j in inreg else None
if prev is not None:
    g.need_vm([('D', prev[0])])
    for f in d_reads(*prev): f()
    g.need_lg(g.lg[:])
e(f"s_lshl_b32 s{s_a}, s{s_m64}, 2")
e(f"v_mov_b32 v{vMk}, s{s_a}")
spin("L_smk", vMk, sB, 0, sleep=8)
g.stamp(5)
spin("L_spa", vFl, sH, 0, sleep=args.spsleep)
g.stamp(8)
for i in range(HD): h_load(i)
g.lg = []
phase2A("S", stay, dplace, [], [], HD, {0: [tail_setup]})

g.lab("L_B")
g.stamp(9)
g.vm = [('h', i) for i in range(28, 28 + HD)]; g.lg = []
def wr(lam, a):
    r = ACC2 + lam*16 + a*4
    g.ds(f"ds_write_b128 v{vTW}, {vr(r)} offset:{(lam-1)*4096 + a*1024}", ('wr', lam))
def rd(sl, a):
    g.ds(f"ds_read_b128 {vr(ACC2 + 16 + 4*(sl*4+a))}, v{vTR+sl} offset:{a*1024}", ('rd', sl*4+a))
def padd(d, t):
    e(f"v_pk_add_f32 v[{d}:{d+1}], v[{d}:{d+1}], v[{t}:{t+1}]")
    e(f"v_pk_add_f32 v[{d+2}:{d+3}], v[{d+2}:{d+3}], v[{t+2}:{t+3}]")
def sync():
    g.need_lg(g.lg[:]); e("s_barrier")
    for a in range(4):
        for sl in range(3): rd(sl, a)
def sum_(a):
    g.need_lg([('rd', 8 + a)])
    padd(ACC2 + 16 + 4*a, ACC2 + 32 + 4*a); padd(ACC2 + 16 + 4*a, ACC2 + 48 + 4*a)
side = {}
for lam in (1, 2):
    for a in range(4): side.setdefault((28 + 7*lam + 2 + a, 1), []).append(lambda lam=lam, a=a: wr(lam, a))
for a in range(4): side.setdefault((51, a), []).append(lambda a=a: wr(3, a))
side.setdefault((53, 1), []).append(sync)
nxt = 28 + HD
for i in range(28, 56):
    for nt in range(4):
        mf(i, nt)
        if nt == 0 and nxt < 56: h_load(nxt); nxt += 1
        for f in side.get((i, nt), []): f()
g.stamp(10)
for a in range(4): sum_(a)
for a in range(4): padd(ACC2 + 4*a, ACC2 + 16 + 4*a)
for i in range(8):
    e(f"v_cvt_pk_bf16_f32 v{EPI+i}, v{ACC2+2*i}, v{ACC2+2*i+1}")
e("s_nop 1")
e(f"v_permlane16_swap_b32 v{EPI}, v{EPI+2}")
e(f"v_permlane16_swap_b32 v{EPI+1}, v{EPI+3}")
e(f"v_permlane16_swap_b32 v{EPI+4}, v{EPI+6}")
e(f"v_permlane16_swap_b32 v{EPI+5}, v{EPI+7}")
e(f"buffer_store_dwordx4 {vr(EPI)}, v{vTO}, {sr(sO)}, s{s_oadr} offen {args.outflags}")
e(f"buffer_store_dwordx4 {vr(EPI+4)}, v{vTO}, {sr(sO)}, s{s_oadr} offen offset:64 {args.outflags}")
if args.stamps:
    g.stamp(11)
    e("s_waitcnt vmcnt(0)")
    g.stamp(12)
    e("s_waitcnt lgkmcnt(0)")
if args.diag:
    a_, b_, K_, wg_ = map(int, args.diag.split(","))
    if wg_ >= 0: e(f"s_cmp_lg_u32 s2, {wg_}")
    else: e(f"s_cmp_eq_u32 s{s_col}, 0")
    e("s_cbranch_scc1 L_end")
    e(f"s_sub_u32 s46, s{s_st+2*b_}, s{s_st+2*a_}")
    e(f"s_mul_i32 s46, s46, {K_}")
    e(f"s_add_u32 s46, s46, 5000")
    e(f"s_min_u32 s46, s46, 100000")
    g.lab("L_diag")
    e("s_memrealtime s[48:49]")
    e("s_waitcnt lgkmcnt(0)")
    e(f"s_sub_u32 s47, s48, s{s_st}")
    e("s_cmp_lt_u32 s47, s46")
    e("s_cbranch_scc1 L_diag")
elif args.stamps:
    NS = 14
    for i in range(2*NS): e(f"v_mov_b32 v{64+i}, s{s_st+i}")
    e(f"s_lshl_b32 s46, s2, 2")
    e(f"s_add_u32 s46, s46, s{s_w}")
    e(f"s_mul_i32 s46, s46, {NS*8}")
    e(f"s_add_u32 s46, s46, {STAMP_OFF}")
    e("v_mov_b32 v5, 0")
    e("s_mov_b64 exec, 1")
    for i in range(NS//2): e(f"buffer_store_dwordx4 {vr(64+4*i)}, v5, {sr(sH)}, s46 offen offset:{16*i}")
g.lab("L_end")
e("s_endpgm")
g.lab("L_codeend")

hdr = f"""; Fused bilinear GLU: out = ((x Wg) * (x Wu)) Wd   (generated)
; @launch grid=(256,1,1) block=(256,1,1) lds={LDS}
.amdgcn_target "amdgcn-amd-amdhsa--gfx950"
.text
.globl {KN}
.p2align 8
.type {KN},@function
{KN}:"""
tail = f""".section .rodata,"a"
.p2align 6
.amdhsa_kernel {KN}
  .amdhsa_next_free_vgpr 512
  .amdhsa_next_free_sgpr 102
  .amdhsa_accum_offset 256
  .amdhsa_group_segment_fixed_size 0
  .amdhsa_kernarg_size 56
  .amdhsa_user_sgpr_count 2
  .amdhsa_user_sgpr_kernarg_segment_ptr 1
  .amdhsa_system_sgpr_workgroup_id_x 1
.end_amdhsa_kernel"""
print(hdr); print("\n".join(g.L)); print(tail)
```

```python
import sys, argparse

ap = argparse.ArgumentParser()
A = ap.add_argument
A("--stamps", action="store_true"); A("--stepstamps", action="store_true"); A("--cycstamps", action="store_true")
A("--st2", action="store_true"); A("--diag", default="")
A("--la", type=int, default=16)
A("--cap", type=int, default=2); A("--ecap", type=int, default=4)
A("--outflags", default=""); A("--noprefetch", action="store_true"); A("--nomall", action="store_true")
A("--order", default="0101001010001111"); A("--nxk", type=int, default=4)
A("--merge", type=int, default=2); A("--mtm", type=int, default=8)
A("--hdepth", type=int, default=12); A("--pollB", type=int, default=12); A("--chkB_i", type=int, default=20)
A("--mkat", type=int, default=256); A("--spsleep", type=int, default=8); A("--sppace", type=int, default=4)
A("--flagA_at", type=int, default=442); A("--pollA_at", type=int, default=508); A("--chkA_at", type=int, default=512)
A("--hpre", type=int, default=10); A("--dfirst", type=int, default=3); A("--flagB_i", type=int, default=-10)
A("--quiet", type=int, default=0); A("--dstop", type=int, default=496); A("--npoll", type=int, default=3); A("--per", type=int, default=2)
A("--nw", type=int, default=5); A("--nxb", type=int, default=3)
A("--rates", default="7,7,7,8,8,8,8,8,8,8,8,8,7,7,7,7"); A("--pre", type=int, default=4)
A("--minlead", type=int, default=56); A("--dstart", type=int, default=120); A("--dlat", type=int, default=64)
A("--latelead", type=int, default=80); A("--latefrom", type=int, default=13)
A("--spt", type=int, default=0)
A("--early", type=int, default=16)
A("--dorder", default="0,1,7,8,2,3,4,5,6,9,10,11,12,13")
A("--oldmerge", action="store_true")
A("--dlat2", type=int, default=28)
A("--vcost", type=int, default=2)
A("--wgrp", type=int, default=2)
A("--sppf", type=int, default=-1)
A("--sppfd", type=int, default=99)
A("--perm", default="01234567,23016745,45670123,67452301")
A("--pfq", type=int, default=0)
A("--mergeA", type=int, default=0)
A("--s3pf", type=int, default=0)
A("--lf", action="store_true")
A("--l_rates", default=""); A("--l_pre", type=int, default=6); A("--l_minlead", type=int, default=100); A("--l_dstart", type=int, default=100)
A("--maxlead", type=int, default=999)
A("--touch", default="")
A("--tpos", type=int, default=0)
A("--touch2", default="")
A("--x_nd", type=int, default=14)
A("--fine", default="")
A("--rotc", type=int, default=2)
A("--pk", action="store_true")
A("--lfsel", default="c")
A("--swap", type=int, default=0)
A("--pollmode", default="atomic"); A("--krot", type=int, default=1); A("--nos3", action="store_true")
args = ap.parse_args()
if args.diag: args.stamps = True
assert args.pollA_at > args.flagA_at > args.mkat

KN = "standalone__glu_gated_bilinear__prompt_kernel"
NW = args.nw; NP = 10 - NW; NXB = args.nxb
HFS = NW * 8192; PB = 2 * HFS; PWS = NP * 4096; LDS = PB + 4 * PWS
assert LDS == 163840 and NP >= 3
FBASE = 0x1000000; STAMP_OFF = 0x8000000; FS = 1024
HM, HQ, HS, HP = 458752, 114688, 57344, 8192
LA = args.la; NBUF = 8; NM = 512

sX, sG, sU, sD, sH, sO, sB = 8, 12, 16, 20, 24, 28, 32
s_w, s_mb, s_fb, s_m64, s_n64 = 36, 37, 38, 39, 40
s_xoff, s_woff, s_doff = 41, 42, 43
s_mP, s_mW = 44, 45
s_t0, s_t1, s_t2, s_t3 = 46, 47, 48, 49
s_hst, s_spin, s_hld, s_flag = 50, 51, 52, 53
s_oadr, s_xcd, s_col, s_c = 54, 55, 56, 57
s_a, s_b = 58, 59
s_st = 60
s_rh, s_rd = 88, 95
s_kr = 6
s_mX = 7
wtab = [88, 89, 90, 91, 92, 93, 94, 49]
vX, vW, vD = 1, 5, 9
vRW, vRX, vRD, vH = 13, 15, 17, 21
vL16, vFl, vMk, vT, vT2, vP1, vP2 = 25, 26, 27, 28, 29, 30, 31
vRD2 = 1
vTR, vTW, vTO = 5, 8, 13
WBUF = 32
ACC0, ACC1 = 64, 128
ACC2 = ACC0
HB = 128
EPI = 240
NXK = args.nxk
NREG = 3 + (256 - 32*NXK)//16

class G:
    def __init__(s): s.L = []; s.lg = []; s.vm = []
    def e(s, t): s.L.append("    " + t)
    def lab(s, t): s.L.append(t + ":")
    def ds(s, t, tag):
        if len(s.lg) >= 14:
            s.e("s_waitcnt lgkmcnt(12)"); s.lg = s.lg[-12:]
        s.e(t); s.lg.append(tag)
    def vmem(s, t, tag): s.e(t); s.vm.append(tag); assert len(s.vm) <= 63, "vm overflow"
    def need_lg(s, tags):
        idx = max((i for i, t in enumerate(s.lg) if t in tags), default=-1)
        if idx >= 0:
            s.e(f"s_waitcnt lgkmcnt({len(s.lg)-1-idx})"); s.lg = s.lg[idx+1:]
    def need_vm(s, tags):
        idx = max((i for i, t in enumerate(s.vm) if t in tags), default=-1)
        if idx >= 0:
            s.e(f"s_waitcnt vmcnt({len(s.vm)-1-idx})"); s.vm = s.vm[idx+1:]
    def stamp(s, k, force=False):
        if args.stepstamps and 4 <= k <= 11 and not force: return
        if args.stamps: s.e(("s_memtime" if args.cycstamps else "s_memrealtime") + f" s[{s_st+2*k}:{s_st+2*k+1}]")
g = G(); e = g.e
def vr(b, n=4): return f"v[{b}:{b+n-1}]"
def ar(b, n=4): return f"a[{b}:{b+n-1}]"
def sr(b, n=4): return f"s[{b}:{b+n-1}]"
MF = "v_mfma_f32_16x16x32_bf16"

order = [int(c) for c in args.order]
assert len(order) == 16 and sum(order) == 8
steps = []; cnt = [0, 0]
for s_ in order: steps.append((s_, cnt[s_])); cnt[s_] += 1
first_k = {}
for n, (s_, k) in enumerate(steps): first_k.setdefault(k, n)
last_k = {k: max(n for n, (s_, kk) in enumerate(steps) if kk == k) for k in range(8)}
uses = []
mseq = []
nm = 16 - args.merge
lastA = max(n for n in range(16) if steps[n][0] == 0)
regA = list(range(lastA + 1 - args.mergeA, lastA + 1)); regB = list(range(nm, 16))
assert all(steps[n][0] == 0 for n in regA) and all(steps[n][0] == 1 for n in regB) and args.merge <= 2 and args.mergeA <= 2
def accr(acc, c, mt): return acc + (c*4 + mt)*4
wbuf = {}; wneed = {}; region_of = {}; ringprev = {}; ring = []
n = 0
while n < 16:
    reg = regA if regA and n == regA[0] else (regB if regB and n == regB[0] else None)
    if reg:
        b0 = len(uses)
        for n_ in reg:
            for T in range(2):
                for c in range(4):
                    q_ = len(uses) - b0; i_ = len(uses); uses.append((n_, T, c)); region_of[i_] = (b0, 8*len(reg))
                    if reg is regB: wbuf[i_] = ("v", accr(ACC0, q_ % 4, q_ // 4)); wneed[i_] = q_ // 4
                    else: wbuf[i_] = ("a", 192 + 4*q_)
        mseq += [(i, mt) for mt in range(4) for i in range(b0, len(uses))]
        n = reg[-1] + 1
    else:
        for T in range(2):
            for c in range(4):
                i_ = len(uses); uses.append((n, T, c)); mseq += [(i_, mt) for mt in range(4)]
                wbuf[i_] = ("v", WBUF + (len(ring) % NBUF)*4)
                if len(ring) >= NBUF: ringprev[i_] = ring[-NBUF]
                ring.append(i_)
        n += 1
assert len(mseq) == NM
NU = len(uses)
first_use = {}
for j_, (i_, mt_) in enumerate(mseq): first_use.setdefault(i_, j_)
last_use = {i_: j_ for j_, (i_, mt_) in enumerate(mseq)}
rsched = {}; rpos = {}
for i_ in range(NU):
    p_ = first_use[i_] - LA
    if i_ in region_of:
        b0, ln = region_of[i_]
        p_ = first_use[b0] - LA - args.early + ((i_ - b0)*(ln + args.early))//ln
    if i_ in ringprev: p_ = max(p_, last_use[ringprev[i_]] + 1)
    p2 = p_ + (2 if i_ not in region_of else 1)
    assert p2 <= first_use[i_] - 5, ("w read late", i_)
    rsched.setdefault(p_, []).append((i_, 0)); rsched.setdefault(p2, []).append((i_, 1)); rpos[i_] = p_
endA = max(last_use[i] for i in range(NU) if uses[i][0] == lastA)
xlast = {k: max(j_ for j_, (i, mt) in enumerate(mseq) if steps[uses[i][0]][1] == k) for k in range(8)}
first_u = {n: min(i for i, u in enumerate(uses) if u[0] == n) for n in range(16)}
last_u = {n: max(i for i, u in enumerate(uses) if u[0] == n) for n in range(16)}
bpos = {n: rpos[first_u[n]] - 1 for n in range(16)}
START = -LA
def done_at(s_, mt): return max(j for j, (i, m_) in enumerate(mseq) if m_ == mt and steps[uses[i][0]][0] == s_)
busy = sorted({steps[uses[i][0]][1] % NXK for j_, (i, mt) in enumerate(mseq) if j_ >= min(args.chkA_at, NM - 1) - 4})
slots_order = [s_ for s_ in range(NXK) if s_ not in busy] + busy
xregs = [32*s_ + 4*q for s_ in slots_order for q in range(8)]
hreg = xregs[:28]
NFREE = 8*(NXK - len(busy))
spare16 = xregs[28:]
dorder = [int(x) for x in args.dorder.split(",")]
assert sorted(dorder) == list(range(14))
ahomes = [("a", 32*NXK + 16*j) for j in range(NREG - 3)]
phomes = []
for j in range(len(spare16)//4):
    grp = spare16[4*j:4*j+4]
    assert grp == [grp[0] + 4*q for q in range(4)]
    phomes.append(("a", grp[0]))
homes = {j: ("v", 192 + 16*j) for j in range(3)}
early_ok = {0, 1, 2}
reuse = {}; rq = []
for j in dorder:
    if j < 3: continue
    if ahomes: homes[j] = ahomes.pop(0); early_ok.add(j)
    elif phomes: homes[j] = phomes.pop(0)
    else: rq.append(j)
for q_, j in enumerate(sorted(rq)):
    assert j >= 7 and 3 + q_ in homes
    reuse[j] = 3 + q_; homes[j] = homes[3 + q_]
assert args.hpre <= NFREE or args.chkA_at >= NM

g.stamp(0)
for b_, o_ in ((sX, 0), (sG, 8), (sU, 16), (sD, 24), (sO, 32), (sB, 40), (sH, 48)):
    e(f"s_load_dwordx2 s[{b_}:{b_+1}], s[0:1], {o_}")
e("s_cmp_ge_u32 s2, 256")
e("s_cbranch_scc1 L_end")
if not args.noprefetch:
    e("s_getpc_b64 s[4:5]")
    e("s_and_b32 s4, s4, 0xffffff00")
    e(f"s_mov_b32 s6, L_codeend-{KN}")
    e("s_mov_b32 s7, 0x20000")
    if args.pfq == 1:
        e("s_bfe_u32 s3, s2, 0x20003")
        e("s_lshl_b32 s3, s3, 7")
        e("v_lshrrev_b32 v30, 6, v0")
        e("v_and_b32 v29, 15, v0")
        e("v_lshl_add_u32 v30, v30, 4, v29")
        e("v_lshlrev_b32 v30, 9, v30")
        e("s_mov_b64 exec, 0xffff")
        g.vmem("buffer_load_dword v31, v30, s[4:7], s3 offen", "pf")
        e("s_mov_b64 exec, -1")
    elif args.pfq == 2:
        e("s_cmp_lt_u32 s2, 32")
        e("s_cselect_b32 s6, s6, 0")
        e("v_lshlrev_b32 v30, 7, v0")
        g.vmem("buffer_load_dword v31, v30, s[4:7], 0 offen", "pf")
    else:
        e("v_lshlrev_b32 v30, 7, v0")
        g.vmem("buffer_load_dword v31, v30, s[4:7], 0 offen", "pf")
        if args.lf:
            e("v_add_u32 v30, 0x8000, v30")
            g.vmem("buffer_load_dword v31, v30, s[4:7], 0 offen", "pf")
e("v_lshrrev_b32 v30, 6, v0")
e("v_and_b32 v0, 63, v0")
e(f"v_readfirstlane_b32 s{s_w}, v30")
e(f"s_and_b32 s{s_xcd}, s2, 7")
e(f"s_bfe_u32 s{s_c}, s2, 0x20003")
e(f"s_lshr_b32 s{s_col}, s2, 5")
e(f"s_lshr_b32 s{s_mb}, s{s_xcd}, 1")
e(f"s_lshl_b32 s{s_mb}, s{s_mb}, 2")
e(f"s_add_u32 s{s_mb}, s{s_mb}, s{s_c}")
e(f"s_and_b32 s{s_fb}, s{s_xcd}, 1")
e(f"s_mul_i32 s{s_fb}, s{s_fb}, 7")
e(f"s_add_u32 s{s_fb}, s{s_fb}, s{s_col}")
e(f"s_sub_u32 s{s_fb}, s{s_fb}, 1")
e("v_lshrrev_b32 v240, 3, v0")
e("v_and_b32 v241, 7, v0")
e("v_lshrrev_b32 v242, 4, v0")
e(f"s_xor_b32 s{s_b}, s{s_w}, s{s_col}")
e(f"s_and_b32 s{s_b}, s{s_b}, 3")
e(f"s_mul_i32 s{s_mX}, s{s_b}, {PWS}")
e(f"s_add_u32 s{s_mX}, s{s_mX}, {PB}")
e(f"s_lshl_b32 s{s_a}, s{s_b}, 15")
e("v_xor_b32 v243, v241, v242")
e("v_lshlrev_b32 v243, 4, v243")
e(f"v_lshl_add_u32 v{vX}, v240, 10, v243")
e(f"v_add_u32 v{vX}, s{s_a}, v{vX}")
e(f"v_xor_b32 v{vX+1}, 64, v{vX}")
e(f"v_add_u32 v{vX+1}, {7*1024}, v{vX+1}")
e(f"v_add_u32 v{vX+2}, {14*1024}, v{vX}")
e(f"v_add_u32 v{vX+3}, {14*1024}, v{vX+1}")
e(f"s_lshr_b32 s{s_a}, s{s_w}, 1")
e(f"s_lshl_b32 s{s_a}, s{s_a}, 5")
e(f"s_and_b32 s{s_b}, s{s_w}, 1")
e(f"s_lshl_b32 s{s_t0}, s{s_b}, 3")
e(f"s_add_u32 s{s_a}, s{s_a}, s{s_t0}")
e(f"s_mul_i32 s{s_a}, s{s_a}, 3584")
e(f"s_lshl_b32 s{s_b}, s{s_b}, 6")
e(f"v_mul_u32_u24 v{vW}, 3584, v240")
e("v_and_b32 v244, 1, v242")
e("v_lshlrev_b32 v245, 4, v241")
e("v_lshlrev_b32 v246, 5, v244")
e("v_xor_b32 v246, v245, v246")
e(f"v_xor_b32 v246, s{s_b}, v246")
if args.swap:
    if args.swap == 1:
        e(f"s_lshr_b32 s{s_t0}, s{s_fb}, 1")
        e(f"s_and_b32 s{s_t0}, s{s_t0}, s{s_fb}")
    else: e(f"s_mov_b32 s{s_t0}, s{s_fb}")
    e(f"s_and_b32 s{s_t0}, s{s_t0}, 1")
    e(f"s_lshl_b32 s{s_t0}, s{s_t0}, 7")
    e(f"s_add_u32 s{s_a}, s{s_a}, s{s_t0}")
e(f"v_add3_u32 v{vW}, v{vW}, v246, s{s_a}")
e(f"v_add_u32 v{vW+2}, {16*3584-2048}, v{vW}")
e(f"s_and_b32 s{s_b}, s{s_w}, 1")
e(f"s_mul_i32 s{s_mW}, s{s_b}, {HFS}")
e(f"s_lshr_b32 s{s_a}, s{s_w}, 1")
e(f"s_lshl_b32 s{s_a}, s{s_a}, 12")
e(f"s_add_u32 s{s_mW}, s{s_mW}, s{s_a}")
perms = [[int(c) for c in p] for p in args.perm.split(",")]
assert all(sorted(p) == list(range(8)) for p in perms) and len(perms) in (4, 8)
pk = [sum(v << (4*i) for i, v in enumerate(p)) for p in perms]
if len(perms) == 4:
    e(f"s_lshr_b32 s{s_a}, s{s_xcd}, 1")
    e(f"s_and_b32 s{s_b}, s{s_xcd}, 1")
    e(f"s_lshl_b32 s{s_b}, s{s_b}, 1")
    e(f"s_xor_b32 s{s_a}, s{s_a}, s{s_b}")
else:
    e(f"s_mov_b32 s{s_a}, s{s_xcd}")
e(f"s_mov_b32 s{s_kr}, {pk[0]}")
for q_ in range(1, len(perms)):
    e(f"s_cmp_eq_u32 s{s_a}, {q_}")
    e(f"s_cselect_b32 s{s_kr}, {pk[q_]}, s{s_kr}")
e(f"s_lshl_b32 s{s_xoff}, s{s_mb}, 17")
e(f"s_lshl_b32 s{s_woff}, s{s_fb}, 8")
e(f"s_and_b32 s{s_t2}, s{s_kr}, 7")
e(f"s_mul_i32 s{s_t2}, s{s_t2}, {64*3584}")
e(f"s_add_u32 s{wtab[0]}, s{s_t2}, s{s_woff}")
for b, n in ((sX, 2048*1024), (sG, 512*3584), (sU, 512*3584+1024)):
    e(f"s_mov_b32 s{b+2}, {n}")
    e(f"s_mov_b32 s{b+3}, 0x20000")
e(f"s_cmp_eq_u32 s{s_col}, 0")
e("s_cbranch_scc1 L_spare")
def after_kernarg():
    e("s_waitcnt lgkmcnt(0)")
    e(f"s_sub_u32 s{sU}, s{sU}, 1024")
    e(f"s_subb_u32 s{sU+1}, s{sU+1}, 0")
def setup2():
    if args.stamps:
        for i in range(2, 14): e(f"s_mov_b64 s[{s_st+2*i}:{s_st+2*i+1}], 0")
    e(f"s_lshl_b32 s{s_m64}, s{s_xcd}, 2")
    e(f"s_add_u32 s{s_m64}, s{s_m64}, s{s_c}")
    e(f"s_xor_b32 s{s_n64}, s{s_col}, 3")
    e(f"v_xor_b32 v{vW+1}, 128, v{vW}")
    e(f"v_xor_b32 v{vW+3}, 128, v{vW+2}")
    e(f"s_lshr_b32 s{s_a}, s{s_w}, 1")
    e(f"s_lshl_b32 s{s_a}, s{s_a}, 17")
    e(f"s_and_b32 s{s_b}, s{s_w}, 1")
    e(f"s_lshl_b32 s{s_b}, s{s_b}, 15")
    e(f"s_add_u32 s{s_a}, s{s_a}, s{s_b}")
    e("v_lshlrev_b32 v246, 5, v242")
    e("v_xor_b32 v246, v245, v246")
    e(f"v_lshl_add_u32 v{vD}, v240, 10, v246")
    e(f"v_add_u32 v{vD}, s{s_a}, v{vD}")
    for i in range(1, 4): e(f"v_add_u32 v{vD+i}, {7*1024*i}, v{vD}")
    e(f"s_mul_i32 s{s_mP}, s{s_w}, {PWS}")
    e(f"s_add_u32 s{s_mP}, s{s_mP}, {PB}")
    e(f"s_lshl_b32 s{s_doff}, s{s_n64}, 7")

    for b, n in ((sD, 1792*1024), (sH, 0x10000000), (sO, 2048*1024), (sB, 256)):
        e(f"s_mov_b32 s{b+2}, {n}")
        e(f"s_mov_b32 s{b+3}, 0x20000")
def wtab_setup():
    for k in range(1, 8):
        e(f"s_bfe_u32 s{s_a}, s{s_kr}, {0x30000 + 4*k}")
        e(f"s_mul_i32 s{s_a}, s{s_a}, {64*3584}")
        e(f"s_add_u32 s{wtab[k]}, s{s_a}, s{s_woff}")
def rh_setup():
    for jj in range(7):
        e(f"s_lshr_b32 s{s_a}, s{s_rd+jj}, 18")
        e(f"s_lshl_b32 s{s_a}, s{s_a}, 13")
        e(f"s_add_u32 s{s_rh+jj}, s{s_a}, s{s_hld}")

def dma_item(kind, n, where):
    m0 = (s_mX if kind == 'X' else s_mP, where[1] * 4096) if where[0] == 'P' else (s_mW, where[1] * 8192)
    ops = []
    sc = [f"s_add_u32 m0, s{m0[0]}, {m0[1]}"]
    so = s_t0
    if kind == 'X':
        srd = [sX]*4; vb = [vX, vX+1, vX+2, vX+3]; sc = [f"s_bfe_u32 s{s_t0}, s{s_kr}, {0x30000 + 4*n}", f"s_lshl_b32 s{s_t0}, s{s_t0}, 7"] + sc + [f"s_add_u32 s{s_t0}, s{s_t0}, s{s_xoff}"]
    elif kind == 'W':
        o_ = steps[n][0]; srd = [sG, sU, sG, sU]; vb = [vW+o_, vW+o_, vW+2+o_, vW+2+o_]; so = wtab[steps[n][1]]
    else:
        srd = [sD]*4; vb = [vD, vD+1, vD+2, vD+3]
        if n < 7: so = s_rd + n
        else: sc.append(f"s_xor_b32 s{s_t0}, s{s_rd + n % 7}, 65536")
    for t in sc: ops.append(('s', lambda t=t: e(t)))
    for i in range(4):
        off = f" offset:{1024*i}" if i else ""
        def ld(i=i, off=off):
            if g.L[-1].strip().startswith("s_add_u32 m0"): e("s_nop 0")
            g.vmem(f"buffer_load_dwordx4 v{vb[i]}, {sr(srd[i])}, s{so} offen{off} lds", (kind, n))
        ops.append(('v', ld))
    return ops
def dma4(kind, n, where):
    ops = dma_item(kind, n, where); pre = [f for k, f in ops if k == 's']; ld = [f for k, f in ops if k == 'v']
    return [lambda: ([f() for f in pre], ld[0]())] + ld[1:]

def h_pattern(vdst, s_idx):
    e(f"v_lshlrev_b32 v{vdst}, 4, v0")
    if args.nos3: return
    e(f"s_and_b32 s{s_idx}, s{s_idx}, 3")
    e(f"s_cmp_eq_u32 s{s_idx}, 3")
    e(f"s_cselect_b32 s{s_idx}, 4, s{s_idx}")
    e(f"s_lshl_b32 s{s_idx}, s{s_idx}, 7")
    e(f"s_add_u32 s{s_idx}, s{s_idx}, {4096 - 384}")
    e("s_mov_b32 exec_lo, 0xff000000")
    e("s_mov_b32 exec_hi, 0")
    e(f"v_add_u32 v{vdst}, s{s_idx}, v{vdst}")
    e("s_mov_b64 exec, -1")

def late_addr_setup(spare_=False):
    e("v_lshrrev_b32 v240, 5, v0")
    e("v_bfe_u32 v241, v0, 4, 1")
    e("v_bfe_u32 v242, v0, 2, 2")
    e("v_and_b32 v243, 3, v0")
    e("v_bfe_u32 v244, v0, 3, 1")
    e("v_lshlrev_b32 v243, 3, v243")
    e("v_lshl_add_u32 v243, v242, 7, v243")
    e("v_lshl_or_b32 v245, v241, 1, v244")
    e("v_lshl_add_u32 v243, v245, 5, v243")
    e(f"v_mul_u32_u24 v{vRW}, {HFS}, v241")
    e(f"v_lshl_add_u32 v{vRW}, v240, 11, v{vRW}")
    e(f"v_add_u32 v{vRW}, v{vRW}, v243")
    e(f"s_and_b32 s{s_a}, s{s_w}, 1")
    e(f"s_lshl_b32 s{s_a}, s{s_a}, 6")
    e(f"v_xor_b32 v{vRW}, s{s_a}, v{vRW}")
    e(f"v_xor_b32 v{vRW+1}, 32, v{vRW}")
    e("v_lshrrev_b32 v246, 4, v0")
    e("v_lshl_add_u32 v245, v246, 9, v243")
    e(f"v_add_u32 v{vRD}, s{s_mP}, v245")
    for nt in range(1, 4): e(f"v_xor_b32 v{vRD+nt}, {32*nt}, v{vRD}")
    e("v_and_b32 v245, 15, v0")
    e("v_bfe_u32 v247, v0, 1, 3")
    e("v_xor_b32 v247, v247, v246")
    e("v_lshlrev_b32 v247, 4, v247")
    e("v_lshl_add_u32 v245, v245, 7, v247")
    e(f"s_lshr_b32 s{s_a}, s{s_w}, 1")
    e(f"s_mul_i32 s{s_a}, s{s_a}, {2*PWS}")
    e(f"s_add_u32 s{s_a}, s{s_a}, {PB}")
    e(f"v_add_u32 v{vRX}, s{s_a}, v245")
    e(f"v_xor_b32 v{vRX+1}, 64, v{vRX}")
    e(f"s_add_u32 s{s_a}, s{s_m64}, s{s_w}")
    h_pattern(vH, s_a)
    e(f"s_lshl_b32 s{s_a}, s{s_w}, 10")
    e(f"v_add_u32 v{vH}, s{s_a}, v{vH}")
    for lam in range(1, 4): e(f"v_xor_b32 v{vH+lam}, {1024*lam}, v{vH}")
    e(f"s_mul_i32 s{s_hld}, s{s_m64}, {HM}")
    e(f"s_mul_i32 s{s_a}, s{s_w}, {HQ}")
    e(f"s_add_u32 s{s_hld}, s{s_hld}, s{s_a}")
    e(f"v_add_u32 v{vFl}, 5, v0")
    e(f"v_lshrrev_b32 v{vFl}, 3, v{vFl}")
    e(f"v_add_u32 v{vFl}, v{vFl}, v0")
    e(f"v_min_u32 v{vFl}, 7, v{vFl}")
    e(f"v_lshlrev_b32 v{vFl}, 7, v{vFl}")
    e(f"s_lshl_b32 s{s_a}, s{s_m64}, 13")
    e(f"s_lshl_b32 s{s_b}, s{s_w}, 11")
    e(f"s_add_u32 s{s_a}, s{s_a}, s{s_b}")
    e(f"s_add_u32 s{s_a}, s{s_a}, {FBASE}")
    e(f"v_add_u32 v{vFl}, s{s_a}, v{vFl}")
    if args.rotc == 4:
        e(f"s_and_b32 s{s_a}, s{s_c}, 1")
        e(f"s_lshl_b32 s{s_a}, s{s_a}, 2")
    else:
        e(f"s_mul_i32 s{s_a}, s{s_c}, {args.rotc}")
    if spare_: e(f"s_lshl_b32 s{s_a}, s{s_c}, 1")
    e(f"s_add_u32 s{s_a}, s{s_a}, s{s_col}")
    e(f"s_sub_u32 s{s_b}, s{s_a}, 7")
    e(f"s_cmp_ge_u32 s{s_a}, 7")
    e(f"s_cselect_b32 s{s_a}, s{s_b}, s{s_a}")
    for jj in range(7):
        e(f"s_lshl_b32 s{s_b}, s{s_a}, 18")
        e(f"s_add_u32 s{s_rd+jj}, s{s_b}, s{s_doff}")
        if args.swap:
            e(f"s_lshr_b32 s{s_b}, s{s_w}, 1")
            if args.swap == 1: e(f"s_and_b32 s{s_b}, s{s_b}, s{s_a}")
            e(f"s_lshl_b32 s{s_b}, s{s_b}, 16")
            e(f"s_add_u32 s{s_rd+jj}, s{s_rd+jj}, s{s_b}")
        if jj < 6:
            e(f"s_add_u32 s{s_a}, s{s_a}, 1")
            e(f"s_cmp_eq_u32 s{s_a}, 7")
            e(f"s_cselect_b32 s{s_a}, 0, s{s_a}")
    e(f"s_lshl_b32 s{s_a}, s{s_m64}, 16")
    e(f"s_lshl_b32 s{s_b}, s{s_w}, 14")
    e(f"s_add_u32 s{s_a}, s{s_a}, s{s_b}")
    e(f"s_add_u32 s{s_oadr}, s{s_a}, s{s_doff}")

def rd2_setup():
    e(f"s_sub_u32 s{s_a}, s{s_mW}, s{s_mP}")
    for nt in range(4): e(f"v_add_u32 v{vRD2+nt}, s{s_a}, v{vRD+nt}")

def d_reads(item, where):
    dfile, dstbase = homes[item]
    ops = []
    for nt in range(4):
        for p in range(2):
            def f(nt=nt, p=p):
                if where[0] == 'P': va = vRD + nt; off = where[1]*4096
                else: va = vRD2 + nt; off = where[1]*8192
                off += p*2048
                r = dstbase + nt*4 + 2*p
                g.ds(f"ds_read_b64_tr_b16 {dfile}[{r}:{r+1}], v{va} offset:{off}", ('Dr', item))
            ops.append(f)
    return ops

def pmask(vaddr): return 3 if vaddr == vMk else 0x7f
def poll(vdst, vaddr, srd, off, tag):
    o = f" offset:{off}" if off else ""
    e(f"s_mov_b64 exec, {pmask(vaddr)}")
    if args.pollmode == "atomic" and vaddr != vMk:
        e(f"v_mov_b32 v{vdst}, 0")
        g.vmem(f"buffer_atomic_add v{vdst}, v{vaddr}, {sr(srd)}, 0 offen{o} sc0 sc1", tag)
    else:
        g.vmem(f"buffer_load_dword v{vdst}, v{vaddr}, {sr(srd)}, 0 offen{o} sc1", tag)
    e("s_mov_b64 exec, -1")
def test(vres, vaddr, target):
    e(f"v_cmp_eq_u32 vcc, 0, v{vres}")
    e(f"s_and_b32 s{s_t1}, vcc_lo, {pmask(vaddr)}")
    e(f"s_cbranch_scc0 {target}")
def spin(label, vaddr, srd, off, sleep=0):
    e(f"s_mov_b32 s{s_spin}, 0x40000")
    g.lab(label)
    poll(vT, vaddr, srd, off, 'sp')
    e("s_waitcnt vmcnt(0)")
    test(vT, vaddr, f"{label}_ok")
    if sleep: e(f"s_sleep {sleep}")
    e(f"s_sub_u32 s{s_spin}, s{s_spin}, 1")
    e(f"s_cmp_lg_u32 s{s_spin}, 0")
    e(f"s_cbranch_scc1 {label}")
    g.lab(label + "_ok")
    g.vm = []
def check_or_spin(label, vres, tag, vaddr, srd, off, pre=None):
    g.need_vm([tag])
    test(vres, vaddr, f"{label}_ok")
    save = list(g.vm)
    if pre: pre()
    spin(label, vaddr, srd, off)
    g.vm = save

def epi_ops(acc, s, mt, packed):
    ops = []; d = EPI + 4*mt
    for ql in range(2):
        a = accr(acc, 2*ql, mt); b = accr(acc, 2*ql + 1, mt)
        if packed:
            for i in range(2): ops.append(lambda a=a, b=b, i=i: e(f"v_pk_mul_f32 v[{a+2*i}:{a+2*i+1}], v[{a+2*i}:{a+2*i+1}], v[{b+2*i}:{b+2*i+1}]"))
        else:
            for i in range(4): ops.append(lambda a=a, b=b, i=i: e(f"v_mul_f32 v{a+i}, v{a+i}, v{b+i}"))
    for ql in range(2):
        a = accr(acc, 2*ql, mt)
        for i in range(2): ops.append(lambda a=a, i=i, ql=ql: e(f"v_cvt_pk_bf16_f32 v{d+2*ql+i}, v{a+2*i}, v{a+2*i+1}"))
    if mt == 0 and s == 1: ops.append(lambda: e(f"s_add_u32 s{s_hst}, s{s_hst}, {HS}"))
    off = f" offset:{1024*mt}" if mt else ""
    ops.append(lambda: g.vmem(f"buffer_store_dwordx4 {vr(d)}, v{vL16}, {sr(sH)}, s{s_hst} offen{off} sc1", ('hs', s)))
    return ops

def flag_store(s):
    e(f"v_mov_b32 v{vT2}, s{s_flag}")
    e(f"v_mov_b32 v{vT}, 1")
    e("s_mov_b64 exec, 1")
    op = "buffer_atomic_or" if args.pollmode == "atomic" else "buffer_store_dword"
    g.vmem(f"{op} v{vT}, v{vT2}, {sr(sH)}, 0 offen offset:{FS*s} sc1", ('fl', s))
    e("s_mov_b64 exec, -1")

def hidx(i):
    s, r_ = divmod(i, 28)
    if s == 0: jj, lam = divmod(r_, 4)
    else: jj, lam = r_ % 7, (r_ // 7 + 1) % 4
    return s, jj, lam, r_
def h_load(i):
    s, jj, lam, r_ = hidx(i)
    dst = ar(hreg[r_]) if s == 0 else vr(HB + r_*4)
    if i == 28:
        for q in range(7): e(f"s_add_u32 s{s_rh+q}, s{s_rh+q}, {HS}")
    g.vmem(f"buffer_load_dwordx4 {dst}, v{vH+lam}, {sr(sH)}, s{s_rh+jj} offen sc1", ('h', i))
def mf(i, nt):
    s, jj, lam, r_ = hidx(i)
    g.need_vm([('h', i)])
    g.need_lg([('Dr', s*7 + jj)])
    f_, base = homes[s*7 + jj]
    r = base + nt*4
    acc = ACC2 + (lam*4 + nt)*4
    c = "0" if i < 4 else vr(acc)
    h = ar(hreg[r_]) if s == 0 else vr(HB + r_*4)
    e(f"{MF} {vr(acc)}, {f_}[{r}:{r+3}], {h}, {c}")
def tail_setup():
    e(f"v_lshlrev_b32 v{vL16}, 4, v0")
    for lam in range(1, 4):
        e(f"s_xor_b32 s{s_a}, s{s_w}, {lam}")
        e(f"s_mul_i32 s{s_a}, s{s_a}, {PWS}")
        e(f"s_add_u32 s{s_a}, s{s_a}, {PB + (lam-1)*4096}")
        e(f"v_add_u32 v{vTR+lam-1}, s{s_a}, v{vL16}")
    e(f"v_add_u32 v{vTW}, s{s_mP}, v{vL16}")
    e(f"v_and_b32 v{vTO}, 15, v0")
    e(f"v_lshlrev_b32 v{vTO}, 10, v{vTO}")
    e(f"v_bfe_u32 v{vTO+1}, v0, 4, 1")
    e(f"v_lshl_add_u32 v{vTO}, v{vTO+1}, 5, v{vTO}")
    e(f"v_lshrrev_b32 v{vTO+1}, 5, v0")
    e(f"v_lshl_add_u32 v{vTO}, v{vTO+1}, 4, v{vTO}")
HD = args.hdepth

mand = []
for n in range(16):
    for k in range(8):
        if first_k[k] == n: mand.append((n, 'X', k, ('P', k % NXB)))
    mand.append((n, 'W', n, ('W', n % NW)))
ops0 = dma_item(*mand[0][1:])
for k_, f in ops0:
    if k_ == 's': f()
after_kernarg()
g.stamp(1)
for k_, f in ops0:
    if k_ == 'v': f()
for f in dma4(*mand[1][1:]): f()
setup2()
def touch_setup(k0):
    e(f"s_lshl_b32 s{s_a}, s{s_mb}, 2")
    e(f"s_add_u32 s{s_a}, s{s_a}, s{s_w}")
    e(f"s_add_u32 s{s_a}, s{s_a}, {64*k0}")
    e(f"s_mul_i32 s{s_a}, s{s_a}, 3584")
    e(f"s_add_u32 s{s_a}, s{s_a}, s{s_woff}")
    e("v_lshrrev_b32 v242, 3, v0")
    e("v_and_b32 v243, 7, v0")
    e("v_and_b32 v240, 1, v0")
    e("v_lshlrev_b32 v240, 7, v240")
    e(f"v_mul_u32_u24 v244, {64*3584}, v242")
    e(f"v_add3_u32 v240, v240, v244, s{s_a}")
    e(f"s_lshl_b32 s{s_a}, s{s_fb}, 2")
    e(f"s_add_u32 s{s_a}, s{s_a}, s{s_w}")
    e(f"s_mul_i32 s{s_a}, s{s_a}, 3")
    e(f"s_sub_u32 s{s_a}, s{s_a}, 4")
    e("v_max_u32 v241, 4, v243")
    e(f"v_add_u32 v241, s{s_a}, v241")
    e("v_min_u32 v241, 127, v241")
    e("v_lshlrev_b32 v241, 10, v241")
    e("v_lshl_add_u32 v241, v242, 7, v241")
    e(f"s_add_u32 s{s_a}, s{s_xoff}, {128*k0}")
    e(f"v_add_u32 v241, s{s_a}, v241")
def touch(n, n0=0):
    m = sum(1 << (8*j_) for j_ in range(n0, n))
    for bits, srd, v_, off in ((3, sG, 240, 0), (12, sU, 240, 1024), (0x70, sX, 241, 0)):
        mk = m * bits
        e(f"s_mov_b32 exec_lo, {mk & 0xffffffff}")
        e(f"s_mov_b32 exec_hi, {mk >> 32}")
        g.vmem(f"buffer_load_dword v250, v{v_+8}, {sr(srd)}, 0 offen offset:{off}", "pf")
    e("s_mov_b64 exec, -1")
if args.touch:
    tk0, tn = map(int, args.touch.split(","))
    touch_setup(tk0)
    e("v_mov_b32 v248, v240"); e("v_mov_b32 v249, v241")
    if args.tpos == 0: touch(tn)
wtab_setup()
late_addr_setup()
e(f"s_lshr_b32 s{s_a}, s{s_w}, 1")
e(f"s_lshl_b32 s{s_b}, s{s_mb}, 1")
e(f"s_add_u32 s{s_a}, s{s_a}, s{s_b}")
e(f"s_and_b32 s{s_b}, s{s_fb}, 1")
e(f"s_lshl_b32 s{s_b}, s{s_b}, 1")
e(f"s_and_b32 s{s_t1}, s{s_w}, 1")
e(f"s_add_u32 s{s_b}, s{s_b}, s{s_t1}")
e(f"s_mul_i32 s{s_hst}, s{s_a}, {HM}")
e(f"s_mul_i32 s{s_t1}, s{s_b}, {HQ}")
e(f"s_add_u32 s{s_hst}, s{s_hst}, s{s_t1}")
e(f"s_lshr_b32 s{s_t2}, s{s_fb}, 1")
e(f"s_lshl_b32 s{s_t1}, s{s_t2}, 13")
e(f"s_add_u32 s{s_hst}, s{s_hst}, s{s_t1}")
e(f"s_add_u32 s{s_t1}, s{s_a}, s{s_b}")
h_pattern(vL16, s_t1)
e(f"s_cmp_ge_u32 s{s_t2}, 3")
e(f"s_addc_u32 s{s_t2}, s{s_t2}, 0")
e(f"s_lshl_b32 s{s_t2}, s{s_t2}, 7")
e(f"s_lshl_b32 s{s_b}, s{s_b}, 11")
e(f"s_add_u32 s{s_b}, s{s_b}, s{s_t2}")
e(f"s_lshl_b32 s{s_t1}, s{s_a}, 13")
e(f"s_add_u32 s{s_b}, s{s_b}, s{s_t1}")
e(f"s_add_u32 s{s_flag}, s{s_b}, {FBASE}")
e(f"s_lshl_b32 s{s_a}, s{s_a}, 2")
e(f"s_lshl_b32 s{s_b}, s{s_m64}, 2")
e(f"v_mov_b32 v{vMk}, s{s_a}")
e(f"v_mov_b32 v240, s{s_b}")
e("v_cmp_lt_u32 vcc, 0, v0")
e("s_nop 1")
e(f"v_cndmask_b32 v{vMk}, v{vMk}, v240, vcc")

def phase2A(R, stay, dplace, lateops, late, nh, extra):
    dmove = {}; slot_ = 0
    plan = {}; q = [('h', i) for i in range(nh, 28)]; lo = list(lateops); it = args.quiet if R != "S" else 0
    late_done = {}
    def takeD(c):
        c.append(('d', lo.pop(0)))
        if len(lo) % 4 == 0: late_done[late[len(late) - 1 - len(lo)//4]] = it
    while q or lo:
        c = []
        behind = q and q[0][1] - it < 8
        if q: c.append(q.pop(0))
        while len(c) < args.per and (q or lo):
            if q and (behind or not lo):
                if not behind and not lo and it >= 4 + args.quiet: break
                c.append(q.pop(0))
            else: takeD(c)
        for o in c:
            if o[0] == 'h': assert o[1] > it, ("h load late", o, it)
        plan[it] = c; it += 1
    for j in stay:
        p_ = slot_ if j not in reuse else max(4*reuse[j] + 3 + 2, slot_)
        if j in late_done: p_ = max(p_, late_done[j] + 8)
        p_ = min(p_, 26)
        dmove.setdefault(p_, []).append(j); slot_ = p_ + 2
        assert p_ + 1 < min(i for i in range(56) if hidx(i)[0]*7 + hidx(i)[1] == j), ("D move too late", j, p_)
    CB = args.chkB_i
    assert it <= CB, ("issue plan too long", it)
    pend = []
    def vm_(o):
        if o[0] == 'h': h_load(o[1])
        else: o[1]()
    def body(i, loads):
        for j in dmove.get(i, []):
            ops = d_reads(j, dplace[j])
            pend.append(lambda j=j, f=ops[0]: (g.need_vm([('D', j)]), f()))
            pend.extend(ops[1:])
        side = [lambda o=o: vm_(o) for o in loads] + list(extra.get(i, []))
        for nt in range(4):
            mf(i, nt)
            if args.st2 and nt == 0 and i in (0, 8): g.stamp(4 if i == 0 else 6)
            if side: side.pop(0)()
            elif pend: pend.pop(0)()
            if pend: pend.pop(0)()
        for f in side: f()
    def flush():
        while pend: pend.pop(0)()
        g.need_lg(g.lg[:])
    for i in range(CB):
        body(i, plan.get(i, []))
        if i == args.pollB: poll(vP2, vFl, sH, FS, 'pb')
    if args.st2: g.stamp(1)
    g.need_vm(['pb'])
    if args.st2: g.stamp(2)
    test(vP2, vFl, f"L_fastB{R}")
    sv = list(g.vm), list(g.lg), list(pend)
    poll(vP2, vFl, sH, FS, 'pb2')
    for i in range(CB, 28): body(i, [])
    flush()
    g.need_vm(['pb2'])
    test(vP2, vFl, f"L_pb{R}_ok")
    pr = [vT, vT2, vP1, vP2][:args.npoll]
    e(f"s_mov_b32 s{s_spin}, 0x20000")
    for r_ in pr[:-1]:
        poll(r_, vFl, sH, FS, 'x'); e("s_sleep 1")
    g.lab(f"L_pb{R}")
    for k_ in range(len(pr)):
        poll(pr[k_ - 1], vFl, sH, FS, 'x')
        e(f"s_waitcnt vmcnt({len(pr) - 1})")
        test(pr[k_], vFl, f"L_pb{R}_ok")
    e(f"s_sub_u32 s{s_spin}, s{s_spin}, 1")
    e(f"s_cmp_lg_u32 s{s_spin}, 0")
    e(f"s_cbranch_scc1 L_pb{R}")
    g.lab(f"L_pb{R}_ok")
    g.vm = []
    g.stamp(13)
    for i in range(28, 28 + HD): h_load(i)
    e("s_branch L_B")
    g.lab(f"L_fastB{R}")
    g.vm, g.lg = sv[0], sv[1]; pend[:] = sv[2]
    q = list(range(28, 28 + HD)); per = -(-HD // (28 - CB))
    for i in range(CB, 28):
        body(i, [('h', q.pop(0)) for _ in range(min(per, len(q)))])
    assert not q
    flush()
    assert [t for t in g.vm if t[0] != 'h' or t[1] < 28] == [], g.vm

vm0 = list(g.vm)
def main_path(R):
    g.vm = list(vm0); g.lg = []
    L_ = R == "L"
    pre_ = args.l_pre if L_ else args.pre
    minlead_ = args.l_minlead if L_ else args.minlead
    maxlead_ = 999 if L_ else args.maxlead
    dstart_ = args.l_dstart if L_ else args.dstart
    issued = {m[1:3] for m in mand[:2]}
    rest = list(mand[2:])
    for (_, kind, n, where) in rest[:pre_ - 2]:
        assert (n < NW if kind == 'W' else n < NXB)
        for f in dma4(kind, n, where): f()
        issued.add((kind, n))
    rest = rest[pre_ - 2:]
    if args.touch and args.tpos == 1: touch(tn)
    g.stamp(2)
    rates = [int(x) for x in (args.l_rates if L_ and args.l_rates else args.rates).split(",")]
    slotc = {}
    for n in range(16):
        for i in range(rates[n]): slotc[32*n + START + (32*i)//rates[n]] = 1
    st = dict(credit=0, dnext=0, cur=None, nh=0, j=START)
    dma_q = []; lds_q = []; epi_q = []; misc_q = []
    wfree = {n: n < NW for n in range(16)}; xfree = {k: k < NXB for k in range(8)}
    dblocks = [('P', b_) for b_ in range(NXB, NP)]
    pending = []; dplace = {}; dland = []; dread_done = []; log = []; xdone = set(); xrel = []; inreg = []
    epiA_done = set()
    for mt in range(4):
        ops_ = epi_ops(ACC0, 0, mt, args.pk)
        ops_[-1] = (lambda f=ops_[-1], mt=mt: (f(), epiA_done.add(mt)))
        for f in ops_: epi_q.append(((done_at(0, mt) + 8) if args.mergeA else (done_at(0, 3) + 6), 'A', f))
    for mt in range(3):
        for f in epi_ops(ACC1, 1, mt, args.pk): epi_q.append((done_at(1, mt) + 8, 'B', f))
    bar_at = {p: n for n, p in bpos.items()}
    def release(kind, i):
        if kind == 'W':
            if i + NW < 16: wfree[i + NW] = True
            else: dblocks.append(('W', i % NW))
        else:
            if i + NXB < 8: xfree[i + NXB] = True
            else: dblocks.append(('P', i % NXB))
        dblocks.sort(key=lambda b_: b_[0] != 'P')
    def barrier(n):
        tags = [('W', n)] + [('X', k) for k in range(8) if first_k[k] == n]
        assert all(t in issued for t in tags), (R, n)
        g.need_vm(tags)
        for k in list(xrel):
            if args.lf: assert all((k, T, mt) in xdone for T in range(2) for mt in range(4))
            if args.lf or (all((k, T, mt) in xdone for T in range(2) for mt in range(4)) and not any(t_[0] == 'x' and t_[1] == k for t_ in g.lg[-6:])):
                g.need_lg([('x', k, T, mt) for T in range(2) for mt in range(4)])
                pending.append(('X', k)); xrel.remove(k)
        e("s_barrier")
        for kind, i in pending: release(kind, i)
        pending.clear()
        for k in range(8):
            if first_k[k] == n:
                xrel.append(k)
                for T, mt in sorted(((T, mt) for T in range(2) for mt in range(4)), key=lambda tm: min(j_ for j_, (i, m_) in enumerate(mseq) if m_ == tm[1] and uses[i][:2] == (n, tm[0]))):
                    if True:
                        def f(k=k, T=T, mt=mt):
                            assert k < NXK or st['j'] > xlast[k - NXK], ("x slot busy", k, st['j'])
                            r = ((k % NXK)*8 + T*4 + mt)*4
                            g.ds(f"ds_read_b128 {ar(r)}, v{vRX+T} offset:{(mt >> 1)*PWS + (mt & 1)*2048 + (k % NXB)*4096}", ('x', k, T, mt))
                            xdone.add((k, T, mt))
                        lds_q.append(('x', f))
                lds_q.sort(key=lambda o: o[0] != 'x')
    def wread(i, half):
        n, T, c = uses[i]
        fl, b = wbuf[i]; b += 2*half
        if i in wneed: assert wneed[i] in epiA_done, ('acc0 not free', i, st['j'])
        off = (n % NW) * 8192 + T * 4096 + (c & 1) * 1024 + 512*half
        g.ds(f"ds_read_b64_tr_b16 {fl}[{b}:{b+1}], v{vRW + (c >> 1)} offset:{off}", ('w', i))
    def pick(j):
        d = dorder[st['dnext']] if st['dnext'] < args.x_nd else None
        can_d = d is not None and dblocks and j >= dstart_
        for idx, (dl, kind, n, where) in enumerate(rest[:3]):
            ok = wfree[n] if kind == 'W' else xfree[n]
            lead = bpos[dl] - j
            extra = 16 if any(r_[0] == dl for r_ in rest[idx+1:idx+2]) else 0
            minl = max(minlead_, args.latelead) if dl >= args.latefrom else minlead_
            maxl = max(maxlead_, args.latelead + 16) if dl >= args.latefrom else maxlead_
            urgent = lead < minl + 16 + extra
            if ok and lead <= maxl + extra and (urgent or not can_d):
                rest.pop(idx); log.append(f"{kind}{n}@{j}(-{lead})")
                assert lead > 20, ("late", R, kind, n, j)
                return kind, n, where
            if not ok and lead < 48: return None
            if ok: break
        if can_d:
            blk = dblocks.pop(0 if d in early_ok else -1); st['dnext'] += 1; dplace[d] = blk; log.append(f"D{d}@{j}")
            return 'D', d, blk
        return None
    barrier(0)
    g.stamp(3)
    for j in range(START, NM):
        n0 = len(g.L)
        if j >= 0:
            i, mt = mseq[j]
            n, T, c = uses[i]
            s_, k = steps[n]
            assert (k, T, mt) in xdone, ("x read late", j)
            tg = [('w', i), ('x', k, T, mt)]
            if j == first_use[i] and i % args.wgrp == 0:
                tg += [('w', i_) for i_ in range(i, min(i + args.wgrp, NU)) if g.lg.count(('w', i_)) == 2]
            if mt == 0: tg += [('x', k, T, m_) for m_ in range(4)]
            g.need_lg(tg)
            acc = accr(ACC0 if s_ == 0 else ACC1, c, mt)
            cc = "0" if (k == 0 and T == 0) else vr(acc)
            e(f"{MF} {vr(acc)}, {wbuf[i][0]}[{wbuf[i][1]}:{wbuf[i][1]+3}], {ar(((k % NXK)*8 + T*4 + mt)*4)}, {cc}")
            if i == last_u[n] and j == first_use[i]: pending.append(('W', n))
            if args.fine:
                f0, fs = map(int, args.fine.split(","))
                if j >= f0 and (j - f0) % fs == 0 and (j - f0)//fs < 8: g.stamp(4 + (j - f0)//fs, True)
            elif args.stepstamps and j % 64 == 63: g.stamp(4 + j // 64, True)
            nxt_wait = j + 1 < NM and first_use[mseq[j+1][0]] == j + 1 and ('w', mseq[j+1][0]) in g.lg
            n0 = len(g.L) - (1 if nxt_wait else 0)
        used = lambda: len(g.L) - n0
        for i_, h_ in rsched.get(j, []): wread(i_, h_)
        if j in bar_at and bar_at[j] > 0: barrier(bar_at[j])
        if j == args.pollA_at: poll(vP1, vFl, sH, 0, 'pa')
        if j == args.chkA_at:
            assert not rest
            while misc_q: g.L += misc_q.pop(0)
            check_or_spin(f"L_pa{R}", vP1, 'pa', vFl, sH, 0)
            g.stamp(8)
        if j >= args.chkA_at and st['nh'] < args.hpre and not dma_q and (j - args.chkA_at) % 4 == 1:
            h_load(st['nh']); st['nh'] += 1
        if args.touch2 and j == int(args.touch2): touch(8 - tk0, tn)
        if j == args.mkat: poll(vP1, vMk, sB, 0, 'mk')
        if j == args.flagA_at:
            assert not any(t_ == 'A' for _, t_, _ in epi_q)
            check_or_spin(f"L_mk{R}", vP1, 'mk', vMk, sB, 0)
            g.need_vm([('hs', 0)])
            flag_store(0)
            g.stamp(4)
        while dland and dland[0][0] <= j and not any(o[0] == 'd' for o in lds_q) and j < NM - 40 and not (args.mergeA and j <= endA and homes[dland[0][1]][0] == 'a' and homes[dland[0][1]][1] >= 192):
            _, it = dland.pop(0)
            ops = d_reads(it, dplace[it]); inreg.append(it)
            lds_q.append(('d', lambda it=it, f=ops[0]: (g.need_vm([('D', it)]), f())))
            for f in ops[1:-1]: lds_q.append(('d', f))
            lds_q.append(('d', lambda it=it, f=ops[-1]: (f(), dread_done.append((st['j'] + 8, it)))))
        st['j'] = j
        while dread_done and dread_done[0][0] <= j:
            _, it = dread_done.pop(0)
            g.need_lg([('Dr', it)]); dblocks.insert(0, dplace[it])
        if j in slotc: st['credit'] = min(st['credit'] + 1, 2)
        if lds_q and lds_q[0][0] == 'x' and used() < args.cap + 1: lds_q.pop(0)[1]()
        if not dma_q and (st['credit'] or any(j + q_ in slotc for q_ in (1, 2, 3))) and j < min(args.chkA_at - 12, args.dstop):
            p_ = pick(j)
            if p_: dma_q = dma_item(*p_); st['cur'] = p_
        while dma_q and dma_q[0][0] == 's' and used() < args.cap + (1 if st['credit'] >= 2 else 0): dma_q.pop(0)[1]()
        if dma_q and dma_q[0][0] == 'v' and st['credit'] and (used() + args.vcost <= args.cap or (st['credit'] >= 2 and used() <= args.cap)) and j < NM - 4 and not g.L[-1].strip().startswith("s_add_u32 m0"):
            dma_q.pop(0)[1](); st['credit'] -= 1
            n0 -= args.vcost - 1
            if not dma_q:
                issued.add(st['cur'][:2])
                if st['cur'][0] == 'D' and st['cur'][1] in early_ok: dland.append((j + (args.dlat if st['dnext'] <= 4 else args.dlat2), st['cur'][1]))
                if st['cur'][:2] == ('X', 7): rd2_setup()
                if st['cur'][0] == 'W' and not any(r_[1] == 'W' for r_ in rest):
                    n1 = len(g.L); rh_setup(); tl = g.L[n1:]; del g.L[n1:]
                    for q_ in range(0, len(tl), 3): misc_q.append(tl[q_:q_+3])
        if lds_q and len(g.lg) < 13 and used() < args.cap and j % 2: lds_q.pop(0)[1]()
        while epi_q and epi_q[0][0] <= j and used() < args.ecap: epi_q.pop(0)[2]()
        while lds_q and len(g.lg) < 13 and used() < args.cap: lds_q.pop(0)[1]()
        if misc_q and used() == 0: g.L += misc_q.pop(0)
    g.stamp(5)
    for t_ in misc_q: g.L += t_
    assert not rest
    for _, f in lds_q: f()
    for _, _, f in epi_q: f()
    e("s_nop 7")
    for f in epi_ops(ACC1, 1, 3, True): f()
    g.stamp(6)
    g.need_lg(g.lg[:])
    for _, it in dread_done: dblocks.append(dplace[it])
    e("s_barrier")
    assert not xrel
    for kind, i in pending: release(kind, i)
    for _, f in dma_q: f()
    post = dorder[st['dnext']:args.x_nd]
    sys.stderr.write(f"{R}: " + " ".join(log) + f"\n   inreg {inreg} post {post} nh {st['nh']}\n")
    lateops = []
    for n in post:
        dplace[n] = dblocks.pop(0)
        lateops += dma4('D', n, dplace[n])
    stay = [j for j in range(14) if j not in inreg and j in dorder[:args.x_nd]]
    assert len(set(dplace[j] for j in stay)) == len(stay)
    def do_flagB():
        g.need_vm([('hs', 1)])
        flag_store(1)
        g.stamp(7)
    extra = {1: [tail_setup]}
    nfirst = min(args.dfirst*4, len(lateops))
    fbd = False
    for i_ in range(nfirst):
        if args.flagB_i < 0 and i_ == -args.flagB_i: do_flagB(); fbd = True
        lateops.pop(0)()
    post = post[nfirst//4:]
    if args.flagB_i < 0 and not fbd: do_flagB()
    if args.chkA_at >= NM:
        check_or_spin(f"L_pa{R}", vP1, 'pa', vFl, sH, 0, pre=(lambda: (g.need_vm([('hs', 1)]), flag_store(1))) if args.flagB_i >= 0 else None)
        g.stamp(8)
        while st['nh'] < args.hpre: h_load(st['nh']); st['nh'] += 1
    if args.flagB_i >= 0: extra.setdefault(args.flagB_i, []).append(do_flagB)
    phase2A(R, stay, dplace, lateops, post, st['nh'], extra)
    e("s_branch L_B")

xrel_log = {}
if args.lf:
    if args.lfsel == "x":
        e(f"s_lshr_b32 s{s_a}, s{s_xcd}, 1")
        e(f"s_cmp_lg_u32 s{s_w}, s{s_a}")
    else:
        e(f"s_cmp_lg_u32 s{s_w}, s{s_c}")
    e("s_cbranch_scc1 L_follow")
    main_path("L")
    g.lab("L_follow")
main_path("F")
stay = sorted(reuse); inreg = [j for j in range(14) if j not in stay]; dplace = {j: ('P', q_) for q_, j in enumerate(stay)}

g.lab("L_spare")
g.vm = []; g.lg = []
setup2()
after_kernarg()
g.stamp(1)
e(f"s_cmp_lg_u32 s{s_w}, 0")
e("s_cbranch_scc1 L_sp1")
e(f"s_lshl_b32 s{s_a}, s{s_m64}, 13")
e(f"s_add_u32 s{s_a}, s{s_a}, {FBASE}")
e("v_lshlrev_b32 v240, 7, v0")
e("v_mov_b32 v241, 0")
e(f"buffer_store_dword v241, v240, {sr(sH)}, s{s_a} offen sc1")
g.lab("L_sp1")
def sp_touch():
    e("v_min_u32 v240, 55, v0")
    e(f"s_lshl_b32 s{s_a}, s{s_m64}, 2")
    e(f"s_add_u32 s{s_a}, s{s_a}, s{s_w}")
    e(f"s_and_b32 s{s_b}, s{s_a}, 63")
    e(f"s_lshr_b32 s{s_a}, s{s_a}, 6")
    e(f"s_lshl_b32 s{s_a}, s{s_a}, 7")
    e(f"s_add_u32 s{s_a}, s{s_a}, s{s_b}")
    e(f"s_lshl_b32 s{s_a}, s{s_a}, 10")
    e("v_lshrrev_b32 v242, 3, v240")
    e("v_lshlrev_b32 v242, 18, v242")
    e("v_and_b32 v247, 7, v240")
    e("v_lshl_add_u32 v242, v247, 7, v242")
    g.vmem(f"buffer_load_dword v249, v242, {sr(sD)}, s{s_a} offen", "pf")
    e(f"s_add_u32 s{s_a}, s{s_a}, 65536")
    g.vmem(f"buffer_load_dword v250, v242, {sr(sD)}, s{s_a} offen", "pf")
npf = 0
if args.sppf >= 0:
    e(f"s_lshl_b32 s{s_a}, s{s_mb}, 2")
    e(f"s_add_u32 s{s_a}, s{s_a}, s{s_w}")
    e(f"s_add_u32 s{s_a}, s{s_a}, {64*args.sppf}")
    e(f"s_mul_i32 s{s_a}, s{s_a}, 3584")
    e(f"s_and_b32 s{s_b}, s{s_xcd}, 1")
    e(f"s_mul_i32 s{s_b}, s{s_b}, 1792")
    e(f"s_add_u32 s{s_a}, s{s_a}, s{s_b}")
    e(f"s_lshl_b32 s{s_b}, s{s_m64}, 2")
    e(f"s_add_u32 s{s_b}, s{s_b}, s{s_w}")
    e(f"s_lshl_b32 s{s_b}, s{s_b}, 14")
    e(f"s_add_u32 s{s_b}, s{s_b}, {128*args.sppf - 28*1024 + (1 << 32)}")
    e("v_lshlrev_b32 v243, 10, v0")
    e(f"v_add_u32 v243, s{s_b}, v243")
    e(f"v_mov_b32 v252, s{sX}")
    e(f"v_mov_b32 v253, s{sX+1}")
    e("v_mov_b32 v254, 128")
    e("s_mov_b64 exec, 0xfffffff")
    e("v_lshlrev_b32 v243, 7, v0")
    e(f"s_sub_u32 s{s_b}, s{s_a}, {14*128 - 1024}")
    e(f"v_add_u32 v243, s{s_b}, v243")
    e(f"v_mov_b32 v252, s{sU}")
    e(f"v_mov_b32 v253, s{sU+1}")
    e(f"v_mov_b32 v254, {64*3584}")
    e("s_mov_b64 exec, 0x3fff")
    e("v_lshlrev_b32 v243, 7, v0")
    e(f"v_add_u32 v243, s{s_a}, v243")
    e(f"v_mov_b32 v252, s{sG}")
    e(f"v_mov_b32 v253, s{sG+1}")
    e("s_mov_b32 exec_lo, -1")
    e("s_mov_b32 exec_hi, 0xfff")
    e("v_add_co_u32 v252, vcc, v252, v243")
    e("v_addc_co_u32 v253, vcc, 0, v253, vcc")
    for kb in range(args.sppf, 8):
        if kb == args.sppfd:
            e("s_mov_b64 exec, -1"); sp_touch(); npf += 2
            e("s_mov_b32 exec_hi, 0xfff")
        g.vmem("global_load_dword v251, v[252:253], off", "pf"); npf += 1
        if kb < 7:
            e("v_add_co_u32 v252, vcc, v252, v254")
            e("v_addc_co_u32 v253, vcc, 0, v253, vcc")
    e("s_mov_b64 exec, -1")
def s3_touch():
    e(f"s_lshl_b32 s{s_a}, s{s_c}, 2")
    e(f"s_add_u32 s{s_a}, s{s_a}, s{s_w}")
    e(f"s_and_b32 s{s_b}, s{s_xcd}, 1")
    e(f"s_mul_i32 s{s_b}, s{s_b}, 3")
    e("v_bfe_u32 v243, v0, 1, 2")
    e(f"v_add_u32 v243, s{s_b}, v243")
    e("v_and_b32 v244, 1, v243")
    e("v_lshrrev_b32 v245, 3, v0")
    e("v_lshl_add_u32 v244, v245, 6, v244")
    e("v_and_b32 v245, 1, v0")
    e("v_lshl_add_u32 v244, v245, 1, v244")
    e("v_mul_u32_u24 v244, 3584, v244")
    e("v_lshl_add_u32 v244, v243, 9, v244")
    e(f"s_mul_i32 s{s_b}, s{s_a}, {4*3584}")
    g.vmem(f"buffer_load_dword v251, v244, {sr(sG)}, s{s_b} offen offset:384", "pf")
    g.vmem(f"buffer_load_dword v252, v244, {sr(sU)}, s{s_b} offen offset:{384+1024}", "pf")
    e(f"s_lshr_b32 s{s_b}, s{s_xcd}, 1")
    e(f"s_lshl_b32 s{s_b}, s{s_b}, 4")
    e(f"s_add_u32 s{s_b}, s{s_b}, s{s_a}")
    e(f"s_lshl_b32 s{s_b}, s{s_b}, 15")
    e("v_lshlrev_b32 v244, 10, v0")
    e("s_mov_b32 exec_hi, 0")
    g.vmem(f"buffer_load_dword v253, v244, {sr(sX)}, s{s_b} offen offset:384", "pf")
    e("s_mov_b64 exec, -1")
if args.s3pf == 1: s3_touch(); npf += 3
if not args.nomall and args.spt == 0:
    if not (args.sppf <= args.sppfd < 8): sp_touch(); npf += 2
    if args.s3pf == 2: s3_touch(); npf += 3
    e(f"s_waitcnt vmcnt({npf})")
else:
    e("s_waitcnt vmcnt(0)")
e(f"s_cmp_lg_u32 s{s_w}, 0")
e("s_cbranch_scc1 L_sp2")
e(f"s_lshl_b32 s{s_a}, s{s_m64}, 2")
e(f"v_mov_b32 v247, s{s_a}")
e("v_mov_b32 v248, 1")
e("s_mov_b64 exec, 1")
e(f"buffer_store_dword v248, v247, {sr(sB)}, 0 offen sc1")
e("s_mov_b64 exec, -1")
g.lab("L_sp2")
g.stamp(4)
late_addr_setup(True)
rh_setup()
free2 = [('P', NP - 1), ('P', NP - 2)]
assert len(stay) <= NP - 2
prev = None
for q_, j in enumerate(dorder):
    if q_ >= args.x_nd and j not in stay: continue
    if not args.nomall and args.spt and q_ == args.spt: sp_touch()
    blk = dplace[j] if j in stay else free2[q_ % 2]
    for f in dma4('D', j, blk):
        f()
        if len(g.vm) > args.sppace:
            e(f"s_waitcnt vmcnt({args.sppace})"); g.vm = g.vm[-args.sppace:] if args.sppace else []
    if prev is not None:
        g.need_vm([('D', prev[0])])
        for f in d_reads(*prev): f()
        g.need_lg(g.lg[:])
    prev = (j, blk) if j in inreg else None
if prev is not None:
    g.need_vm([('D', prev[0])])
    for f in d_reads(*prev): f()
    g.need_lg(g.lg[:])
e(f"s_lshl_b32 s{s_a}, s{s_m64}, 2")
e(f"v_mov_b32 v{vMk}, s{s_a}")
spin("L_smk", vMk, sB, 0, sleep=8)
g.stamp(5)
spin("L_spa", vFl, sH, 0, sleep=args.spsleep)
g.stamp(8)
for i in range(HD): h_load(i)
g.lg = []
phase2A("S", stay, dplace, [], [], HD, {0: [tail_setup]})

g.lab("L_B")
g.stamp(9)
g.vm = [('h', i) for i in range(28, 28 + HD)]; g.lg = []
def wr(lam, a):
    r = ACC2 + lam*16 + a*4
    g.ds(f"ds_write_b128 v{vTW}, {vr(r)} offset:{(lam-1)*4096 + a*1024}", ('wr', lam))
def rd(sl, a):
    g.ds(f"ds_read_b128 {vr(ACC2 + 16 + 4*(sl*4+a))}, v{vTR+sl} offset:{a*1024}", ('rd', sl*4+a))
def padd(d, t):
    e(f"v_pk_add_f32 v[{d}:{d+1}], v[{d}:{d+1}], v[{t}:{t+1}]")
    e(f"v_pk_add_f32 v[{d+2}:{d+3}], v[{d+2}:{d+3}], v[{t+2}:{t+3}]")
def sync():
    g.need_lg(g.lg[:]); e("s_barrier")
    for a in range(4):
        for sl in range(3): rd(sl, a)
def sum_(a):
    g.need_lg([('rd', 8 + a)])
    padd(ACC2 + 16 + 4*a, ACC2 + 32 + 4*a); padd(ACC2 + 16 + 4*a, ACC2 + 48 + 4*a)
side = {}
for lam in (1, 2):
    for a in range(4): side.setdefault((28 + 7*lam + 2 + a, 1), []).append(lambda lam=lam, a=a: wr(lam, a))
for a in range(4): side.setdefault((51, a), []).append(lambda a=a: wr(3, a))
side.setdefault((53, 1), []).append(sync)
nxt = 28 + HD
for i in range(28, 56):
    for nt in range(4):
        mf(i, nt)
        if nt == 0 and nxt < 56: h_load(nxt); nxt += 1
        for f in side.get((i, nt), []): f()
g.stamp(10)
for a in range(4): sum_(a)
for a in range(4): padd(ACC2 + 4*a, ACC2 + 16 + 4*a)
for i in range(8):
    e(f"v_cvt_pk_bf16_f32 v{EPI+i}, v{ACC2+2*i}, v{ACC2+2*i+1}")
e("s_nop 1")
e(f"v_permlane16_swap_b32 v{EPI}, v{EPI+2}")
e(f"v_permlane16_swap_b32 v{EPI+1}, v{EPI+3}")
e(f"v_permlane16_swap_b32 v{EPI+4}, v{EPI+6}")
e(f"v_permlane16_swap_b32 v{EPI+5}, v{EPI+7}")
e(f"buffer_store_dwordx4 {vr(EPI)}, v{vTO}, {sr(sO)}, s{s_oadr} offen {args.outflags}")
e(f"buffer_store_dwordx4 {vr(EPI+4)}, v{vTO}, {sr(sO)}, s{s_oadr} offen offset:64 {args.outflags}")
if args.stamps:
    g.stamp(11)
    e("s_waitcnt vmcnt(0)")
    g.stamp(12)
    e("s_waitcnt lgkmcnt(0)")
if args.diag:
    a_, b_, K_, wg_ = map(int, args.diag.split(","))
    if wg_ >= 0: e(f"s_cmp_lg_u32 s2, {wg_}")
    else: e(f"s_cmp_eq_u32 s{s_col}, 0")
    e("s_cbranch_scc1 L_end")
    e(f"s_sub_u32 s46, s{s_st+2*b_}, s{s_st+2*a_}")
    e(f"s_mul_i32 s46, s46, {K_}")
    e(f"s_add_u32 s46, s46, 5000")
    e(f"s_min_u32 s46, s46, 100000")
    g.lab("L_diag")
    e("s_memrealtime s[48:49]")
    e("s_waitcnt lgkmcnt(0)")
    e(f"s_sub_u32 s47, s48, s{s_st}")
    e("s_cmp_lt_u32 s47, s46")
    e("s_cbranch_scc1 L_diag")
elif args.stamps:
    NS = 14
    for i in range(2*NS): e(f"v_mov_b32 v{64+i}, s{s_st+i}")
    e(f"s_lshl_b32 s46, s2, 2")
    e(f"s_add_u32 s46, s46, s{s_w}")
    e(f"s_mul_i32 s46, s46, {NS*8}")
    e(f"s_add_u32 s46, s46, {STAMP_OFF}")
    e("v_mov_b32 v5, 0")
    e("s_mov_b64 exec, 1")
    for i in range(NS//2): e(f"buffer_store_dwordx4 {vr(64+4*i)}, v5, {sr(sH)}, s46 offen offset:{16*i}")
g.lab("L_end")
e("s_endpgm")
g.lab("L_codeend")

hdr = f"""; Fused bilinear GLU: out = ((x Wg) * (x Wu)) Wd   (generated)
; @launch grid=(256,1,1) block=(256,1,1) lds={LDS}
.amdgcn_target "amdgcn-amd-amdhsa--gfx950"
.text
.globl {KN}
.p2align 8
.type {KN},@function
{KN}:"""
tail = f""".section .rodata,"a"
.p2align 6
.amdhsa_kernel {KN}
  .amdhsa_next_free_vgpr 512
  .amdhsa_next_free_sgpr 102
  .amdhsa_accum_offset 256
  .amdhsa_group_segment_fixed_size 0
  .amdhsa_kernarg_size 56
  .amdhsa_user_sgpr_count 2
  .amdhsa_user_sgpr_kernarg_segment_ptr 1
  .amdhsa_system_sgpr_workgroup_id_x 1
.end_amdhsa_kernel"""
print(hdr); print("\n".join(g.L)); print(tail)
```

```python
import sys, argparse

ap = argparse.ArgumentParser()
A = ap.add_argument
A("--stamps", action="store_true"); A("--stepstamps", action="store_true"); A("--cycstamps", action="store_true")
A("--st2", action="store_true"); A("--diag", default="")
A("--la", type=int, default=16)
A("--cap", type=int, default=2); A("--ecap", type=int, default=4)
A("--outflags", default=""); A("--noprefetch", action="store_true"); A("--nomall", action="store_true")
A("--order", default="0101001010001111"); A("--nxk", type=int, default=4)
A("--merge", type=int, default=2); A("--mtm", type=int, default=8)
A("--hdepth", type=int, default=12); A("--pollB", type=int, default=12); A("--chkB_i", type=int, default=20)
A("--mkat", type=int, default=256); A("--spsleep", type=int, default=8); A("--sppace", type=int, default=4)
A("--flagA_at", type=int, default=442); A("--pollA_at", type=int, default=508); A("--chkA_at", type=int, default=512)
A("--hpre", type=int, default=10); A("--dfirst", type=int, default=3); A("--flagB_i", type=int, default=-10)
A("--quiet", type=int, default=0); A("--dstop", type=int, default=496); A("--npoll", type=int, default=3); A("--per", type=int, default=2)
A("--nw", type=int, default=5); A("--nxb", type=int, default=3)
A("--rates", default="7,7,7,8,8,8,8,8,8,8,8,8,7,7,7,7"); A("--pre", type=int, default=4)
A("--minlead", type=int, default=56); A("--dstart", type=int, default=120); A("--dlat", type=int, default=64)
A("--latelead", type=int, default=80); A("--latefrom", type=int, default=13)
A("--spt", type=int, default=0)
A("--early", type=int, default=16)
A("--dorder", default="0,1,7,8,2,3,4,5,6,9,10,11,12,13")
A("--oldmerge", action="store_true")
A("--dlat2", type=int, default=28)
A("--vcost", type=int, default=2)
A("--wgrp", type=int, default=2)
A("--sppf", type=int, default=-1)
A("--sppfd", type=int, default=99)
A("--perm", default="01234567,23016745,45670123,67452301")
A("--pfq", type=int, default=0)
A("--mergeA", type=int, default=0)
A("--s3pf", type=int, default=0)
A("--lf", action="store_true")
A("--l_rates", default=""); A("--l_pre", type=int, default=6); A("--l_minlead", type=int, default=100); A("--l_dstart", type=int, default=100)
A("--maxlead", type=int, default=999)
A("--touch", default="")
A("--tpos", type=int, default=0)
A("--touch2", default="")
A("--x_nd", type=int, default=14)
A("--fine", default="")
A("--rotc", type=int, default=2)
A("--pk", action="store_true")
A("--lfsel", default="c")
A("--swap", type=int, default=0)
A("--x_spdelay", type=int, default=0)
A("--x_spkind", default="")
A("--x_nomk", action="store_true")
A("--spbar", action="store_true")
A("--nt", default="")
A("--hnt", action="store_true")
A("--map", type=int, default=4)
A("--nosl", action="store_true")
A("--denorm", action="store_true")
A("--s3late", default="")
A("--talign", type=int, default=0)
A("--tpad", type=int, default=0)
A("--kdalign", type=int, default=6)
A("--pollmode", default="atomic"); A("--krot", type=int, default=1); A("--nos3", action="store_true")
args = ap.parse_args()
if args.diag: args.stamps = True
assert args.pollA_at > args.flagA_at > args.mkat

KN = "standalone__glu_gated_bilinear__prompt_kernel"
NW = args.nw; NP = 10 - NW; NXB = args.nxb
HFS = NW * 8192; PB = 2 * HFS; PWS = NP * 4096; LDS = PB + 4 * PWS
assert LDS == 163840 and NP >= 3
FBASE = 0x1000000; STAMP_OFF = 0x8000000; FS = 1024
HM, HQ, HS, HP = 458752, 114688, 57344, 8192
LA = args.la; NBUF = 8; NM = 512

sX, sG, sU, sD, sH, sO, sB = 8, 12, 16, 20, 24, 28, 32
s_w, s_mb, s_fb, s_m64, s_n64 = 36, 37, 38, 39, 40
s_xoff, s_woff, s_doff = 41, 42, 43
s_mP, s_mW = 44, 45
s_t0, s_t1, s_t2, s_t3 = 46, 47, 48, 49
s_hst, s_spin, s_hld, s_flag = 50, 51, 52, 53
s_oadr, s_xcd, s_col, s_c = 54, 55, 56, 57
s_a, s_b = 58, 59
s_st = 60
s_rh, s_rd = 88, 95
s_kr = 6
s_mX = 7
wtab = [88, 89, 90, 91, 92, 93, 94, 49]
vX, vW, vD = 1, 5, 9
vRW, vRX, vRD, vH = 13, 15, 17, 21
vL16, vFl, vMk, vT, vT2, vP1, vP2 = 25, 26, 27, 28, 29, 30, 31
vRD2 = 1
vTR, vTW, vTO = 5, 8, 13
WBUF = 32
ACC0, ACC1 = 64, 128
ACC2 = ACC0
HB = 128
EPI = 240
NXK = args.nxk
NREG = 3 + (256 - 32*NXK)//16

class G:
    def __init__(s): s.L = []; s.lg = []; s.vm = []
    def e(s, t): s.L.append("    " + t)
    def lab(s, t): s.L.append(t + ":")
    def ds(s, t, tag):
        if len(s.lg) >= 14:
            s.e("s_waitcnt lgkmcnt(12)"); s.lg = s.lg[-12:]
        s.e(t); s.lg.append(tag)
    def vmem(s, t, tag): s.e(t); s.vm.append(tag); assert len(s.vm) <= 63, "vm overflow"
    def need_lg(s, tags):
        idx = max((i for i, t in enumerate(s.lg) if t in tags), default=-1)
        if idx >= 0:
            s.e(f"s_waitcnt lgkmcnt({len(s.lg)-1-idx})"); s.lg = s.lg[idx+1:]
    def need_vm(s, tags):
        idx = max((i for i, t in enumerate(s.vm) if t in tags), default=-1)
        if idx >= 0:
            s.e(f"s_waitcnt vmcnt({len(s.vm)-1-idx})"); s.vm = s.vm[idx+1:]
    def stamp(s, k, force=False):
        if args.stepstamps and 4 <= k <= 11 and not force: return
        if args.stamps: s.e(("s_memtime" if args.cycstamps else "s_memrealtime") + f" s[{s_st+2*k}:{s_st+2*k+1}]")
g = G(); e = g.e
def vr(b, n=4): return f"v[{b}:{b+n-1}]"
def ar(b, n=4): return f"a[{b}:{b+n-1}]"
def sr(b, n=4): return f"s[{b}:{b+n-1}]"
MF = "v_mfma_f32_16x16x32_bf16"

order = [int(c) for c in args.order]
assert len(order) == 16 and sum(order) == 8
steps = []; cnt = [0, 0]
for s_ in order: steps.append((s_, cnt[s_])); cnt[s_] += 1
first_k = {}
for n, (s_, k) in enumerate(steps): first_k.setdefault(k, n)
last_k = {k: max(n for n, (s_, kk) in enumerate(steps) if kk == k) for k in range(8)}
uses = []
mseq = []
nm = 16 - args.merge
lastA = max(n for n in range(16) if steps[n][0] == 0)
regA = list(range(lastA + 1 - args.mergeA, lastA + 1)); regB = list(range(nm, 16))
assert all(steps[n][0] == 0 for n in regA) and all(steps[n][0] == 1 for n in regB) and args.merge <= 2 and args.mergeA <= 2
def accr(acc, c, mt): return acc + (c*4 + mt)*4
wbuf = {}; wneed = {}; region_of = {}; ringprev = {}; ring = []
n = 0
while n < 16:
    reg = regA if regA and n == regA[0] else (regB if regB and n == regB[0] else None)
    if reg:
        b0 = len(uses)
        for n_ in reg:
            for T in range(2):
                for c in range(4):
                    q_ = len(uses) - b0; i_ = len(uses); uses.append((n_, T, c)); region_of[i_] = (b0, 8*len(reg))
                    if reg is regB: wbuf[i_] = ("v", accr(ACC0, q_ % 4, q_ // 4)); wneed[i_] = q_ // 4
                    else: wbuf[i_] = ("a", 192 + 4*q_)
        mseq += [(i, mt) for mt in range(4) for i in range(b0, len(uses))]
        n = reg[-1] + 1
    else:
        for T in range(2):
            for c in range(4):
                i_ = len(uses); uses.append((n, T, c)); mseq += [(i_, mt) for mt in range(4)]
                wbuf[i_] = ("v", WBUF + (len(ring) % NBUF)*4)
                if len(ring) >= NBUF: ringprev[i_] = ring[-NBUF]
                ring.append(i_)
        n += 1
assert len(mseq) == NM
NU = len(uses)
first_use = {}
for j_, (i_, mt_) in enumerate(mseq): first_use.setdefault(i_, j_)
last_use = {i_: j_ for j_, (i_, mt_) in enumerate(mseq)}
rsched = {}; rpos = {}
for i_ in range(NU):
    p_ = first_use[i_] - LA
    if i_ in region_of:
        b0, ln = region_of[i_]
        p_ = first_use[b0] - LA - args.early + ((i_ - b0)*(ln + args.early))//ln
    if i_ in ringprev: p_ = max(p_, last_use[ringprev[i_]] + 1)
    p2 = p_ + (2 if i_ not in region_of else 1)
    assert p2 <= first_use[i_] - 5, ("w read late", i_)
    rsched.setdefault(p_, []).append((i_, 0)); rsched.setdefault(p2, []).append((i_, 1)); rpos[i_] = p_
endA = max(last_use[i] for i in range(NU) if uses[i][0] == lastA)
xlast = {k: max(j_ for j_, (i, mt) in enumerate(mseq) if steps[uses[i][0]][1] == k) for k in range(8)}
first_u = {n: min(i for i, u in enumerate(uses) if u[0] == n) for n in range(16)}
last_u = {n: max(i for i, u in enumerate(uses) if u[0] == n) for n in range(16)}
bpos = {n: rpos[first_u[n]] - 1 for n in range(16)}
START = -LA
def done_at(s_, mt): return max(j for j, (i, m_) in enumerate(mseq) if m_ == mt and steps[uses[i][0]][0] == s_)
busy = sorted({steps[uses[i][0]][1] % NXK for j_, (i, mt) in enumerate(mseq) if j_ >= min(args.chkA_at, NM - 1) - 4})
slots_order = [s_ for s_ in range(NXK) if s_ not in busy] + busy
xregs = [32*s_ + 4*q for s_ in slots_order for q in range(8)]
hreg = xregs[:28]
NFREE = 8*(NXK - len(busy))
spare16 = xregs[28:]
dorder = [int(x) for x in args.dorder.split(",")]
assert sorted(dorder) == list(range(14))
ahomes = [("a", 32*NXK + 16*j) for j in range(NREG - 3)]
phomes = []
for j in range(len(spare16)//4):
    grp = spare16[4*j:4*j+4]
    assert grp == [grp[0] + 4*q for q in range(4)]
    phomes.append(("a", grp[0]))
homes = {j: ("v", 192 + 16*j) for j in range(3)}
early_ok = {0, 1, 2}
reuse = {}; rq = []
for j in dorder:
    if j < 3: continue
    if ahomes: homes[j] = ahomes.pop(0); early_ok.add(j)
    elif phomes: homes[j] = phomes.pop(0)
    else: rq.append(j)
for q_, j in enumerate(sorted(rq)):
    assert j >= 7 and 3 + q_ in homes
    reuse[j] = 3 + q_; homes[j] = homes[3 + q_]
assert args.hpre <= NFREE or args.chkA_at >= NM

g.stamp(0)
for b_, o_ in ((sX, 0), (sG, 8), (sU, 16), (sD, 24), (sO, 32), (sB, 40), (sH, 48)):
    e(f"s_load_dwordx2 s[{b_}:{b_+1}], s[0:1], {o_}")
e("s_cmp_ge_u32 s2, 256")
e("s_cbranch_scc1 L_end")
if not args.noprefetch and args.pfq == 3:
    assert not args.lf
    e("s_getpc_b64 s[4:5]")
    e("s_and_b32 s4, s4, 0xffffff00")
    e("v_lshlrev_b32 v30, 7, v0")
    e("v_mov_b32 v29, s5")
    e("v_add_co_u32 v28, vcc, s4, v30")
    e("v_addc_co_u32 v29, vcc, 0, v29, vcc")
    e(f"v_cmp_gt_u32 vcc, L_codeend-{KN}, v30")
    e("s_and_saveexec_b64 s[4:5], vcc")
    e("s_cbranch_execz L_nopf")
    e("global_load_dword v31, v[28:29], off")
    g.lab("L_nopf")
    e("s_mov_b64 exec, -1")
elif not args.noprefetch:
    e("s_getpc_b64 s[4:5]")
    e("s_and_b32 s4, s4, 0xffffff00")
    e(f"s_mov_b32 s6, L_codeend-{KN}")
    e("s_mov_b32 s7, 0x20000")
    if args.pfq == 1:
        e("s_bfe_u32 s3, s2, 0x20003")
        e("s_lshl_b32 s3, s3, 7")
        e("v_lshrrev_b32 v30, 6, v0")
        e("v_and_b32 v29, 15, v0")
        e("v_lshl_add_u32 v30, v30, 4, v29")
        e("v_lshlrev_b32 v30, 9, v30")
        e("s_mov_b64 exec, 0xffff")
        g.vmem("buffer_load_dword v31, v30, s[4:7], s3 offen", "pf")
        e("s_mov_b64 exec, -1")
    elif args.pfq == 2:
        e("s_cmp_lt_u32 s2, 32")
        e("s_cselect_b32 s6, s6, 0")
        e("v_lshlrev_b32 v30, 7, v0")
        g.vmem("buffer_load_dword v31, v30, s[4:7], 0 offen", "pf")
    else:
        e("v_lshlrev_b32 v30, 7, v0")
        g.vmem("buffer_load_dword v31, v30, s[4:7], 0 offen", "pf")
        if args.lf:
            e("v_add_u32 v30, 0x8000, v30")
            g.vmem("buffer_load_dword v31, v30, s[4:7], 0 offen", "pf")
e("v_lshrrev_b32 v30, 6, v0")
e("v_and_b32 v0, 63, v0")
e(f"v_readfirstlane_b32 s{s_w}, v30")
e(f"s_and_b32 s{s_xcd}, s2, 7")
e(f"s_bfe_u32 s{s_c}, s2, 0x20003")
e(f"s_lshr_b32 s{s_col}, s2, 5")
if args.map == 2:
    e(f"s_lshl_b32 s{s_mb}, s{s_xcd}, 1")
    e(f"s_and_b32 s{s_fb}, s{s_c}, 1")
    e(f"s_add_u32 s{s_mb}, s{s_mb}, s{s_fb}")
    e(f"s_lshr_b32 s{s_fb}, s{s_c}, 1")
else:
    e(f"s_lshr_b32 s{s_mb}, s{s_xcd}, 1")
    e(f"s_lshl_b32 s{s_mb}, s{s_mb}, 2")
    e(f"s_add_u32 s{s_mb}, s{s_mb}, s{s_c}")
    e(f"s_and_b32 s{s_fb}, s{s_xcd}, 1")
e(f"s_mul_i32 s{s_fb}, s{s_fb}, 7")
e(f"s_add_u32 s{s_fb}, s{s_fb}, s{s_col}")
e(f"s_sub_u32 s{s_fb}, s{s_fb}, 1")
e("v_lshrrev_b32 v240, 3, v0")
e("v_and_b32 v241, 7, v0")
e("v_lshrrev_b32 v242, 4, v0")
e(f"s_xor_b32 s{s_b}, s{s_w}, s{s_col}")
e(f"s_and_b32 s{s_b}, s{s_b}, 3")
e(f"s_mul_i32 s{s_mX}, s{s_b}, {PWS}")
e(f"s_add_u32 s{s_mX}, s{s_mX}, {PB}")
e(f"s_lshl_b32 s{s_a}, s{s_b}, 15")
e("v_xor_b32 v243, v241, v242")
e("v_lshlrev_b32 v243, 4, v243")
e(f"v_lshl_add_u32 v{vX}, v240, 10, v243")
e(f"v_add_u32 v{vX}, s{s_a}, v{vX}")
e(f"v_xor_b32 v{vX+1}, 64, v{vX}")
e(f"v_add_u32 v{vX+1}, {7*1024}, v{vX+1}")
e(f"v_add_u32 v{vX+2}, {14*1024}, v{vX}")
e(f"v_add_u32 v{vX+3}, {14*1024}, v{vX+1}")
e(f"s_lshr_b32 s{s_a}, s{s_w}, 1")
e(f"s_lshl_b32 s{s_a}, s{s_a}, 5")
e(f"s_and_b32 s{s_b}, s{s_w}, 1")
e(f"s_lshl_b32 s{s_t0}, s{s_b}, 3")
e(f"s_add_u32 s{s_a}, s{s_a}, s{s_t0}")
e(f"s_mul_i32 s{s_a}, s{s_a}, 3584")
e(f"s_lshl_b32 s{s_b}, s{s_b}, 6")
e(f"v_mul_u32_u24 v{vW}, 3584, v240")
e("v_and_b32 v244, 1, v242")
e("v_lshlrev_b32 v245, 4, v241")
e("v_lshlrev_b32 v246, 5, v244")
e("v_xor_b32 v246, v245, v246")
e(f"v_xor_b32 v246, s{s_b}, v246")
if args.swap:
    if args.swap == 1:
        e(f"s_lshr_b32 s{s_t0}, s{s_fb}, 1")
        e(f"s_and_b32 s{s_t0}, s{s_t0}, s{s_fb}")
    else: e(f"s_mov_b32 s{s_t0}, s{s_fb}")
    e(f"s_and_b32 s{s_t0}, s{s_t0}, 1")
    e(f"s_lshl_b32 s{s_t0}, s{s_t0}, 7")
    e(f"s_add_u32 s{s_a}, s{s_a}, s{s_t0}")
e(f"v_add3_u32 v{vW}, v{vW}, v246, s{s_a}")
e(f"v_add_u32 v{vW+2}, {16*3584-2048}, v{vW}")
e(f"s_and_b32 s{s_b}, s{s_w}, 1")
e(f"s_mul_i32 s{s_mW}, s{s_b}, {HFS}")
e(f"s_lshr_b32 s{s_a}, s{s_w}, 1")
e(f"s_lshl_b32 s{s_a}, s{s_a}, 12")
e(f"s_add_u32 s{s_mW}, s{s_mW}, s{s_a}")
perms = [[int(c) for c in p] for p in args.perm.split(",")]
assert all(sorted(p) == list(range(8)) for p in perms) and len(perms) in (4, 8)
pk = [sum(v << (4*i) for i, v in enumerate(p)) for p in perms]
if len(perms) == 4:
    e(f"s_lshr_b32 s{s_a}, s{s_xcd}, 1")
    e(f"s_and_b32 s{s_b}, s{s_xcd}, 1")
    e(f"s_lshl_b32 s{s_b}, s{s_b}, 1")
    e(f"s_xor_b32 s{s_a}, s{s_a}, s{s_b}")
else:
    e(f"s_mov_b32 s{s_a}, s{s_xcd}")
e(f"s_mov_b32 s{s_kr}, {pk[0]}")
for q_ in range(1, len(perms)):
    e(f"s_cmp_eq_u32 s{s_a}, {q_}")
    e(f"s_cselect_b32 s{s_kr}, {pk[q_]}, s{s_kr}")
e(f"s_lshl_b32 s{s_xoff}, s{s_mb}, 17")
e(f"s_lshl_b32 s{s_woff}, s{s_fb}, 8")
e(f"s_and_b32 s{s_t2}, s{s_kr}, 7")
e(f"s_mul_i32 s{s_t2}, s{s_t2}, {64*3584}")
e(f"s_add_u32 s{wtab[0]}, s{s_t2}, s{s_woff}")
for b, n in ((sX, 2048*1024), (sG, 512*3584), (sU, 512*3584+1024)):
    e(f"s_mov_b32 s{b+2}, {n}")
    e(f"s_mov_b32 s{b+3}, 0x20000")
e(f"s_cmp_eq_u32 s{s_col}, 0")
e("s_cbranch_scc1 L_spare")
def after_kernarg():
    e("s_waitcnt lgkmcnt(0)")
    e(f"s_sub_u32 s{sU}, s{sU}, 1024")
    e(f"s_subb_u32 s{sU+1}, s{sU+1}, 0")
def setup2():
    if args.stamps:
        for i in range(2, 14): e(f"s_mov_b64 s[{s_st+2*i}:{s_st+2*i+1}], 0")
    e(f"s_lshl_b32 s{s_m64}, s{s_xcd}, 2")
    e(f"s_add_u32 s{s_m64}, s{s_m64}, s{s_c}")
    e(f"s_xor_b32 s{s_n64}, s{s_col}, 3")
    e(f"v_xor_b32 v{vW+1}, 128, v{vW}")
    e(f"v_xor_b32 v{vW+3}, 128, v{vW+2}")
    e(f"s_lshr_b32 s{s_a}, s{s_w}, 1")
    e(f"s_lshl_b32 s{s_a}, s{s_a}, 17")
    e(f"s_and_b32 s{s_b}, s{s_w}, 1")
    e(f"s_lshl_b32 s{s_b}, s{s_b}, 15")
    e(f"s_add_u32 s{s_a}, s{s_a}, s{s_b}")
    e("v_lshlrev_b32 v246, 5, v242")
    e("v_xor_b32 v246, v245, v246")
    e(f"v_lshl_add_u32 v{vD}, v240, 10, v246")
    e(f"v_add_u32 v{vD}, s{s_a}, v{vD}")
    for i in range(1, 4): e(f"v_add_u32 v{vD+i}, {7*1024*i}, v{vD}")
    e(f"s_mul_i32 s{s_mP}, s{s_w}, {PWS}")
    e(f"s_add_u32 s{s_mP}, s{s_mP}, {PB}")
    e(f"s_lshl_b32 s{s_doff}, s{s_n64}, 7")

    for b, n in ((sD, 1792*1024), (sH, 0x10000000), (sO, 2048*1024), (sB, 256)):
        e(f"s_mov_b32 s{b+2}, {n}")
        e(f"s_mov_b32 s{b+3}, 0x20000")
def wtab_setup():
    for k in range(1, 8):
        e(f"s_bfe_u32 s{s_a}, s{s_kr}, {0x30000 + 4*k}")
        e(f"s_mul_i32 s{s_a}, s{s_a}, {64*3584}")
        e(f"s_add_u32 s{wtab[k]}, s{s_a}, s{s_woff}")
def rh_setup():
    for jj in range(7):
        e(f"s_lshr_b32 s{s_a}, s{s_rd+jj}, 18")
        e(f"s_lshl_b32 s{s_a}, s{s_a}, 13")
        e(f"s_add_u32 s{s_rh+jj}, s{s_a}, s{s_hld}")

def dma_item(kind, n, where):
    m0 = (s_mX if kind == 'X' else s_mP, where[1] * 4096) if where[0] == 'P' else (s_mW, where[1] * 8192)
    ops = []
    sc = [f"s_add_u32 m0, s{m0[0]}, {m0[1]}"]
    so = s_t0
    if kind == 'X':
        srd = [sX]*4; vb = [vX, vX+1, vX+2, vX+3]; sc = [f"s_bfe_u32 s{s_t0}, s{s_kr}, {0x30000 + 4*n}", f"s_lshl_b32 s{s_t0}, s{s_t0}, 7"] + sc + [f"s_add_u32 s{s_t0}, s{s_t0}, s{s_xoff}"]
    elif kind == 'W':
        o_ = steps[n][0]; srd = [sG, sU, sG, sU]; vb = [vW+o_, vW+o_, vW+2+o_, vW+2+o_]; so = wtab[steps[n][1]]
    else:
        srd = [sD]*4; vb = [vD, vD+1, vD+2, vD+3]
        if n < 7: so = s_rd + n
        else: sc.append(f"s_xor_b32 s{s_t0}, s{s_rd + n % 7}, 65536")
    for t in sc: ops.append(('s', lambda t=t: e(t)))
    for i in range(4):
        off = f" offset:{1024*i}" if i else ""
        def ld(i=i, off=off):
            if g.L[-1].strip().startswith("s_add_u32 m0"): e("s_nop 0")
            nt_ = " nt" if f"{kind}{n}" in args.nt.split(",") else ""
            g.vmem(f"buffer_load_dwordx4 v{vb[i]}, {sr(srd[i])}, s{so} offen{off}{nt_} lds", (kind, n))
        ops.append(('v', ld))
    return ops
def dma4(kind, n, where):
    ops = dma_item(kind, n, where); pre = [f for k, f in ops if k == 's']; ld = [f for k, f in ops if k == 'v']
    return [lambda: ([f() for f in pre], ld[0]())] + ld[1:]

def h_pattern(vdst, s_idx):
    e(f"v_lshlrev_b32 v{vdst}, 4, v0")
    if args.nos3: return
    e(f"s_and_b32 s{s_idx}, s{s_idx}, 3")
    e(f"s_cmp_eq_u32 s{s_idx}, 3")
    e(f"s_cselect_b32 s{s_idx}, 4, s{s_idx}")
    e(f"s_lshl_b32 s{s_idx}, s{s_idx}, 7")
    e(f"s_add_u32 s{s_idx}, s{s_idx}, {4096 - 384}")
    e("s_mov_b32 exec_lo, 0xff000000")
    e("s_mov_b32 exec_hi, 0")
    e(f"v_add_u32 v{vdst}, s{s_idx}, v{vdst}")
    e("s_mov_b64 exec, -1")

def late_addr_setup(spare_=False):
    e("v_lshrrev_b32 v240, 5, v0")
    e("v_bfe_u32 v241, v0, 4, 1")
    e("v_bfe_u32 v242, v0, 2, 2")
    e("v_and_b32 v243, 3, v0")
    e("v_bfe_u32 v244, v0, 3, 1")
    e("v_lshlrev_b32 v243, 3, v243")
    e("v_lshl_add_u32 v243, v242, 7, v243")
    e("v_lshl_or_b32 v245, v241, 1, v244")
    e("v_lshl_add_u32 v243, v245, 5, v243")
    e(f"v_mul_u32_u24 v{vRW}, {HFS}, v241")
    e(f"v_lshl_add_u32 v{vRW}, v240, 11, v{vRW}")
    e(f"v_add_u32 v{vRW}, v{vRW}, v243")
    e(f"s_and_b32 s{s_a}, s{s_w}, 1")
    e(f"s_lshl_b32 s{s_a}, s{s_a}, 6")
    e(f"v_xor_b32 v{vRW}, s{s_a}, v{vRW}")
    e(f"v_xor_b32 v{vRW+1}, 32, v{vRW}")
    e("v_lshrrev_b32 v246, 4, v0")
    e("v_lshl_add_u32 v245, v246, 9, v243")
    e(f"v_add_u32 v{vRD}, s{s_mP}, v245")
    for nt in range(1, 4): e(f"v_xor_b32 v{vRD+nt}, {32*nt}, v{vRD}")
    e("v_and_b32 v245, 15, v0")
    e("v_bfe_u32 v247, v0, 1, 3")
    e("v_xor_b32 v247, v247, v246")
    e("v_lshlrev_b32 v247, 4, v247")
    e("v_lshl_add_u32 v245, v245, 7, v247")
    e(f"s_lshr_b32 s{s_a}, s{s_w}, 1")
    e(f"s_mul_i32 s{s_a}, s{s_a}, {2*PWS}")
    e(f"s_add_u32 s{s_a}, s{s_a}, {PB}")
    e(f"v_add_u32 v{vRX}, s{s_a}, v245")
    e(f"v_xor_b32 v{vRX+1}, 64, v{vRX}")
    e(f"s_add_u32 s{s_a}, s{s_m64}, s{s_w}")
    h_pattern(vH, s_a)
    e(f"s_lshl_b32 s{s_a}, s{s_w}, 10")
    e(f"v_add_u32 v{vH}, s{s_a}, v{vH}")
    for lam in range(1, 4): e(f"v_xor_b32 v{vH+lam}, {1024*lam}, v{vH}")
    e(f"s_mul_i32 s{s_hld}, s{s_m64}, {HM}")
    e(f"s_mul_i32 s{s_a}, s{s_w}, {HQ}")
    e(f"s_add_u32 s{s_hld}, s{s_hld}, s{s_a}")
    e(f"v_add_u32 v{vFl}, 5, v0")
    e(f"v_lshrrev_b32 v{vFl}, 3, v{vFl}")
    e(f"v_add_u32 v{vFl}, v{vFl}, v0")
    e(f"v_min_u32 v{vFl}, 7, v{vFl}")
    e(f"v_lshlrev_b32 v{vFl}, 7, v{vFl}")
    e(f"s_lshl_b32 s{s_a}, s{s_m64}, 13")
    e(f"s_lshl_b32 s{s_b}, s{s_w}, 11")
    e(f"s_add_u32 s{s_a}, s{s_a}, s{s_b}")
    e(f"s_add_u32 s{s_a}, s{s_a}, {FBASE}")
    e(f"v_add_u32 v{vFl}, s{s_a}, v{vFl}")
    if args.rotc == 4:
        e(f"s_and_b32 s{s_a}, s{s_c}, 1")
        e(f"s_lshl_b32 s{s_a}, s{s_a}, 2")
    else:
        e(f"s_mul_i32 s{s_a}, s{s_c}, {args.rotc}")
    if spare_: e(f"s_lshl_b32 s{s_a}, s{s_c}, 1")
    e(f"s_add_u32 s{s_a}, s{s_a}, s{s_col}")
    e(f"s_sub_u32 s{s_b}, s{s_a}, 7")
    e(f"s_cmp_ge_u32 s{s_a}, 7")
    e(f"s_cselect_b32 s{s_a}, s{s_b}, s{s_a}")
    for jj in range(7):
        e(f"s_lshl_b32 s{s_b}, s{s_a}, 18")
        e(f"s_add_u32 s{s_rd+jj}, s{s_b}, s{s_doff}")
        if args.swap:
            e(f"s_lshr_b32 s{s_b}, s{s_w}, 1")
            if args.swap == 1: e(f"s_and_b32 s{s_b}, s{s_b}, s{s_a}")
            e(f"s_lshl_b32 s{s_b}, s{s_b}, 16")
            e(f"s_add_u32 s{s_rd+jj}, s{s_rd+jj}, s{s_b}")
        if jj < 6:
            e(f"s_add_u32 s{s_a}, s{s_a}, 1")
            e(f"s_cmp_eq_u32 s{s_a}, 7")
            e(f"s_cselect_b32 s{s_a}, 0, s{s_a}")
    e(f"s_lshl_b32 s{s_a}, s{s_m64}, 16")
    e(f"s_lshl_b32 s{s_b}, s{s_w}, 14")
    e(f"s_add_u32 s{s_a}, s{s_a}, s{s_b}")
    e(f"s_add_u32 s{s_oadr}, s{s_a}, s{s_doff}")

def rd2_setup():
    e(f"s_sub_u32 s{s_a}, s{s_mW}, s{s_mP}")
    for nt in range(4): e(f"v_add_u32 v{vRD2+nt}, s{s_a}, v{vRD+nt}")

def d_reads(item, where):
    dfile, dstbase = homes[item]
    ops = []
    for nt in range(4):
        for p in range(2):
            def f(nt=nt, p=p):
                if where[0] == 'P': va = vRD + nt; off = where[1]*4096
                else: va = vRD2 + nt; off = where[1]*8192
                off += p*2048
                r = dstbase + nt*4 + 2*p
                g.ds(f"ds_read_b64_tr_b16 {dfile}[{r}:{r+1}], v{va} offset:{off}", ('Dr', item))
            ops.append(f)
    return ops

def pmask(vaddr): return 3 if vaddr == vMk else 0x7f
def poll(vdst, vaddr, srd, off, tag):
    o = f" offset:{off}" if off else ""
    e(f"s_mov_b64 exec, {pmask(vaddr)}")
    if args.pollmode == "atomic" and vaddr != vMk:
        e(f"v_mov_b32 v{vdst}, 0")
        g.vmem(f"buffer_atomic_add v{vdst}, v{vaddr}, {sr(srd)}, 0 offen{o} sc0 sc1", tag)
    else:
        g.vmem(f"buffer_load_dword v{vdst}, v{vaddr}, {sr(srd)}, 0 offen{o} sc1", tag)
    e("s_mov_b64 exec, -1")
def test(vres, vaddr, target):
    e(f"v_cmp_eq_u32 vcc, 0, v{vres}")
    e(f"s_and_b32 s{s_t1}, vcc_lo, {pmask(vaddr)}")
    e(f"s_cbranch_scc0 {target}")
def spin(label, vaddr, srd, off, sleep=0):
    e(f"s_mov_b32 s{s_spin}, 0x40000")
    g.lab(label)
    poll(vT, vaddr, srd, off, 'sp')
    e("s_waitcnt vmcnt(0)")
    test(vT, vaddr, f"{label}_ok")
    if sleep: e(f"s_sleep {sleep}")
    e(f"s_sub_u32 s{s_spin}, s{s_spin}, 1")
    e(f"s_cmp_lg_u32 s{s_spin}, 0")
    e(f"s_cbranch_scc1 {label}")
    g.lab(label + "_ok")
    g.vm = []
def check_or_spin(label, vres, tag, vaddr, srd, off, pre=None):
    g.need_vm([tag])
    test(vres, vaddr, f"{label}_ok")
    save = list(g.vm)
    if pre: pre()
    spin(label, vaddr, srd, off)
    g.vm = save

def epi_ops(acc, s, mt, packed):
    ops = []; d = EPI + 4*mt
    for ql in range(2):
        a = accr(acc, 2*ql, mt); b = accr(acc, 2*ql + 1, mt)
        if packed:
            for i in range(2): ops.append(lambda a=a, b=b, i=i: e(f"v_pk_mul_f32 v[{a+2*i}:{a+2*i+1}], v[{a+2*i}:{a+2*i+1}], v[{b+2*i}:{b+2*i+1}]"))
        else:
            for i in range(4): ops.append(lambda a=a, b=b, i=i: e(f"v_mul_f32 v{a+i}, v{a+i}, v{b+i}"))
    for ql in range(2):
        a = accr(acc, 2*ql, mt)
        for i in range(2): ops.append(lambda a=a, i=i, ql=ql: e(f"v_cvt_pk_bf16_f32 v{d+2*ql+i}, v{a+2*i}, v{a+2*i+1}"))
    if mt == 0 and s == 1: ops.append(lambda: e(f"s_add_u32 s{s_hst}, s{s_hst}, {HS}"))
    off = f" offset:{1024*mt}" if mt else ""
    ops.append(lambda: g.vmem(f"buffer_store_dwordx4 {vr(d)}, v{vL16}, {sr(sH)}, s{s_hst} offen{off} sc1", ('hs', s)))
    return ops

def flag_store(s):
    e(f"v_mov_b32 v{vT2}, s{s_flag}")
    e(f"v_mov_b32 v{vT}, 1")
    e("s_mov_b64 exec, 1")
    op = "buffer_atomic_or" if args.pollmode == "atomic" else "buffer_store_dword"
    g.vmem(f"{op} v{vT}, v{vT2}, {sr(sH)}, 0 offen offset:{FS*s} sc1", ('fl', s))
    e("s_mov_b64 exec, -1")

def hidx(i):
    s, r_ = divmod(i, 28)
    if s == 0: jj, lam = divmod(r_, 4)
    else: jj, lam = r_ % 7, (r_ // 7 + 1) % 4
    return s, jj, lam, r_
def h_load(i):
    s, jj, lam, r_ = hidx(i)
    dst = ar(hreg[r_]) if s == 0 else vr(HB + r_*4)
    if i == 28:
        for q in range(7): e(f"s_add_u32 s{s_rh+q}, s{s_rh+q}, {HS}")
    g.vmem(f"buffer_load_dwordx4 {dst}, v{vH+lam}, {sr(sH)}, s{s_rh+jj} offen sc1", ('h', i))
def mf(i, nt):
    s, jj, lam, r_ = hidx(i)
    g.need_vm([('h', i)])
    g.need_lg([('Dr', s*7 + jj)])
    f_, base = homes[s*7 + jj]
    r = base + nt*4
    acc = ACC2 + (lam*4 + nt)*4
    c = "0" if i < 4 else vr(acc)
    h = ar(hreg[r_]) if s == 0 else vr(HB + r_*4)
    e(f"{MF} {vr(acc)}, {f_}[{r}:{r+3}], {h}, {c}")
def tail_setup():
    e(f"v_lshlrev_b32 v{vL16}, 4, v0")
    for lam in range(1, 4):
        e(f"s_xor_b32 s{s_a}, s{s_w}, {lam}")
        e(f"s_mul_i32 s{s_a}, s{s_a}, {PWS}")
        e(f"s_add_u32 s{s_a}, s{s_a}, {PB + (lam-1)*4096}")
        e(f"v_add_u32 v{vTR+lam-1}, s{s_a}, v{vL16}")
    e(f"v_add_u32 v{vTW}, s{s_mP}, v{vL16}")
    e(f"v_and_b32 v{vTO}, 15, v0")
    e(f"v_lshlrev_b32 v{vTO}, 10, v{vTO}")
    e(f"v_bfe_u32 v{vTO+1}, v0, 4, 1")
    e(f"v_lshl_add_u32 v{vTO}, v{vTO+1}, 5, v{vTO}")
    e(f"v_lshrrev_b32 v{vTO+1}, 5, v0")
    e(f"v_lshl_add_u32 v{vTO}, v{vTO+1}, 4, v{vTO}")
HD = args.hdepth

mand = []
for n in range(16):
    for k in range(8):
        if first_k[k] == n: mand.append((n, 'X', k, ('P', k % NXB)))
    mand.append((n, 'W', n, ('W', n % NW)))
ops0 = dma_item(*mand[0][1:])
for k_, f in ops0:
    if k_ == 's': f()
after_kernarg()
g.stamp(1)
for k_, f in ops0:
    if k_ == 'v': f()
for f in dma4(*mand[1][1:]): f()
setup2()
def touch_setup(k0):
    e(f"s_lshl_b32 s{s_a}, s{s_mb}, 2")
    e(f"s_add_u32 s{s_a}, s{s_a}, s{s_w}")
    e(f"s_add_u32 s{s_a}, s{s_a}, {64*k0}")
    e(f"s_mul_i32 s{s_a}, s{s_a}, 3584")
    e(f"s_add_u32 s{s_a}, s{s_a}, s{s_woff}")
    e("v_lshrrev_b32 v242, 3, v0")
    e("v_and_b32 v243, 7, v0")
    e("v_and_b32 v240, 1, v0")
    e("v_lshlrev_b32 v240, 7, v240")
    e(f"v_mul_u32_u24 v244, {64*3584}, v242")
    e(f"v_add3_u32 v240, v240, v244, s{s_a}")
    e(f"s_lshl_b32 s{s_a}, s{s_fb}, 2")
    e(f"s_add_u32 s{s_a}, s{s_a}, s{s_w}")
    e(f"s_mul_i32 s{s_a}, s{s_a}, 3")
    e(f"s_sub_u32 s{s_a}, s{s_a}, 4")
    e("v_max_u32 v241, 4, v243")
    e(f"v_add_u32 v241, s{s_a}, v241")
    e("v_min_u32 v241, 127, v241")
    e("v_lshlrev_b32 v241, 10, v241")
    e("v_lshl_add_u32 v241, v242, 7, v241")
    e(f"s_add_u32 s{s_a}, s{s_xoff}, {128*k0}")
    e(f"v_add_u32 v241, s{s_a}, v241")
def touch(n, n0=0):
    m = sum(1 << (8*j_) for j_ in range(n0, n))
    for bits, srd, v_, off in ((3, sG, 240, 0), (12, sU, 240, 1024), (0x70, sX, 241, 0)):
        mk = m * bits
        e(f"s_mov_b32 exec_lo, {mk & 0xffffffff}")
        e(f"s_mov_b32 exec_hi, {mk >> 32}")
        g.vmem(f"buffer_load_dword v250, v{v_+8}, {sr(srd)}, 0 offen offset:{off}", "pf")
    e("s_mov_b64 exec, -1")
if args.touch:
    tk0, tn = map(int, args.touch.split(","))
    touch_setup(tk0)
    e("v_mov_b32 v248, v240"); e("v_mov_b32 v249, v241")
    if args.tpos == 0: touch(tn)
wtab_setup()
late_addr_setup()
e(f"s_lshr_b32 s{s_a}, s{s_w}, 1")
e(f"s_lshl_b32 s{s_b}, s{s_mb}, 1")
e(f"s_add_u32 s{s_a}, s{s_a}, s{s_b}")
e(f"s_and_b32 s{s_b}, s{s_fb}, 1")
e(f"s_lshl_b32 s{s_b}, s{s_b}, 1")
e(f"s_and_b32 s{s_t1}, s{s_w}, 1")
e(f"s_add_u32 s{s_b}, s{s_b}, s{s_t1}")
e(f"s_mul_i32 s{s_hst}, s{s_a}, {HM}")
e(f"s_mul_i32 s{s_t1}, s{s_b}, {HQ}")
e(f"s_add_u32 s{s_hst}, s{s_hst}, s{s_t1}")
e(f"s_lshr_b32 s{s_t2}, s{s_fb}, 1")
e(f"s_lshl_b32 s{s_t1}, s{s_t2}, 13")
e(f"s_add_u32 s{s_hst}, s{s_hst}, s{s_t1}")
e(f"s_add_u32 s{s_t1}, s{s_a}, s{s_b}")
h_pattern(vL16, s_t1)
e(f"s_cmp_ge_u32 s{s_t2}, 3")
e(f"s_addc_u32 s{s_t2}, s{s_t2}, 0")
e(f"s_lshl_b32 s{s_t2}, s{s_t2}, 7")
e(f"s_lshl_b32 s{s_b}, s{s_b}, 11")
e(f"s_add_u32 s{s_b}, s{s_b}, s{s_t2}")
e(f"s_lshl_b32 s{s_t1}, s{s_a}, 13")
e(f"s_add_u32 s{s_b}, s{s_b}, s{s_t1}")
e(f"s_add_u32 s{s_flag}, s{s_b}, {FBASE}")
e(f"s_lshl_b32 s{s_a}, s{s_a}, 2")
e(f"s_lshl_b32 s{s_b}, s{s_m64}, 2")
e(f"v_mov_b32 v{vMk}, s{s_a}")
e(f"v_mov_b32 v240, s{s_b}")
e("v_cmp_lt_u32 vcc, 0, v0")
e("s_nop 1")
e(f"v_cndmask_b32 v{vMk}, v{vMk}, v240, vcc")

def phase2A(R, stay, dplace, lateops, late, nh, extra):
    dmove = {}; slot_ = 0
    plan = {}; q = [('h', i) for i in range(nh, 28)]; lo = list(lateops); it = args.quiet if R != "S" else 0
    late_done = {}
    def takeD(c):
        c.append(('d', lo.pop(0)))
        if len(lo) % 4 == 0: late_done[late[len(late) - 1 - len(lo)//4]] = it
    while q or lo:
        c = []
        behind = q and q[0][1] - it < 8
        if q: c.append(q.pop(0))
        while len(c) < args.per and (q or lo):
            if q and (behind or not lo):
                if not behind and not lo and it >= 4 + args.quiet: break
                c.append(q.pop(0))
            else: takeD(c)
        for o in c:
            if o[0] == 'h': assert o[1] > it, ("h load late", o, it)
        plan[it] = c; it += 1
    for j in stay:
        p_ = slot_ if j not in reuse else max(4*reuse[j] + 3 + 2, slot_)
        if j in late_done: p_ = max(p_, late_done[j] + 8)
        p_ = min(p_, 26)
        dmove.setdefault(p_, []).append(j); slot_ = p_ + 2
        assert p_ + 1 < min(i for i in range(56) if hidx(i)[0]*7 + hidx(i)[1] == j), ("D move too late", j, p_)
    CB = args.chkB_i
    assert it <= CB, ("issue plan too long", it)
    pend = []
    def vm_(o):
        if o[0] == 'h': h_load(o[1])
        else: o[1]()
    def body(i, loads):
        for j in dmove.get(i, []):
            ops = d_reads(j, dplace[j])
            pend.append(lambda j=j, f=ops[0]: (g.need_vm([('D', j)]), f()))
            pend.extend(ops[1:])
        side = [lambda o=o: vm_(o) for o in loads] + list(extra.get(i, []))
        for nt in range(4):
            mf(i, nt)
            if args.st2 and nt == 0 and i in (0, 8): g.stamp(4 if i == 0 else 6)
            if side: side.pop(0)()
            elif pend: pend.pop(0)()
            if pend: pend.pop(0)()
        for f in side: f()
    def flush():
        while pend: pend.pop(0)()
        g.need_lg(g.lg[:])
    for i in range(CB):
        body(i, plan.get(i, []))
        if i == args.pollB: poll(vP2, vFl, sH, FS, 'pb')
    if args.st2: g.stamp(1)
    g.need_vm(['pb'])
    if args.st2: g.stamp(2)
    test(vP2, vFl, f"L_fastB{R}")
    sv = list(g.vm), list(g.lg), list(pend)
    poll(vP2, vFl, sH, FS, 'pb2')
    for i in range(CB, 28): body(i, [])
    flush()
    g.need_vm(['pb2'])
    test(vP2, vFl, f"L_pb{R}_ok")
    pr = [vT, vT2, vP1, vP2][:args.npoll]
    e(f"s_mov_b32 s{s_spin}, 0x20000")
    for r_ in pr[:-1]:
        poll(r_, vFl, sH, FS, 'x')
        if not args.nosl: e("s_sleep 1")
    g.lab(f"L_pb{R}")
    for k_ in range(len(pr)):
        poll(pr[k_ - 1], vFl, sH, FS, 'x')
        e(f"s_waitcnt vmcnt({len(pr) - 1})")
        test(pr[k_], vFl, f"L_pb{R}_ok")
    e(f"s_sub_u32 s{s_spin}, s{s_spin}, 1")
    e(f"s_cmp_lg_u32 s{s_spin}, 0")
    e(f"s_cbranch_scc1 L_pb{R}")
    g.lab(f"L_pb{R}_ok")
    g.vm = []
    g.stamp(13)
    for i in range(28, 28 + HD): h_load(i)
    e("s_branch L_B")
    g.lab(f"L_fastB{R}")
    g.vm, g.lg = sv[0], sv[1]; pend[:] = sv[2]
    q = list(range(28, 28 + HD)); per = -(-HD // (28 - CB))
    for i in range(CB, 28):
        body(i, [('h', q.pop(0)) for _ in range(min(per, len(q)))])
    assert not q
    flush()
    assert [t for t in g.vm if t[0] != 'h' or t[1] < 28] == [], g.vm

vm0 = list(g.vm)
def main_path(R):
    g.vm = list(vm0); g.lg = []
    L_ = R == "L"
    pre_ = args.l_pre if L_ else args.pre
    minlead_ = args.l_minlead if L_ else args.minlead
    maxlead_ = 999 if L_ else args.maxlead
    dstart_ = args.l_dstart if L_ else args.dstart
    issued = {m[1:3] for m in mand[:2]}
    rest = list(mand[2:])
    for (_, kind, n, where) in rest[:pre_ - 2]:
        assert (n < NW if kind == 'W' else n < NXB)
        for f in dma4(kind, n, where): f()
        issued.add((kind, n))
    rest = rest[pre_ - 2:]
    if args.touch and args.tpos == 1: touch(tn)
    g.stamp(2)
    rates = [int(x) for x in (args.l_rates if L_ and args.l_rates else args.rates).split(",")]
    slotc = {}
    for n in range(16):
        for i in range(rates[n]): slotc[32*n + START + (32*i)//rates[n]] = 1
    st = dict(credit=0, dnext=0, cur=None, nh=0, j=START)
    dma_q = []; lds_q = []; epi_q = []; misc_q = []
    wfree = {n: n < NW for n in range(16)}; xfree = {k: k < NXB for k in range(8)}
    dblocks = [('P', b_) for b_ in range(NXB, NP)]
    pending = []; dplace = {}; dland = []; dread_done = []; log = []; xdone = set(); xrel = []; inreg = []
    epiA_done = set()
    for mt in range(4):
        ops_ = epi_ops(ACC0, 0, mt, args.pk)
        ops_[-1] = (lambda f=ops_[-1], mt=mt: (f(), epiA_done.add(mt)))
        for f in ops_: epi_q.append(((done_at(0, mt) + 8) if args.mergeA else (done_at(0, 3) + 6), 'A', f))
    for mt in range(3):
        for f in epi_ops(ACC1, 1, mt, args.pk): epi_q.append((done_at(1, mt) + 8, 'B', f))
    bar_at = {p: n for n, p in bpos.items()}
    def release(kind, i):
        if kind == 'W':
            if i + NW < 16: wfree[i + NW] = True
            else: dblocks.append(('W', i % NW))
        else:
            if i + NXB < 8: xfree[i + NXB] = True
            else: dblocks.append(('P', i % NXB))
        dblocks.sort(key=lambda b_: b_[0] != 'P')
    def barrier(n):
        tags = [('W', n)] + [('X', k) for k in range(8) if first_k[k] == n]
        assert all(t in issued for t in tags), (R, n)
        g.need_vm(tags)
        for k in list(xrel):
            if args.lf: assert all((k, T, mt) in xdone for T in range(2) for mt in range(4))
            if args.lf or (all((k, T, mt) in xdone for T in range(2) for mt in range(4)) and not any(t_[0] == 'x' and t_[1] == k for t_ in g.lg[-6:])):
                g.need_lg([('x', k, T, mt) for T in range(2) for mt in range(4)])
                pending.append(('X', k)); xrel.remove(k)
        e("s_barrier")
        for kind, i in pending: release(kind, i)
        pending.clear()
        for k in range(8):
            if first_k[k] == n:
                xrel.append(k)
                for T, mt in sorted(((T, mt) for T in range(2) for mt in range(4)), key=lambda tm: min(j_ for j_, (i, m_) in enumerate(mseq) if m_ == tm[1] and uses[i][:2] == (n, tm[0]))):
                    if True:
                        def f(k=k, T=T, mt=mt):
                            assert k < NXK or st['j'] > xlast[k - NXK], ("x slot busy", k, st['j'])
                            r = ((k % NXK)*8 + T*4 + mt)*4
                            g.ds(f"ds_read_b128 {ar(r)}, v{vRX+T} offset:{(mt >> 1)*PWS + (mt & 1)*2048 + (k % NXB)*4096}", ('x', k, T, mt))
                            xdone.add((k, T, mt))
                        lds_q.append(('x', f))
                lds_q.sort(key=lambda o: o[0] != 'x')
    def wread(i, half):
        n, T, c = uses[i]
        fl, b = wbuf[i]; b += 2*half
        if i in wneed: assert wneed[i] in epiA_done, ('acc0 not free', i, st['j'])
        off = (n % NW) * 8192 + T * 4096 + (c & 1) * 1024 + 512*half
        g.ds(f"ds_read_b64_tr_b16 {fl}[{b}:{b+1}], v{vRW + (c >> 1)} offset:{off}", ('w', i))
    def pick(j):
        d = dorder[st['dnext']] if st['dnext'] < args.x_nd else None
        can_d = d is not None and dblocks and j >= dstart_
        for idx, (dl, kind, n, where) in enumerate(rest[:3]):
            ok = wfree[n] if kind == 'W' else xfree[n]
            lead = bpos[dl] - j
            extra = 16 if any(r_[0] == dl for r_ in rest[idx+1:idx+2]) else 0
            minl = max(minlead_, args.latelead) if dl >= args.latefrom else minlead_
            maxl = max(maxlead_, args.latelead + 16) if dl >= args.latefrom else maxlead_
            urgent = lead < minl + 16 + extra
            if ok and lead <= maxl + extra and (urgent or not can_d):
                rest.pop(idx); log.append(f"{kind}{n}@{j}(-{lead})")
                assert lead > 20, ("late", R, kind, n, j)
                return kind, n, where
            if not ok and lead < 48: return None
            if ok: break
        if can_d:
            blk = dblocks.pop(0 if d in early_ok else -1); st['dnext'] += 1; dplace[d] = blk; log.append(f"D{d}@{j}")
            return 'D', d, blk
        return None
    barrier(0)
    g.stamp(3)
    for j in range(START, NM):
        n0 = len(g.L)
        if j >= 0:
            i, mt = mseq[j]
            n, T, c = uses[i]
            s_, k = steps[n]
            assert (k, T, mt) in xdone, ("x read late", j)
            tg = [('w', i), ('x', k, T, mt)]
            if j == first_use[i] and i % args.wgrp == 0:
                tg += [('w', i_) for i_ in range(i, min(i + args.wgrp, NU)) if g.lg.count(('w', i_)) == 2]
            if mt == 0: tg += [('x', k, T, m_) for m_ in range(4)]
            g.need_lg(tg)
            acc = accr(ACC0 if s_ == 0 else ACC1, c, mt)
            cc = "0" if (k == 0 and T == 0) else vr(acc)
            e(f"{MF} {vr(acc)}, {wbuf[i][0]}[{wbuf[i][1]}:{wbuf[i][1]+3}], {ar(((k % NXK)*8 + T*4 + mt)*4)}, {cc}")
            if i == last_u[n] and j == first_use[i]: pending.append(('W', n))
            if args.fine:
                f0, fs = map(int, args.fine.split(","))
                if j >= f0 and (j - f0) % fs == 0 and (j - f0)//fs < 8: g.stamp(4 + (j - f0)//fs, True)
            elif args.stepstamps and j % 64 == 63: g.stamp(4 + j // 64, True)
            nxt_wait = j + 1 < NM and first_use[mseq[j+1][0]] == j + 1 and ('w', mseq[j+1][0]) in g.lg
            n0 = len(g.L) - (1 if nxt_wait else 0)
        used = lambda: len(g.L) - n0
        for i_, h_ in rsched.get(j, []): wread(i_, h_)
        if j in bar_at and bar_at[j] > 0: barrier(bar_at[j])
        if j == args.pollA_at: poll(vP1, vFl, sH, 0, 'pa')
        if j == args.chkA_at:
            assert not rest
            while misc_q: g.L += misc_q.pop(0)
            check_or_spin(f"L_pa{R}", vP1, 'pa', vFl, sH, 0)
            g.stamp(8)
        if j >= args.chkA_at and st['nh'] < args.hpre and not dma_q and (j - args.chkA_at) % 4 == 1:
            h_load(st['nh']); st['nh'] += 1
        if args.touch2 and j == int(args.touch2): touch(8 - tk0, tn)
        if j == args.mkat and not args.x_nomk: poll(vP1, vMk, sB, 0, 'mk')
        if j == args.flagA_at:
            assert not any(t_ == 'A' for _, t_, _ in epi_q)
            if not args.x_nomk: check_or_spin(f"L_mk{R}", vP1, 'mk', vMk, sB, 0)
            g.need_vm([('hs', 0)])
            flag_store(0)
            g.stamp(4)
        while dland and dland[0][0] <= j and not any(o[0] == 'd' for o in lds_q) and j < NM - 40 and not (args.mergeA and j <= endA and homes[dland[0][1]][0] == 'a' and homes[dland[0][1]][1] >= 192):
            _, it = dland.pop(0)
            ops = d_reads(it, dplace[it]); inreg.append(it)
            lds_q.append(('d', lambda it=it, f=ops[0]: (g.need_vm([('D', it)]), f())))
            for f in ops[1:-1]: lds_q.append(('d', f))
            lds_q.append(('d', lambda it=it, f=ops[-1]: (f(), dread_done.append((st['j'] + 8, it)))))
        st['j'] = j
        while dread_done and dread_done[0][0] <= j:
            _, it = dread_done.pop(0)
            g.need_lg([('Dr', it)]); dblocks.insert(0, dplace[it])
        if j in slotc: st['credit'] = min(st['credit'] + 1, 2)
        if lds_q and lds_q[0][0] == 'x' and used() < args.cap + 1: lds_q.pop(0)[1]()
        if not dma_q and (st['credit'] or any(j + q_ in slotc for q_ in (1, 2, 3))) and j < min(args.chkA_at - 12, args.dstop):
            p_ = pick(j)
            if p_: dma_q = dma_item(*p_); st['cur'] = p_
        while dma_q and dma_q[0][0] == 's' and used() < args.cap + (1 if st['credit'] >= 2 else 0): dma_q.pop(0)[1]()
        if dma_q and dma_q[0][0] == 'v' and st['credit'] and (used() + args.vcost <= args.cap or (st['credit'] >= 2 and used() <= args.cap)) and j < NM - 4 and not g.L[-1].strip().startswith("s_add_u32 m0"):
            dma_q.pop(0)[1](); st['credit'] -= 1
            n0 -= args.vcost - 1
            if not dma_q:
                issued.add(st['cur'][:2])
                if st['cur'][0] == 'D' and st['cur'][1] in early_ok: dland.append((j + (args.dlat if st['dnext'] <= 4 else args.dlat2), st['cur'][1]))
                if st['cur'][:2] == ('X', 7): rd2_setup()
                if st['cur'][0] == 'W' and not any(r_[1] == 'W' for r_ in rest):
                    n1 = len(g.L); rh_setup(); tl = g.L[n1:]; del g.L[n1:]
                    for q_ in range(0, len(tl), 3): misc_q.append(tl[q_:q_+3])
        if lds_q and len(g.lg) < 13 and used() < args.cap and j % 2: lds_q.pop(0)[1]()
        while epi_q and epi_q[0][0] <= j and used() < args.ecap: epi_q.pop(0)[2]()
        while lds_q and len(g.lg) < 13 and used() < args.cap: lds_q.pop(0)[1]()
        if misc_q and used() == 0: g.L += misc_q.pop(0)
    g.stamp(5)
    for t_ in misc_q: g.L += t_
    assert not rest
    for _, f in lds_q: f()
    for _, _, f in epi_q: f()
    e("s_nop 7")
    for f in epi_ops(ACC1, 1, 3, True): f()
    g.stamp(6)
    g.need_lg(g.lg[:])
    for _, it in dread_done: dblocks.append(dplace[it])
    e("s_barrier")
    assert not xrel
    for kind, i in pending: release(kind, i)
    for _, f in dma_q: f()
    post = dorder[st['dnext']:args.x_nd]
    sys.stderr.write(f"{R}: " + " ".join(log) + f"\n   inreg {inreg} post {post} nh {st['nh']}\n")
    lateops = []
    for n in post:
        dplace[n] = dblocks.pop(0)
        lateops += dma4('D', n, dplace[n])
    stay = [j for j in range(14) if j not in inreg and j in dorder[:args.x_nd]]
    assert len(set(dplace[j] for j in stay)) == len(stay)
    def do_flagB():
        g.need_vm([('hs', 1)])
        flag_store(1)
        g.stamp(7)
    extra = {1: [tail_setup]}
    nfirst = min(args.dfirst*4, len(lateops))
    fbd = False
    for i_ in range(nfirst):
        if args.flagB_i < 0 and i_ == -args.flagB_i: do_flagB(); fbd = True
        lateops.pop(0)()
    post = post[nfirst//4:]
    if args.flagB_i < 0 and not fbd: do_flagB()
    if args.chkA_at >= NM:
        check_or_spin(f"L_pa{R}", vP1, 'pa', vFl, sH, 0, pre=(lambda: (g.need_vm([('hs', 1)]), flag_store(1))) if args.flagB_i >= 0 else None)
        g.stamp(8)
        while st['nh'] < args.hpre: h_load(st['nh']); st['nh'] += 1
    if args.flagB_i >= 0: extra.setdefault(args.flagB_i, []).append(do_flagB)
    phase2A(R, stay, dplace, lateops, post, st['nh'], extra)
    e("s_branch L_B")

xrel_log = {}
if args.lf:
    if args.lfsel == "x":
        e(f"s_lshr_b32 s{s_a}, s{s_xcd}, 1")
        e(f"s_cmp_lg_u32 s{s_w}, s{s_a}")
    else:
        e(f"s_cmp_lg_u32 s{s_w}, s{s_c}")
    e("s_cbranch_scc1 L_follow")
    main_path("L")
    g.lab("L_follow")
main_path("F")
stay = sorted(reuse); inreg = [j for j in range(14) if j not in stay]; dplace = {j: ('P', q_) for q_, j in enumerate(stay)}

g.lab("L_spare")
g.vm = []; g.lg = []
setup2()
after_kernarg()
g.stamp(1)
e(f"s_cmp_lg_u32 s{s_w}, 0")
e("s_cbranch_scc1 L_sp1")
e(f"s_lshl_b32 s{s_a}, s{s_m64}, 13")
e(f"s_add_u32 s{s_a}, s{s_a}, {FBASE}")
e("v_lshlrev_b32 v240, 7, v0")
e("v_mov_b32 v241, 0")
e(f"buffer_store_dword v241, v240, {sr(sH)}, s{s_a} offen sc1")
g.lab("L_sp1")
def sp_touch():
    e("v_min_u32 v240, 55, v0")
    e(f"s_lshl_b32 s{s_a}, s{s_m64}, 2")
    e(f"s_add_u32 s{s_a}, s{s_a}, s{s_w}")
    e(f"s_and_b32 s{s_b}, s{s_a}, 63")
    e(f"s_lshr_b32 s{s_a}, s{s_a}, 6")
    e(f"s_lshl_b32 s{s_a}, s{s_a}, 7")
    e(f"s_add_u32 s{s_a}, s{s_a}, s{s_b}")
    e(f"s_lshl_b32 s{s_a}, s{s_a}, 10")
    e("v_lshrrev_b32 v242, 3, v240")
    e("v_lshlrev_b32 v242, 18, v242")
    e("v_and_b32 v247, 7, v240")
    e("v_lshl_add_u32 v242, v247, 7, v242")
    g.vmem(f"buffer_load_dword v249, v242, {sr(sD)}, s{s_a} offen", "pf")
    e(f"s_add_u32 s{s_a}, s{s_a}, 65536")
    g.vmem(f"buffer_load_dword v250, v242, {sr(sD)}, s{s_a} offen", "pf")
npf = 0
if args.sppf >= 0:
    e(f"s_lshl_b32 s{s_a}, s{s_mb}, 2")
    e(f"s_add_u32 s{s_a}, s{s_a}, s{s_w}")
    e(f"s_add_u32 s{s_a}, s{s_a}, {64*args.sppf}")
    e(f"s_mul_i32 s{s_a}, s{s_a}, 3584")
    e(f"s_and_b32 s{s_b}, s{s_xcd}, 1")
    e(f"s_mul_i32 s{s_b}, s{s_b}, 1792")
    e(f"s_add_u32 s{s_a}, s{s_a}, s{s_b}")
    e(f"s_lshl_b32 s{s_b}, s{s_m64}, 2")
    e(f"s_add_u32 s{s_b}, s{s_b}, s{s_w}")
    e(f"s_lshl_b32 s{s_b}, s{s_b}, 14")
    e(f"s_add_u32 s{s_b}, s{s_b}, {128*args.sppf - 28*1024 + (1 << 32)}")
    e("v_lshlrev_b32 v243, 10, v0")
    e(f"v_add_u32 v243, s{s_b}, v243")
    e(f"v_mov_b32 v252, s{sX}")
    e(f"v_mov_b32 v253, s{sX+1}")
    e("v_mov_b32 v254, 128")
    e("s_mov_b64 exec, 0xfffffff")
    e("v_lshlrev_b32 v243, 7, v0")
    e(f"s_sub_u32 s{s_b}, s{s_a}, {14*128 - 1024}")
    e(f"v_add_u32 v243, s{s_b}, v243")
    e(f"v_mov_b32 v252, s{sU}")
    e(f"v_mov_b32 v253, s{sU+1}")
    e(f"v_mov_b32 v254, {64*3584}")
    e("s_mov_b64 exec, 0x3fff")
    e("v_lshlrev_b32 v243, 7, v0")
    e(f"v_add_u32 v243, s{s_a}, v243")
    e(f"v_mov_b32 v252, s{sG}")
    e(f"v_mov_b32 v253, s{sG+1}")
    e("s_mov_b32 exec_lo, -1")
    e("s_mov_b32 exec_hi, 0xfff")
    e("v_add_co_u32 v252, vcc, v252, v243")
    e("v_addc_co_u32 v253, vcc, 0, v253, vcc")
    for kb in range(args.sppf, 8):
        if kb == args.sppfd:
            e("s_mov_b64 exec, -1"); sp_touch(); npf += 2
            e("s_mov_b32 exec_hi, 0xfff")
        g.vmem("global_load_dword v251, v[252:253], off", "pf"); npf += 1
        if kb < 7:
            e("v_add_co_u32 v252, vcc, v252, v254")
            e("v_addc_co_u32 v253, vcc, 0, v253, vcc")
    e("s_mov_b64 exec, -1")
def s3_touch():
    e(f"s_lshl_b32 s{s_a}, s{s_c}, 2")
    e(f"s_add_u32 s{s_a}, s{s_a}, s{s_w}")
    e(f"s_and_b32 s{s_b}, s{s_xcd}, 1")
    e(f"s_mul_i32 s{s_b}, s{s_b}, 3")
    e("v_bfe_u32 v243, v0, 1, 2")
    e(f"v_add_u32 v243, s{s_b}, v243")
    e("v_and_b32 v244, 1, v243")
    e("v_lshrrev_b32 v245, 3, v0")
    e("v_lshl_add_u32 v244, v245, 6, v244")
    e("v_and_b32 v245, 1, v0")
    e("v_lshl_add_u32 v244, v245, 1, v244")
    e("v_mul_u32_u24 v244, 3584, v244")
    e("v_lshl_add_u32 v244, v243, 9, v244")
    e(f"s_mul_i32 s{s_b}, s{s_a}, {4*3584}")
    g.vmem(f"buffer_load_dword v251, v244, {sr(sG)}, s{s_b} offen offset:384", "pf")
    g.vmem(f"buffer_load_dword v252, v244, {sr(sU)}, s{s_b} offen offset:{384+1024}", "pf")
    e(f"s_lshr_b32 s{s_b}, s{s_xcd}, 1")
    e(f"s_lshl_b32 s{s_b}, s{s_b}, 4")
    e(f"s_add_u32 s{s_b}, s{s_b}, s{s_a}")
    e(f"s_lshl_b32 s{s_b}, s{s_b}, 15")
    e("v_lshlrev_b32 v244, 10, v0")
    e("s_mov_b32 exec_hi, 0")
    g.vmem(f"buffer_load_dword v253, v244, {sr(sX)}, s{s_b} offen offset:384", "pf")
    e("s_mov_b64 exec, -1")
def s3_late(p0, np_):
    e(f"s_lshl_b32 s{s_a}, s{s_c}, 2")
    e(f"s_add_u32 s{s_a}, s{s_a}, s{s_w}")
    e(f"s_and_b32 s{s_b}, s{s_xcd}, 1")
    e(f"s_mul_i32 s{s_b}, s{s_b}, 3")
    e("v_bfe_u32 v243, v0, 1, 2")
    e(f"v_add_u32 v243, s{s_b}, v243")
    e("v_and_b32 v244, 1, v243")
    e("v_lshrrev_b32 v245, 3, v0")
    e("v_lshlrev_b32 v245, 2, v245")
    e(f"v_add_u32 v245, {4*p0}, v245")
    e(f"v_bfe_u32 v245, s{s_kr}, v245, 3")
    e("v_lshl_add_u32 v244, v245, 6, v244")
    e("v_and_b32 v245, 1, v0")
    e("v_lshl_add_u32 v244, v245, 1, v244")
    e("v_mul_u32_u24 v244, 3584, v244")
    e("v_lshl_add_u32 v244, v243, 9, v244")
    e(f"s_mul_i32 s{s_b}, s{s_a}, {4*3584}")
    mk = (1 << (8*np_)) - 1
    e(f"s_mov_b32 exec_lo, {mk & 0xffffffff}")
    e(f"s_mov_b32 exec_hi, {mk >> 32}")
    g.vmem(f"buffer_load_dword v251, v244, {sr(sG)}, s{s_b} offen offset:384", "pf")
    g.vmem(f"buffer_load_dword v252, v244, {sr(sU)}, s{s_b} offen offset:{384+1024}", "pf")
    e("s_mov_b64 exec, -1")
s3l = {}
for t_ in args.s3late.split(";"):
    if t_:
        q0, p0, np_ = map(int, t_.split(",")); s3l[q0] = (p0, np_)
if args.s3pf == 1: s3_touch(); npf += 3
if not args.nomall and args.spt == 0:
    if not (args.sppf <= args.sppfd < 8): sp_touch(); npf += 2
    if args.s3pf == 2: s3_touch(); npf += 3
    e(f"s_waitcnt vmcnt({npf})")
else:
    e("s_waitcnt vmcnt(0)")
e(f"s_cmp_lg_u32 s{s_w}, 0")
e("s_cbranch_scc1 L_sp2")
e(f"s_lshl_b32 s{s_a}, s{s_m64}, 2")
e(f"v_mov_b32 v247, s{s_a}")
e("v_mov_b32 v248, 1")
e("s_mov_b64 exec, 1")
e(f"buffer_store_dword v248, v247, {sr(sB)}, 0 offen sc1")
e("s_mov_b64 exec, -1")
g.lab("L_sp2")
g.stamp(4)
late_addr_setup(True)
rh_setup()
free2 = [('P', NP - 1), ('P', NP - 2)]
assert len(stay) <= NP - 2
prev = None
for q_, j in enumerate(dorder):
    if q_ >= args.x_nd and j not in stay: continue
    if not args.nomall and args.spt and q_ == args.spt: sp_touch()
    if q_ in s3l: s3_late(*s3l[q_])
    blk = dplace[j] if j in stay else free2[q_ % 2]
    for f in dma4('D', j, blk):
        f()
        if len(g.vm) > args.sppace:
            e(f"s_waitcnt vmcnt({args.sppace})"); g.vm = g.vm[-args.sppace:] if args.sppace else []
    if prev is not None:
        g.need_vm([('D', prev[0])])
        for f in d_reads(*prev): f()
        g.need_lg(g.lg[:])
    prev = (j, blk) if j in inreg else None
if prev is not None:
    g.need_vm([('D', prev[0])])
    for f in d_reads(*prev): f()
    g.need_lg(g.lg[:])
e(f"s_lshl_b32 s{s_a}, s{s_m64}, 2")
e(f"v_mov_b32 v{vMk}, s{s_a}")
if args.x_spdelay:
    e("s_waitcnt vmcnt(0)")
    e(f"s_mov_b32 s{s_spin}, {args.x_spdelay}")
    g.lab("L_xd")
    if args.x_spkind == "sleep": e("s_sleep 8")
    e(f"s_sub_u32 s{s_spin}, s{s_spin}, 1")
    e(f"s_cmp_lg_u32 s{s_spin}, 0")
    e("s_cbranch_scc1 L_xd")
if args.spbar:
    e("s_waitcnt vmcnt(0)")
    e("s_barrier")
    g.vm = []
else:
    spin("L_smk", vMk, sB, 0, sleep=8)
g.stamp(5)
spin("L_spa", vFl, sH, 0, sleep=args.spsleep)
g.stamp(8)
for i in range(HD): h_load(i)
g.lg = []
phase2A("S", stay, dplace, [], [], HD, {0: [tail_setup]})

g.lab("L_B")
g.stamp(9)
g.vm = [('h', i) for i in range(28, 28 + HD)]; g.lg = []
def wr(lam, a):
    r = ACC2 + lam*16 + a*4
    g.ds(f"ds_write_b128 v{vTW}, {vr(r)} offset:{(lam-1)*4096 + a*1024}", ('wr', lam))
def rd(sl, a):
    g.ds(f"ds_read_b128 {vr(ACC2 + 16 + 4*(sl*4+a))}, v{vTR+sl} offset:{a*1024}", ('rd', sl*4+a))
def padd(d, t):
    e(f"v_pk_add_f32 v[{d}:{d+1}], v[{d}:{d+1}], v[{t}:{t+1}]")
    e(f"v_pk_add_f32 v[{d+2}:{d+3}], v[{d+2}:{d+3}], v[{t+2}:{t+3}]")
def sync():
    g.need_lg(g.lg[:]); e("s_barrier")
    for a in range(4):
        for sl in range(3): rd(sl, a)
def sum_(a):
    g.need_lg([('rd', 8 + a)])
    padd(ACC2 + 16 + 4*a, ACC2 + 32 + 4*a); padd(ACC2 + 16 + 4*a, ACC2 + 48 + 4*a)
side = {}
for lam in (1, 2):
    for a in range(4): side.setdefault((28 + 7*lam + 2 + a, 1), []).append(lambda lam=lam, a=a: wr(lam, a))
for a in range(4): side.setdefault((51, a), []).append(lambda a=a: wr(3, a))
side.setdefault((53, 1), []).append(sync)
nxt = 28 + HD
for i in range(28, 56):
    for nt in range(4):
        mf(i, nt)
        if nt == 0 and nxt < 56: h_load(nxt); nxt += 1
        for f in side.get((i, nt), []): f()
g.stamp(10)
for a in range(4): sum_(a)
for a in range(4): padd(ACC2 + 4*a, ACC2 + 16 + 4*a)
for i in range(8):
    e(f"v_cvt_pk_bf16_f32 v{EPI+i}, v{ACC2+2*i}, v{ACC2+2*i+1}")
e("s_nop 1")
e(f"v_permlane16_swap_b32 v{EPI}, v{EPI+2}")
e(f"v_permlane16_swap_b32 v{EPI+1}, v{EPI+3}")
e(f"v_permlane16_swap_b32 v{EPI+4}, v{EPI+6}")
e(f"v_permlane16_swap_b32 v{EPI+5}, v{EPI+7}")
e(f"buffer_store_dwordx4 {vr(EPI)}, v{vTO}, {sr(sO)}, s{s_oadr} offen {args.outflags}")
e(f"buffer_store_dwordx4 {vr(EPI+4)}, v{vTO}, {sr(sO)}, s{s_oadr} offen offset:64 {args.outflags}")
if args.stamps:
    g.stamp(11)
    e("s_waitcnt vmcnt(0)")
    g.stamp(12)
    e("s_waitcnt lgkmcnt(0)")
if args.diag:
    a_, b_, K_, wg_ = map(int, args.diag.split(","))
    if wg_ >= 0: e(f"s_cmp_lg_u32 s2, {wg_}")
    else: e(f"s_cmp_eq_u32 s{s_col}, 0")
    e("s_cbranch_scc1 L_end")
    e(f"s_sub_u32 s46, s{s_st+2*b_}, s{s_st+2*a_}")
    e(f"s_mul_i32 s46, s46, {K_}")
    e(f"s_add_u32 s46, s46, 5000")
    e(f"s_min_u32 s46, s46, 100000")
    g.lab("L_diag")
    e("s_memrealtime s[48:49]")
    e("s_waitcnt lgkmcnt(0)")
    e(f"s_sub_u32 s47, s48, s{s_st}")
    e("s_cmp_lt_u32 s47, s46")
    e("s_cbranch_scc1 L_diag")
elif args.stamps:
    NS = 14
    for i in range(2*NS): e(f"v_mov_b32 v{64+i}, s{s_st+i}")
    e(f"s_lshl_b32 s46, s2, 2")
    e(f"s_add_u32 s46, s46, s{s_w}")
    e(f"s_mul_i32 s46, s46, {NS*8}")
    e(f"s_add_u32 s46, s46, {STAMP_OFF}")
    e("v_mov_b32 v5, 0")
    e("s_mov_b64 exec, 1")
    for i in range(NS//2): e(f"buffer_store_dwordx4 {vr(64+4*i)}, v5, {sr(sH)}, s46 offen offset:{16*i}")
g.lab("L_end")
e("s_endpgm")
g.lab("L_codeend")

hdr = f"""; Fused bilinear GLU: out = ((x Wg) * (x Wu)) Wd   (generated)
; @launch grid=(256,1,1) block=(256,1,1) lds={LDS}
.amdgcn_target "amdgcn-amd-amdhsa--gfx950"
.text
""" + (f".p2align {args.talign}\n" if args.talign else "") + (f"    s_endpgm\n.fill {args.tpad//4 - 1}, 4, 0xbf800000\n" if args.tpad else "") + f""".globl {KN}
.p2align 8
.type {KN},@function
{KN}:"""
tail = f""".section .rodata,"a"
.p2align {args.kdalign}
.amdhsa_kernel {KN}
  .amdhsa_next_free_vgpr 512
  .amdhsa_next_free_sgpr 102
  .amdhsa_accum_offset 256
  .amdhsa_group_segment_fixed_size 0
  .amdhsa_kernarg_size 56
  .amdhsa_user_sgpr_count 2
  .amdhsa_user_sgpr_kernarg_segment_ptr 1
  .amdhsa_system_sgpr_workgroup_id_x 1
""" + ("  .amdhsa_float_denorm_mode_32 3\n" if args.denorm else "") + """.end_amdhsa_kernel"""
print(hdr); print("\n".join(g.L)); print(tail)
```

```python
import sys, argparse

ap = argparse.ArgumentParser()
A = ap.add_argument
A("--stamps", action="store_true"); A("--stepstamps", action="store_true"); A("--cycstamps", action="store_true")
A("--st2", action="store_true"); A("--diag", default="")
A("--la", type=int, default=16)
A("--cap", type=int, default=2); A("--ecap", type=int, default=4)
A("--outflags", default=""); A("--noprefetch", action="store_true"); A("--nomall", action="store_true")
A("--order", default="0101001010001111"); A("--nxk", type=int, default=4)
A("--merge", type=int, default=2); A("--mtm", type=int, default=8)
A("--hdepth", type=int, default=12); A("--pollB", type=int, default=12); A("--chkB_i", type=int, default=20)
A("--mkat", type=int, default=256); A("--spsleep", type=int, default=8); A("--sppace", type=int, default=4)
A("--flagA_at", type=int, default=442); A("--pollA_at", type=int, default=508); A("--chkA_at", type=int, default=512)
A("--hpre", type=int, default=10); A("--dfirst", type=int, default=3); A("--flagB_i", type=int, default=-10)
A("--quiet", type=int, default=0); A("--dstop", type=int, default=496); A("--npoll", type=int, default=3); A("--per", type=int, default=2)
A("--nw", type=int, default=5); A("--nxb", type=int, default=3)
A("--rates", default="7,7,7,8,8,8,8,8,8,8,8,8,7,7,7,7"); A("--pre", type=int, default=4)
A("--minlead", type=int, default=56); A("--dstart", type=int, default=120); A("--dlat", type=int, default=64)
A("--latelead", type=int, default=80); A("--latefrom", type=int, default=13)
A("--spt", type=int, default=0)
A("--early", type=int, default=16)
A("--dorder", default="0,1,7,8,2,3,4,5,6,9,10,11,12,13")
A("--oldmerge", action="store_true")
A("--dlat2", type=int, default=28)
A("--vcost", type=int, default=2)
A("--wgrp", type=int, default=2)
A("--sppf", type=int, default=-1)
A("--sppfd", type=int, default=99)
A("--perm", default="01234567,23016745,45670123,67452301")
A("--pfq", type=int, default=0)
A("--mergeA", type=int, default=0)
A("--s3pf", type=int, default=0)
A("--lf", action="store_true")
A("--l_rates", default=""); A("--l_pre", type=int, default=6); A("--l_minlead", type=int, default=100); A("--l_dstart", type=int, default=100)
A("--maxlead", type=int, default=999)
A("--touch", default="")
A("--tpos", type=int, default=0)
A("--touch2", default="")
A("--x_nd", type=int, default=14)
A("--fine", default="")
A("--rotc", type=int, default=2)
A("--pk", action="store_true")
A("--lfsel", default="c")
A("--swap", type=int, default=0)
A("--x_spdelay", type=int, default=0)
A("--x_spkind", default="")
A("--x_nomk", action="store_true")
A("--spbar", action="store_true")
A("--nt", default="")
A("--hnt", action="store_true")
A("--map", type=int, default=4)
A("--nosl", action="store_true")
A("--denorm", action="store_true")
A("--s3late", default="")
A("--talign", type=int, default=0)
A("--tpad", type=int, default=0)
A("--kdalign", type=int, default=6)
A("--pa2", type=int, default=-1)
A("--pa3", type=int, default=-1)
A("--ldtags", default="")
A("--bits", action="store_true")
A("--pollmode", default="atomic"); A("--krot", type=int, default=1); A("--nos3", action="store_true")
args = ap.parse_args()
if args.diag: args.stamps = True
assert args.pollA_at > args.flagA_at > args.mkat

KN = "standalone__glu_gated_bilinear__prompt_kernel"
NW = args.nw; NP = 10 - NW; NXB = args.nxb
HFS = NW * 8192; PB = 2 * HFS; PWS = NP * 4096; LDS = PB + 4 * PWS
assert LDS == 163840 and NP >= 3
FBASE = 0x1000000; STAMP_OFF = 0x8000000; FS = 1024
HM, HQ, HS, HP = 458752, 114688, 57344, 8192
LA = args.la; NBUF = 8; NM = 512

sX, sG, sU, sD, sH, sO, sB = 8, 12, 16, 20, 24, 28, 32
s_w, s_mb, s_fb, s_m64, s_n64 = 36, 37, 38, 39, 40
s_xoff, s_woff, s_doff = 41, 42, 43
s_mP, s_mW = 44, 45
s_t0, s_t1, s_t2, s_t3 = 46, 47, 48, 49
s_hst, s_spin, s_hld, s_flag = 50, 51, 52, 53
s_oadr, s_xcd, s_col, s_c = 54, 55, 56, 57
s_a, s_b = 58, 59
s_st = 60
s_rh, s_rd = 88, 95
s_kr = 6
s_bit = 5
s_mX = 7
wtab = [88, 89, 90, 91, 92, 93, 94, 49]
vX, vW, vD = 1, 5, 9
vRW, vRX, vRD, vH = 13, 15, 17, 21
vL16, vFl, vMk, vT, vT2, vP1, vP2 = 25, 26, 27, 28, 29, 30, 31
vRD2 = 1
vTR, vTW, vTO = 5, 8, 13
WBUF = 32
ACC0, ACC1 = 64, 128
ACC2 = ACC0
HB = 128
EPI = 240
NXK = args.nxk
NREG = 3 + (256 - 32*NXK)//16

class G:
    def __init__(s): s.L = []; s.lg = []; s.vm = []
    def e(s, t): s.L.append("    " + t)
    def lab(s, t): s.L.append(t + ":")
    def ds(s, t, tag):
        if len(s.lg) >= 14:
            s.e("s_waitcnt lgkmcnt(12)"); s.lg = s.lg[-12:]
        s.e(t); s.lg.append(tag)
    def vmem(s, t, tag): s.e(t); s.vm.append(tag); assert len(s.vm) <= 63, "vm overflow"
    def need_lg(s, tags):
        idx = max((i for i, t in enumerate(s.lg) if t in tags), default=-1)
        if idx >= 0:
            s.e(f"s_waitcnt lgkmcnt({len(s.lg)-1-idx})"); s.lg = s.lg[idx+1:]
    def need_vm(s, tags):
        idx = max((i for i, t in enumerate(s.vm) if t in tags), default=-1)
        if idx >= 0:
            s.e(f"s_waitcnt vmcnt({len(s.vm)-1-idx})"); s.vm = s.vm[idx+1:]
    def stamp(s, k, force=False):
        if args.stepstamps and 4 <= k <= 11 and not force: return
        if args.stamps: s.e(("s_memtime" if args.cycstamps else "s_memrealtime") + f" s[{s_st+2*k}:{s_st+2*k+1}]")
g = G(); e = g.e
def vr(b, n=4): return f"v[{b}:{b+n-1}]"
def ar(b, n=4): return f"a[{b}:{b+n-1}]"
def sr(b, n=4): return f"s[{b}:{b+n-1}]"
MF = "v_mfma_f32_16x16x32_bf16"

order = [int(c) for c in args.order]
assert len(order) == 16 and sum(order) == 8
steps = []; cnt = [0, 0]
for s_ in order: steps.append((s_, cnt[s_])); cnt[s_] += 1
first_k = {}
for n, (s_, k) in enumerate(steps): first_k.setdefault(k, n)
last_k = {k: max(n for n, (s_, kk) in enumerate(steps) if kk == k) for k in range(8)}
uses = []
mseq = []
nm = 16 - args.merge
lastA = max(n for n in range(16) if steps[n][0] == 0)
regA = list(range(lastA + 1 - args.mergeA, lastA + 1)); regB = list(range(nm, 16))
assert all(steps[n][0] == 0 for n in regA) and all(steps[n][0] == 1 for n in regB) and args.merge <= 2 and args.mergeA <= 2
def accr(acc, c, mt): return acc + (c*4 + mt)*4
wbuf = {}; wneed = {}; region_of = {}; ringprev = {}; ring = []
n = 0
while n < 16:
    reg = regA if regA and n == regA[0] else (regB if regB and n == regB[0] else None)
    if reg:
        b0 = len(uses)
        for n_ in reg:
            for T in range(2):
                for c in range(4):
                    q_ = len(uses) - b0; i_ = len(uses); uses.append((n_, T, c)); region_of[i_] = (b0, 8*len(reg))
                    if reg is regB: wbuf[i_] = ("v", accr(ACC0, q_ % 4, q_ // 4)); wneed[i_] = q_ // 4
                    else: wbuf[i_] = ("a", 192 + 4*q_)
        mseq += [(i, mt) for mt in range(4) for i in range(b0, len(uses))]
        n = reg[-1] + 1
    else:
        for T in range(2):
            for c in range(4):
                i_ = len(uses); uses.append((n, T, c)); mseq += [(i_, mt) for mt in range(4)]
                wbuf[i_] = ("v", WBUF + (len(ring) % NBUF)*4)
                if len(ring) >= NBUF: ringprev[i_] = ring[-NBUF]
                ring.append(i_)
        n += 1
assert len(mseq) == NM
NU = len(uses)
first_use = {}
for j_, (i_, mt_) in enumerate(mseq): first_use.setdefault(i_, j_)
last_use = {i_: j_ for j_, (i_, mt_) in enumerate(mseq)}
rsched = {}; rpos = {}
for i_ in range(NU):
    p_ = first_use[i_] - LA
    if i_ in region_of:
        b0, ln = region_of[i_]
        p_ = first_use[b0] - LA - args.early + ((i_ - b0)*(ln + args.early))//ln
    if i_ in ringprev: p_ = max(p_, last_use[ringprev[i_]] + 1)
    p2 = p_ + (2 if i_ not in region_of else 1)
    assert p2 <= first_use[i_] - 5, ("w read late", i_)
    rsched.setdefault(p_, []).append((i_, 0)); rsched.setdefault(p2, []).append((i_, 1)); rpos[i_] = p_
endA = max(last_use[i] for i in range(NU) if uses[i][0] == lastA)
xlast = {k: max(j_ for j_, (i, mt) in enumerate(mseq) if steps[uses[i][0]][1] == k) for k in range(8)}
first_u = {n: min(i for i, u in enumerate(uses) if u[0] == n) for n in range(16)}
last_u = {n: max(i for i, u in enumerate(uses) if u[0] == n) for n in range(16)}
bpos = {n: rpos[first_u[n]] - 1 for n in range(16)}
START = -LA
def done_at(s_, mt): return max(j for j, (i, m_) in enumerate(mseq) if m_ == mt and steps[uses[i][0]][0] == s_)
busy = sorted({steps[uses[i][0]][1] % NXK for j_, (i, mt) in enumerate(mseq) if j_ >= min(args.chkA_at, NM - 1) - 4})
slots_order = [s_ for s_ in range(NXK) if s_ not in busy] + busy
xregs = [32*s_ + 4*q for s_ in slots_order for q in range(8)]
hreg = xregs[:28]
NFREE = 8*(NXK - len(busy))
spare16 = xregs[28:]
dorder = [int(x) for x in args.dorder.split(",")]
assert sorted(dorder) == list(range(14))
ahomes = [("a", 32*NXK + 16*j) for j in range(NREG - 3)]
phomes = []
for j in range(len(spare16)//4):
    grp = spare16[4*j:4*j+4]
    assert grp == [grp[0] + 4*q for q in range(4)]
    phomes.append(("a", grp[0]))
homes = {j: ("v", 192 + 16*j) for j in range(3)}
early_ok = {0, 1, 2}
reuse = {}; rq = []
for j in dorder:
    if j < 3: continue
    if ahomes: homes[j] = ahomes.pop(0); early_ok.add(j)
    elif phomes: homes[j] = phomes.pop(0)
    else: rq.append(j)
for q_, j in enumerate(sorted(rq)):
    assert j >= 7 and 3 + q_ in homes
    reuse[j] = 3 + q_; homes[j] = homes[3 + q_]
assert args.hpre <= NFREE or args.chkA_at >= NM

g.stamp(0)
for b_, o_ in ((sX, 0), (sG, 8), (sU, 16), (sD, 24), (sO, 32), (sB, 40), (sH, 48)):
    e(f"s_load_dwordx2 s[{b_}:{b_+1}], s[0:1], {o_}")
e("s_cmp_ge_u32 s2, 256")
e("s_cbranch_scc1 L_end")
if not args.noprefetch and args.pfq == 3:
    assert not args.lf
    e("s_getpc_b64 s[4:5]")
    e("s_and_b32 s4, s4, 0xffffff00")
    e("v_lshlrev_b32 v30, 7, v0")
    e("v_mov_b32 v29, s5")
    e("v_add_co_u32 v28, vcc, s4, v30")
    e("v_addc_co_u32 v29, vcc, 0, v29, vcc")
    e(f"v_cmp_gt_u32 vcc, L_codeend-{KN}, v30")
    e("s_and_saveexec_b64 s[4:5], vcc")
    e("s_cbranch_execz L_nopf")
    e("global_load_dword v31, v[28:29], off")
    g.lab("L_nopf")
    e("s_mov_b64 exec, -1")
elif not args.noprefetch:
    e("s_getpc_b64 s[4:5]")
    e("s_and_b32 s4, s4, 0xffffff00")
    e(f"s_mov_b32 s6, L_codeend-{KN}")
    e("s_mov_b32 s7, 0x20000")
    if args.pfq == 1:
        e("s_bfe_u32 s3, s2, 0x20003")
        e("s_lshl_b32 s3, s3, 7")
        e("v_lshrrev_b32 v30, 6, v0")
        e("v_and_b32 v29, 15, v0")
        e("v_lshl_add_u32 v30, v30, 4, v29")
        e("v_lshlrev_b32 v30, 9, v30")
        e("s_mov_b64 exec, 0xffff")
        g.vmem("buffer_load_dword v31, v30, s[4:7], s3 offen", "pf")
        e("s_mov_b64 exec, -1")
    elif args.pfq == 2:
        e("s_cmp_lt_u32 s2, 32")
        e("s_cselect_b32 s6, s6, 0")
        e("v_lshlrev_b32 v30, 7, v0")
        g.vmem("buffer_load_dword v31, v30, s[4:7], 0 offen", "pf")
    else:
        e("v_lshlrev_b32 v30, 7, v0")
        g.vmem("buffer_load_dword v31, v30, s[4:7], 0 offen", "pf")
        if args.lf:
            e("v_add_u32 v30, 0x8000, v30")
            g.vmem("buffer_load_dword v31, v30, s[4:7], 0 offen", "pf")
e("v_lshrrev_b32 v30, 6, v0")
e("v_and_b32 v0, 63, v0")
e(f"v_readfirstlane_b32 s{s_w}, v30")
e(f"s_and_b32 s{s_xcd}, s2, 7")
e(f"s_bfe_u32 s{s_c}, s2, 0x20003")
e(f"s_lshr_b32 s{s_col}, s2, 5")
if args.map == 2:
    e(f"s_lshl_b32 s{s_mb}, s{s_xcd}, 1")
    e(f"s_and_b32 s{s_fb}, s{s_c}, 1")
    e(f"s_add_u32 s{s_mb}, s{s_mb}, s{s_fb}")
    e(f"s_lshr_b32 s{s_fb}, s{s_c}, 1")
else:
    e(f"s_lshr_b32 s{s_mb}, s{s_xcd}, 1")
    e(f"s_lshl_b32 s{s_mb}, s{s_mb}, 2")
    e(f"s_add_u32 s{s_mb}, s{s_mb}, s{s_c}")
    e(f"s_and_b32 s{s_fb}, s{s_xcd}, 1")
e(f"s_mul_i32 s{s_fb}, s{s_fb}, 7")
e(f"s_add_u32 s{s_fb}, s{s_fb}, s{s_col}")
e(f"s_sub_u32 s{s_fb}, s{s_fb}, 1")
e("v_lshrrev_b32 v240, 3, v0")
e("v_and_b32 v241, 7, v0")
e("v_lshrrev_b32 v242, 4, v0")
e(f"s_xor_b32 s{s_b}, s{s_w}, s{s_col}")
e(f"s_and_b32 s{s_b}, s{s_b}, 3")
e(f"s_mul_i32 s{s_mX}, s{s_b}, {PWS}")
e(f"s_add_u32 s{s_mX}, s{s_mX}, {PB}")
e(f"s_lshl_b32 s{s_a}, s{s_b}, 15")
e("v_xor_b32 v243, v241, v242")
e("v_lshlrev_b32 v243, 4, v243")
e(f"v_lshl_add_u32 v{vX}, v240, 10, v243")
e(f"v_add_u32 v{vX}, s{s_a}, v{vX}")
e(f"v_xor_b32 v{vX+1}, 64, v{vX}")
e(f"v_add_u32 v{vX+1}, {7*1024}, v{vX+1}")
e(f"v_add_u32 v{vX+2}, {14*1024}, v{vX}")
e(f"v_add_u32 v{vX+3}, {14*1024}, v{vX+1}")
e(f"s_lshr_b32 s{s_a}, s{s_w}, 1")
e(f"s_lshl_b32 s{s_a}, s{s_a}, 5")
e(f"s_and_b32 s{s_b}, s{s_w}, 1")
e(f"s_lshl_b32 s{s_t0}, s{s_b}, 3")
e(f"s_add_u32 s{s_a}, s{s_a}, s{s_t0}")
e(f"s_mul_i32 s{s_a}, s{s_a}, 3584")
e(f"s_lshl_b32 s{s_b}, s{s_b}, 6")
e(f"v_mul_u32_u24 v{vW}, 3584, v240")
e("v_and_b32 v244, 1, v242")
e("v_lshlrev_b32 v245, 4, v241")
e("v_lshlrev_b32 v246, 5, v244")
e("v_xor_b32 v246, v245, v246")
e(f"v_xor_b32 v246, s{s_b}, v246")
if args.swap:
    if args.swap == 1:
        e(f"s_lshr_b32 s{s_t0}, s{s_fb}, 1")
        e(f"s_and_b32 s{s_t0}, s{s_t0}, s{s_fb}")
    else: e(f"s_mov_b32 s{s_t0}, s{s_fb}")
    e(f"s_and_b32 s{s_t0}, s{s_t0}, 1")
    e(f"s_lshl_b32 s{s_t0}, s{s_t0}, 7")
    e(f"s_add_u32 s{s_a}, s{s_a}, s{s_t0}")
e(f"v_add3_u32 v{vW}, v{vW}, v246, s{s_a}")
e(f"v_add_u32 v{vW+2}, {16*3584-2048}, v{vW}")
e(f"s_and_b32 s{s_b}, s{s_w}, 1")
e(f"s_mul_i32 s{s_mW}, s{s_b}, {HFS}")
e(f"s_lshr_b32 s{s_a}, s{s_w}, 1")
e(f"s_lshl_b32 s{s_a}, s{s_a}, 12")
e(f"s_add_u32 s{s_mW}, s{s_mW}, s{s_a}")
perms = [[int(c) for c in p] for p in args.perm.split(",")]
assert all(sorted(p) == list(range(8)) for p in perms) and len(perms) in (4, 8)
pk = [sum(v << (4*i) for i, v in enumerate(p)) for p in perms]
if len(perms) == 4:
    e(f"s_lshr_b32 s{s_a}, s{s_xcd}, 1")
    e(f"s_and_b32 s{s_b}, s{s_xcd}, 1")
    e(f"s_lshl_b32 s{s_b}, s{s_b}, 1")
    e(f"s_xor_b32 s{s_a}, s{s_a}, s{s_b}")
else:
    e(f"s_mov_b32 s{s_a}, s{s_xcd}")
e(f"s_mov_b32 s{s_kr}, {pk[0]}")
for q_ in range(1, len(perms)):
    e(f"s_cmp_eq_u32 s{s_a}, {q_}")
    e(f"s_cselect_b32 s{s_kr}, {pk[q_]}, s{s_kr}")
e(f"s_lshl_b32 s{s_xoff}, s{s_mb}, 17")
e(f"s_lshl_b32 s{s_woff}, s{s_fb}, 8")
e(f"s_and_b32 s{s_t2}, s{s_kr}, 7")
e(f"s_mul_i32 s{s_t2}, s{s_t2}, {64*3584}")
e(f"s_add_u32 s{wtab[0]}, s{s_t2}, s{s_woff}")
for b, n in ((sX, 2048*1024), (sG, 512*3584), (sU, 512*3584+1024)):
    e(f"s_mov_b32 s{b+2}, {n}")
    e(f"s_mov_b32 s{b+3}, 0x20000")
e(f"s_cmp_eq_u32 s{s_col}, 0")
e("s_cbranch_scc1 L_spare")
def after_kernarg():
    e("s_waitcnt lgkmcnt(0)")
    e(f"s_sub_u32 s{sU}, s{sU}, 1024")
    e(f"s_subb_u32 s{sU+1}, s{sU+1}, 0")
def setup2():
    if args.stamps:
        for i in range(2, 14): e(f"s_mov_b64 s[{s_st+2*i}:{s_st+2*i+1}], 0")
    e(f"s_lshl_b32 s{s_m64}, s{s_xcd}, 2")
    e(f"s_add_u32 s{s_m64}, s{s_m64}, s{s_c}")
    e(f"s_xor_b32 s{s_n64}, s{s_col}, 3")
    e(f"v_xor_b32 v{vW+1}, 128, v{vW}")
    e(f"v_xor_b32 v{vW+3}, 128, v{vW+2}")
    e(f"s_lshr_b32 s{s_a}, s{s_w}, 1")
    e(f"s_lshl_b32 s{s_a}, s{s_a}, 17")
    e(f"s_and_b32 s{s_b}, s{s_w}, 1")
    e(f"s_lshl_b32 s{s_b}, s{s_b}, 15")
    e(f"s_add_u32 s{s_a}, s{s_a}, s{s_b}")
    e("v_lshlrev_b32 v246, 5, v242")
    e("v_xor_b32 v246, v245, v246")
    e(f"v_lshl_add_u32 v{vD}, v240, 10, v246")
    e(f"v_add_u32 v{vD}, s{s_a}, v{vD}")
    for i in range(1, 4): e(f"v_add_u32 v{vD+i}, {7*1024*i}, v{vD}")
    e(f"s_mul_i32 s{s_mP}, s{s_w}, {PWS}")
    e(f"s_add_u32 s{s_mP}, s{s_mP}, {PB}")
    e(f"s_lshl_b32 s{s_doff}, s{s_n64}, 7")

    for b, n in ((sD, 1792*1024), (sH, 0x10000000), (sO, 2048*1024), (sB, 256)):
        e(f"s_mov_b32 s{b+2}, {n}")
        e(f"s_mov_b32 s{b+3}, 0x20000")
def wtab_setup():
    for k in range(1, 8):
        e(f"s_bfe_u32 s{s_a}, s{s_kr}, {0x30000 + 4*k}")
        e(f"s_mul_i32 s{s_a}, s{s_a}, {64*3584}")
        e(f"s_add_u32 s{wtab[k]}, s{s_a}, s{s_woff}")
def rh_setup():
    for jj in range(7):
        e(f"s_lshr_b32 s{s_a}, s{s_rd+jj}, 18")
        e(f"s_lshl_b32 s{s_a}, s{s_a}, 13")
        e(f"s_add_u32 s{s_rh+jj}, s{s_a}, s{s_hld}")

def dma_item(kind, n, where):
    m0 = (s_mX if kind == 'X' else s_mP, where[1] * 4096) if where[0] == 'P' else (s_mW, where[1] * 8192)
    ops = []
    sc = [f"s_add_u32 m0, s{m0[0]}, {m0[1]}"]
    so = s_t0
    if kind == 'X':
        srd = [sX]*4; vb = [vX, vX+1, vX+2, vX+3]; sc = [f"s_bfe_u32 s{s_t0}, s{s_kr}, {0x30000 + 4*n}", f"s_lshl_b32 s{s_t0}, s{s_t0}, 7"] + sc + [f"s_add_u32 s{s_t0}, s{s_t0}, s{s_xoff}"]
    elif kind == 'W':
        o_ = steps[n][0]; srd = [sG, sU, sG, sU]; vb = [vW+o_, vW+o_, vW+2+o_, vW+2+o_]; so = wtab[steps[n][1]]
    else:
        srd = [sD]*4; vb = [vD, vD+1, vD+2, vD+3]
        if n < 7: so = s_rd + n
        else: sc.append(f"s_xor_b32 s{s_t0}, s{s_rd + n % 7}, 65536")
    for t in sc: ops.append(('s', lambda t=t: e(t)))
    for i in range(4):
        off = f" offset:{1024*i}" if i else ""
        def ld(i=i, off=off):
            if g.L[-1].strip().startswith("s_add_u32 m0"): e("s_nop 0")
            nt_ = " nt" if f"{kind}{n}" in args.nt.split(",") else ""
            g.vmem(f"buffer_load_dwordx4 v{vb[i]}, {sr(srd[i])}, s{so} offen{off}{nt_} lds", (kind, n))
        ops.append(('v', ld))
    return ops
def dma4(kind, n, where):
    ops = dma_item(kind, n, where); pre = [f for k, f in ops if k == 's']; ld = [f for k, f in ops if k == 'v']
    return [lambda: ([f() for f in pre], ld[0]())] + ld[1:]

def h_pattern(vdst, s_idx):
    e(f"v_lshlrev_b32 v{vdst}, 4, v0")
    if args.nos3: return
    e(f"s_and_b32 s{s_idx}, s{s_idx}, 3")
    e(f"s_cmp_eq_u32 s{s_idx}, 3")
    e(f"s_cselect_b32 s{s_idx}, 4, s{s_idx}")
    e(f"s_lshl_b32 s{s_idx}, s{s_idx}, 7")
    e(f"s_add_u32 s{s_idx}, s{s_idx}, {4096 - 384}")
    e("s_mov_b32 exec_lo, 0xff000000")
    e("s_mov_b32 exec_hi, 0")
    e(f"v_add_u32 v{vdst}, s{s_idx}, v{vdst}")
    e("s_mov_b64 exec, -1")

def late_addr_setup(spare_=False):
    e("v_lshrrev_b32 v240, 5, v0")
    e("v_bfe_u32 v241, v0, 4, 1")
    e("v_bfe_u32 v242, v0, 2, 2")
    e("v_and_b32 v243, 3, v0")
    e("v_bfe_u32 v244, v0, 3, 1")
    e("v_lshlrev_b32 v243, 3, v243")
    e("v_lshl_add_u32 v243, v242, 7, v243")
    e("v_lshl_or_b32 v245, v241, 1, v244")
    e("v_lshl_add_u32 v243, v245, 5, v243")
    e(f"v_mul_u32_u24 v{vRW}, {HFS}, v241")
    e(f"v_lshl_add_u32 v{vRW}, v240, 11, v{vRW}")
    e(f"v_add_u32 v{vRW}, v{vRW}, v243")
    e(f"s_and_b32 s{s_a}, s{s_w}, 1")
    e(f"s_lshl_b32 s{s_a}, s{s_a}, 6")
    e(f"v_xor_b32 v{vRW}, s{s_a}, v{vRW}")
    e(f"v_xor_b32 v{vRW+1}, 32, v{vRW}")
    e("v_lshrrev_b32 v246, 4, v0")
    e("v_lshl_add_u32 v245, v246, 9, v243")
    e(f"v_add_u32 v{vRD}, s{s_mP}, v245")
    for nt in range(1, 4): e(f"v_xor_b32 v{vRD+nt}, {32*nt}, v{vRD}")
    e("v_and_b32 v245, 15, v0")
    e("v_bfe_u32 v247, v0, 1, 3")
    e("v_xor_b32 v247, v247, v246")
    e("v_lshlrev_b32 v247, 4, v247")
    e("v_lshl_add_u32 v245, v245, 7, v247")
    e(f"s_lshr_b32 s{s_a}, s{s_w}, 1")
    e(f"s_mul_i32 s{s_a}, s{s_a}, {2*PWS}")
    e(f"s_add_u32 s{s_a}, s{s_a}, {PB}")
    e(f"v_add_u32 v{vRX}, s{s_a}, v245")
    e(f"v_xor_b32 v{vRX+1}, 64, v{vRX}")
    e(f"s_add_u32 s{s_a}, s{s_m64}, s{s_w}")
    h_pattern(vH, s_a)
    e(f"s_lshl_b32 s{s_a}, s{s_w}, 10")
    e(f"v_add_u32 v{vH}, s{s_a}, v{vH}")
    for lam in range(1, 4): e(f"v_xor_b32 v{vH+lam}, {1024*lam}, v{vH}")
    e(f"s_mul_i32 s{s_hld}, s{s_m64}, {HM}")
    e(f"s_mul_i32 s{s_a}, s{s_w}, {HQ}")
    e(f"s_add_u32 s{s_hld}, s{s_hld}, s{s_a}")
    e(f"v_add_u32 v{vFl}, 5, v0")
    e(f"v_lshrrev_b32 v{vFl}, 3, v{vFl}")
    e(f"v_add_u32 v{vFl}, v{vFl}, v0")
    e(f"v_min_u32 v{vFl}, 7, v{vFl}")
    e(f"v_lshlrev_b32 v{vFl}, 7, v{vFl}")
    e(f"s_lshl_b32 s{s_a}, s{s_m64}, 13")
    e(f"s_lshl_b32 s{s_b}, s{s_w}, 11")
    e(f"s_add_u32 s{s_a}, s{s_a}, s{s_b}")
    e(f"s_add_u32 s{s_a}, s{s_a}, {FBASE}")
    e(f"v_add_u32 v{vFl}, s{s_a}, v{vFl}")
    if args.rotc == 4:
        e(f"s_and_b32 s{s_a}, s{s_c}, 1")
        e(f"s_lshl_b32 s{s_a}, s{s_a}, 2")
    else:
        e(f"s_mul_i32 s{s_a}, s{s_c}, {args.rotc}")
    if spare_: e(f"s_lshl_b32 s{s_a}, s{s_c}, 1")
    e(f"s_add_u32 s{s_a}, s{s_a}, s{s_col}")
    e(f"s_sub_u32 s{s_b}, s{s_a}, 7")
    e(f"s_cmp_ge_u32 s{s_a}, 7")
    e(f"s_cselect_b32 s{s_a}, s{s_b}, s{s_a}")
    for jj in range(7):
        e(f"s_lshl_b32 s{s_b}, s{s_a}, 18")
        e(f"s_add_u32 s{s_rd+jj}, s{s_b}, s{s_doff}")
        if args.swap:
            e(f"s_lshr_b32 s{s_b}, s{s_w}, 1")
            if args.swap == 1: e(f"s_and_b32 s{s_b}, s{s_b}, s{s_a}")
            e(f"s_lshl_b32 s{s_b}, s{s_b}, 16")
            e(f"s_add_u32 s{s_rd+jj}, s{s_rd+jj}, s{s_b}")
        if jj < 6:
            e(f"s_add_u32 s{s_a}, s{s_a}, 1")
            e(f"s_cmp_eq_u32 s{s_a}, 7")
            e(f"s_cselect_b32 s{s_a}, 0, s{s_a}")
    e(f"s_lshl_b32 s{s_a}, s{s_m64}, 16")
    e(f"s_lshl_b32 s{s_b}, s{s_w}, 14")
    e(f"s_add_u32 s{s_a}, s{s_a}, s{s_b}")
    e(f"s_add_u32 s{s_oadr}, s{s_a}, s{s_doff}")

def rd2_setup():
    e(f"s_sub_u32 s{s_a}, s{s_mW}, s{s_mP}")
    for nt in range(4): e(f"v_add_u32 v{vRD2+nt}, s{s_a}, v{vRD+nt}")

def d_reads(item, where):
    dfile, dstbase = homes[item]
    ops = []
    for nt in range(4):
        for p in range(2):
            def f(nt=nt, p=p):
                if where[0] == 'P': va = vRD + nt; off = where[1]*4096
                else: va = vRD2 + nt; off = where[1]*8192
                off += p*2048
                r = dstbase + nt*4 + 2*p
                g.ds(f"ds_read_b64_tr_b16 {dfile}[{r}:{r+1}], v{va} offset:{off}", ('Dr', item))
            ops.append(f)
    return ops

def pmask(vaddr): return 3 if vaddr == vMk else (1 if args.bits else 0x7f)
def poll(vdst, vaddr, srd, off, tag):
    o = f" offset:{off}" if off else ""
    e(f"s_mov_b64 exec, {pmask(vaddr)}")
    if args.pollmode == "atomic" and vaddr != vMk and tag not in args.ldtags.split(","):
        e(f"v_mov_b32 v{vdst}, 0")
        g.vmem(f"buffer_atomic_add v{vdst}, v{vaddr}, {sr(srd)}, 0 offen{o} sc0 sc1", tag)
    else:
        g.vmem(f"buffer_load_dword v{vdst}, v{vaddr}, {sr(srd)}, 0 offen{o} sc1", tag)
    e("s_mov_b64 exec, -1")
def test(vres, vaddr, target):
    if args.bits and vaddr != vMk: e(f"v_cmp_ne_u32 vcc, 0x7f, v{vres}")
    else: e(f"v_cmp_eq_u32 vcc, 0, v{vres}")
    e(f"s_and_b32 s{s_t1}, vcc_lo, {pmask(vaddr)}")
    e(f"s_cbranch_scc0 {target}")
def spin(label, vaddr, srd, off, sleep=0):
    e(f"s_mov_b32 s{s_spin}, 0x40000")
    g.lab(label)
    poll(vT, vaddr, srd, off, 'sp')
    e("s_waitcnt vmcnt(0)")
    test(vT, vaddr, f"{label}_ok")
    if sleep: e(f"s_sleep {sleep}")
    e(f"s_sub_u32 s{s_spin}, s{s_spin}, 1")
    e(f"s_cmp_lg_u32 s{s_spin}, 0")
    e(f"s_cbranch_scc1 {label}")
    g.lab(label + "_ok")
    g.vm = []
def check_or_spin(label, vres, tag, vaddr, srd, off, pre=None):
    g.need_vm([tag])
    test(vres, vaddr, f"{label}_ok")
    save = list(g.vm)
    if pre: pre()
    spin(label, vaddr, srd, off)
    g.vm = save

def epi_ops(acc, s, mt, packed):
    ops = []; d = EPI + 4*mt
    for ql in range(2):
        a = accr(acc, 2*ql, mt); b = accr(acc, 2*ql + 1, mt)
        if packed:
            for i in range(2): ops.append(lambda a=a, b=b, i=i: e(f"v_pk_mul_f32 v[{a+2*i}:{a+2*i+1}], v[{a+2*i}:{a+2*i+1}], v[{b+2*i}:{b+2*i+1}]"))
        else:
            for i in range(4): ops.append(lambda a=a, b=b, i=i: e(f"v_mul_f32 v{a+i}, v{a+i}, v{b+i}"))
    for ql in range(2):
        a = accr(acc, 2*ql, mt)
        for i in range(2): ops.append(lambda a=a, i=i, ql=ql: e(f"v_cvt_pk_bf16_f32 v{d+2*ql+i}, v{a+2*i}, v{a+2*i+1}"))
    if mt == 0 and s == 1: ops.append(lambda: e(f"s_add_u32 s{s_hst}, s{s_hst}, {HS}"))
    off = f" offset:{1024*mt}" if mt else ""
    ops.append(lambda: g.vmem(f"buffer_store_dwordx4 {vr(d)}, v{vL16}, {sr(sH)}, s{s_hst} offen{off} sc1", ('hs', s)))
    return ops

def flag_store(s):
    e(f"v_mov_b32 v{vT2}, s{s_flag}")
    e(f"v_mov_b32 v{vT}, s{s_bit}" if args.bits else f"v_mov_b32 v{vT}, 1")
    e("s_mov_b64 exec, 1")
    op = "buffer_atomic_or" if args.pollmode == "atomic" else "buffer_store_dword"
    g.vmem(f"{op} v{vT}, v{vT2}, {sr(sH)}, 0 offen offset:{FS*s} sc1", ('fl', s))
    e("s_mov_b64 exec, -1")

def hidx(i):
    s, r_ = divmod(i, 28)
    if s == 0: jj, lam = divmod(r_, 4)
    else: jj, lam = r_ % 7, (r_ // 7 + 1) % 4
    return s, jj, lam, r_
def h_load(i):
    s, jj, lam, r_ = hidx(i)
    dst = ar(hreg[r_]) if s == 0 else vr(HB + r_*4)
    if i == 28:
        for q in range(7): e(f"s_add_u32 s{s_rh+q}, s{s_rh+q}, {HS}")
    g.vmem(f"buffer_load_dwordx4 {dst}, v{vH+lam}, {sr(sH)}, s{s_rh+jj} offen sc1", ('h', i))
def mf(i, nt):
    s, jj, lam, r_ = hidx(i)
    g.need_vm([('h', i)])
    g.need_lg([('Dr', s*7 + jj)])
    f_, base = homes[s*7 + jj]
    r = base + nt*4
    acc = ACC2 + (lam*4 + nt)*4
    c = "0" if i < 4 else vr(acc)
    h = ar(hreg[r_]) if s == 0 else vr(HB + r_*4)
    e(f"{MF} {vr(acc)}, {f_}[{r}:{r+3}], {h}, {c}")
def tail_setup():
    e(f"v_lshlrev_b32 v{vL16}, 4, v0")
    for lam in range(1, 4):
        e(f"s_xor_b32 s{s_a}, s{s_w}, {lam}")
        e(f"s_mul_i32 s{s_a}, s{s_a}, {PWS}")
        e(f"s_add_u32 s{s_a}, s{s_a}, {PB + (lam-1)*4096}")
        e(f"v_add_u32 v{vTR+lam-1}, s{s_a}, v{vL16}")
    e(f"v_add_u32 v{vTW}, s{s_mP}, v{vL16}")
    e(f"v_and_b32 v{vTO}, 15, v0")
    e(f"v_lshlrev_b32 v{vTO}, 10, v{vTO}")
    e(f"v_bfe_u32 v{vTO+1}, v0, 4, 1")
    e(f"v_lshl_add_u32 v{vTO}, v{vTO+1}, 5, v{vTO}")
    e(f"v_lshrrev_b32 v{vTO+1}, 5, v0")
    e(f"v_lshl_add_u32 v{vTO}, v{vTO+1}, 4, v{vTO}")
HD = args.hdepth

mand = []
for n in range(16):
    for k in range(8):
        if first_k[k] == n: mand.append((n, 'X', k, ('P', k % NXB)))
    mand.append((n, 'W', n, ('W', n % NW)))
ops0 = dma_item(*mand[0][1:])
for k_, f in ops0:
    if k_ == 's': f()
after_kernarg()
g.stamp(1)
for k_, f in ops0:
    if k_ == 'v': f()
for f in dma4(*mand[1][1:]): f()
setup2()
def touch_setup(k0):
    e(f"s_lshl_b32 s{s_a}, s{s_mb}, 2")
    e(f"s_add_u32 s{s_a}, s{s_a}, s{s_w}")
    e(f"s_add_u32 s{s_a}, s{s_a}, {64*k0}")
    e(f"s_mul_i32 s{s_a}, s{s_a}, 3584")
    e(f"s_add_u32 s{s_a}, s{s_a}, s{s_woff}")
    e("v_lshrrev_b32 v242, 3, v0")
    e("v_and_b32 v243, 7, v0")
    e("v_and_b32 v240, 1, v0")
    e("v_lshlrev_b32 v240, 7, v240")
    e(f"v_mul_u32_u24 v244, {64*3584}, v242")
    e(f"v_add3_u32 v240, v240, v244, s{s_a}")
    e(f"s_lshl_b32 s{s_a}, s{s_fb}, 2")
    e(f"s_add_u32 s{s_a}, s{s_a}, s{s_w}")
    e(f"s_mul_i32 s{s_a}, s{s_a}, 3")
    e(f"s_sub_u32 s{s_a}, s{s_a}, 4")
    e("v_max_u32 v241, 4, v243")
    e(f"v_add_u32 v241, s{s_a}, v241")
    e("v_min_u32 v241, 127, v241")
    e("v_lshlrev_b32 v241, 10, v241")
    e("v_lshl_add_u32 v241, v242, 7, v241")
    e(f"s_add_u32 s{s_a}, s{s_xoff}, {128*k0}")
    e(f"v_add_u32 v241, s{s_a}, v241")
def touch(n, n0=0):
    m = sum(1 << (8*j_) for j_ in range(n0, n))
    for bits, srd, v_, off in ((3, sG, 240, 0), (12, sU, 240, 1024), (0x70, sX, 241, 0)):
        mk = m * bits
        e(f"s_mov_b32 exec_lo, {mk & 0xffffffff}")
        e(f"s_mov_b32 exec_hi, {mk >> 32}")
        g.vmem(f"buffer_load_dword v250, v{v_+8}, {sr(srd)}, 0 offen offset:{off}", "pf")
    e("s_mov_b64 exec, -1")
if args.touch:
    tk0, tn = map(int, args.touch.split(","))
    touch_setup(tk0)
    e("v_mov_b32 v248, v240"); e("v_mov_b32 v249, v241")
    if args.tpos == 0: touch(tn)
wtab_setup()
late_addr_setup()
e(f"s_lshr_b32 s{s_a}, s{s_w}, 1")
e(f"s_lshl_b32 s{s_b}, s{s_mb}, 1")
e(f"s_add_u32 s{s_a}, s{s_a}, s{s_b}")
e(f"s_and_b32 s{s_b}, s{s_fb}, 1")
e(f"s_lshl_b32 s{s_b}, s{s_b}, 1")
e(f"s_and_b32 s{s_t1}, s{s_w}, 1")
e(f"s_add_u32 s{s_b}, s{s_b}, s{s_t1}")
e(f"s_mul_i32 s{s_hst}, s{s_a}, {HM}")
e(f"s_mul_i32 s{s_t1}, s{s_b}, {HQ}")
e(f"s_add_u32 s{s_hst}, s{s_hst}, s{s_t1}")
e(f"s_lshr_b32 s{s_t2}, s{s_fb}, 1")
e(f"s_lshl_b32 s{s_t1}, s{s_t2}, 13")
e(f"s_add_u32 s{s_hst}, s{s_hst}, s{s_t1}")
e(f"s_add_u32 s{s_t1}, s{s_a}, s{s_b}")
h_pattern(vL16, s_t1)
if args.bits:
    assert args.pollmode == "atomic"
    e(f"s_lshl_b32 s{s_bit}, 1, s{s_t2}")
    e(f"s_mov_b32 s{s_t2}, 0")
else:
    e(f"s_cmp_ge_u32 s{s_t2}, 3")
    e(f"s_addc_u32 s{s_t2}, s{s_t2}, 0")
    e(f"s_lshl_b32 s{s_t2}, s{s_t2}, 7")
e(f"s_lshl_b32 s{s_b}, s{s_b}, 11")
e(f"s_add_u32 s{s_b}, s{s_b}, s{s_t2}")
e(f"s_lshl_b32 s{s_t1}, s{s_a}, 13")
e(f"s_add_u32 s{s_b}, s{s_b}, s{s_t1}")
e(f"s_add_u32 s{s_flag}, s{s_b}, {FBASE}")
e(f"s_lshl_b32 s{s_a}, s{s_a}, 2")
e(f"s_lshl_b32 s{s_b}, s{s_m64}, 2")
e(f"v_mov_b32 v{vMk}, s{s_a}")
e(f"v_mov_b32 v240, s{s_b}")
e("v_cmp_lt_u32 vcc, 0, v0")
e("s_nop 1")
e(f"v_cndmask_b32 v{vMk}, v{vMk}, v240, vcc")

def phase2A(R, stay, dplace, lateops, late, nh, extra):
    dmove = {}; slot_ = 0
    plan = {}; q = [('h', i) for i in range(nh, 28)]; lo = list(lateops); it = args.quiet if R != "S" else 0
    late_done = {}
    def takeD(c):
        c.append(('d', lo.pop(0)))
        if len(lo) % 4 == 0: late_done[late[len(late) - 1 - len(lo)//4]] = it
    while q or lo:
        c = []
        behind = q and q[0][1] - it < 8
        if q: c.append(q.pop(0))
        while len(c) < args.per and (q or lo):
            if q and (behind or not lo):
                if not behind and not lo and it >= 4 + args.quiet: break
                c.append(q.pop(0))
            else: takeD(c)
        for o in c:
            if o[0] == 'h': assert o[1] > it, ("h load late", o, it)
        plan[it] = c; it += 1
    for j in stay:
        p_ = slot_ if j not in reuse else max(4*reuse[j] + 3 + 2, slot_)
        if j in late_done: p_ = max(p_, late_done[j] + 8)
        p_ = min(p_, 26)
        dmove.setdefault(p_, []).append(j); slot_ = p_ + 2
        assert p_ + 1 < min(i for i in range(56) if hidx(i)[0]*7 + hidx(i)[1] == j), ("D move too late", j, p_)
    CB = args.chkB_i
    assert it <= CB, ("issue plan too long", it)
    pend = []
    def vm_(o):
        if o[0] == 'h': h_load(o[1])
        else: o[1]()
    def body(i, loads):
        for j in dmove.get(i, []):
            ops = d_reads(j, dplace[j])
            pend.append(lambda j=j, f=ops[0]: (g.need_vm([('D', j)]), f()))
            pend.extend(ops[1:])
        side = [lambda o=o: vm_(o) for o in loads] + list(extra.get(i, []))
        for nt in range(4):
            mf(i, nt)
            if args.st2 and nt == 0 and i in (0, 8): g.stamp(4 if i == 0 else 6)
            if side: side.pop(0)()
            elif pend: pend.pop(0)()
            if pend: pend.pop(0)()
        for f in side: f()
    def flush():
        while pend: pend.pop(0)()
        g.need_lg(g.lg[:])
    for i in range(CB):
        body(i, plan.get(i, []))
        if i == args.pollB: poll(vP2, vFl, sH, FS, 'pb')
    if args.st2: g.stamp(1)
    g.need_vm(['pb'])
    if args.st2: g.stamp(2)
    test(vP2, vFl, f"L_fastB{R}")
    sv = list(g.vm), list(g.lg), list(pend)
    poll(vP2, vFl, sH, FS, 'pb2')
    for i in range(CB, 28): body(i, [])
    flush()
    g.need_vm(['pb2'])
    test(vP2, vFl, f"L_pb{R}_ok")
    pr = [vT, vT2, vP1, vP2][:args.npoll]
    e(f"s_mov_b32 s{s_spin}, 0x20000")
    for r_ in pr[:-1]:
        poll(r_, vFl, sH, FS, 'x')
        if not args.nosl: e("s_sleep 1")
    g.lab(f"L_pb{R}")
    for k_ in range(len(pr)):
        poll(pr[k_ - 1], vFl, sH, FS, 'x')
        e(f"s_waitcnt vmcnt({len(pr) - 1})")
        test(pr[k_], vFl, f"L_pb{R}_ok")
    e(f"s_sub_u32 s{s_spin}, s{s_spin}, 1")
    e(f"s_cmp_lg_u32 s{s_spin}, 0")
    e(f"s_cbranch_scc1 L_pb{R}")
    g.lab(f"L_pb{R}_ok")
    g.vm = []
    g.stamp(13)
    for i in range(28, 28 + HD): h_load(i)
    e("s_branch L_B")
    g.lab(f"L_fastB{R}")
    g.vm, g.lg = sv[0], sv[1]; pend[:] = sv[2]
    q = list(range(28, 28 + HD)); per = -(-HD // (28 - CB))
    for i in range(CB, 28):
        body(i, [('h', q.pop(0)) for _ in range(min(per, len(q)))])
    assert not q
    flush()
    assert [t for t in g.vm if t[0] != 'h' or t[1] < 28] == [], g.vm

vm0 = list(g.vm)
def main_path(R):
    g.vm = list(vm0); g.lg = []
    L_ = R == "L"
    pre_ = args.l_pre if L_ else args.pre
    minlead_ = args.l_minlead if L_ else args.minlead
    maxlead_ = 999 if L_ else args.maxlead
    dstart_ = args.l_dstart if L_ else args.dstart
    issued = {m[1:3] for m in mand[:2]}
    rest = list(mand[2:])
    for (_, kind, n, where) in rest[:pre_ - 2]:
        assert (n < NW if kind == 'W' else n < NXB)
        for f in dma4(kind, n, where): f()
        issued.add((kind, n))
    rest = rest[pre_ - 2:]
    if args.touch and args.tpos == 1: touch(tn)
    g.stamp(2)
    rates = [int(x) for x in (args.l_rates if L_ and args.l_rates else args.rates).split(",")]
    slotc = {}
    for n in range(16):
        for i in range(rates[n]): slotc[32*n + START + (32*i)//rates[n]] = 1
    st = dict(credit=0, dnext=0, cur=None, nh=0, j=START)
    dma_q = []; lds_q = []; epi_q = []; misc_q = []
    wfree = {n: n < NW for n in range(16)}; xfree = {k: k < NXB for k in range(8)}
    dblocks = [('P', b_) for b_ in range(NXB, NP)]
    pending = []; dplace = {}; dland = []; dread_done = []; log = []; xdone = set(); xrel = []; inreg = []
    epiA_done = set()
    for mt in range(4):
        ops_ = epi_ops(ACC0, 0, mt, args.pk)
        ops_[-1] = (lambda f=ops_[-1], mt=mt: (f(), epiA_done.add(mt)))
        for f in ops_: epi_q.append(((done_at(0, mt) + 8) if args.mergeA else (done_at(0, 3) + 6), 'A', f))
    for mt in range(3):
        for f in epi_ops(ACC1, 1, mt, args.pk): epi_q.append((done_at(1, mt) + 8, 'B', f))
    bar_at = {p: n for n, p in bpos.items()}
    def release(kind, i):
        if kind == 'W':
            if i + NW < 16: wfree[i + NW] = True
            else: dblocks.append(('W', i % NW))
        else:
            if i + NXB < 8: xfree[i + NXB] = True
            else: dblocks.append(('P', i % NXB))
        dblocks.sort(key=lambda b_: b_[0] != 'P')
    def barrier(n):
        tags = [('W', n)] + [('X', k) for k in range(8) if first_k[k] == n]
        assert all(t in issued for t in tags), (R, n)
        g.need_vm(tags)
        for k in list(xrel):
            if args.lf: assert all((k, T, mt) in xdone for T in range(2) for mt in range(4))
            if args.lf or (all((k, T, mt) in xdone for T in range(2) for mt in range(4)) and not any(t_[0] == 'x' and t_[1] == k for t_ in g.lg[-6:])):
                g.need_lg([('x', k, T, mt) for T in range(2) for mt in range(4)])
                pending.append(('X', k)); xrel.remove(k)
        e("s_barrier")
        for kind, i in pending: release(kind, i)
        pending.clear()
        for k in range(8):
            if first_k[k] == n:
                xrel.append(k)
                for T, mt in sorted(((T, mt) for T in range(2) for mt in range(4)), key=lambda tm: min(j_ for j_, (i, m_) in enumerate(mseq) if m_ == tm[1] and uses[i][:2] == (n, tm[0]))):
                    if True:
                        def f(k=k, T=T, mt=mt):
                            assert k < NXK or st['j'] > xlast[k - NXK], ("x slot busy", k, st['j'])
                            r = ((k % NXK)*8 + T*4 + mt)*4
                            g.ds(f"ds_read_b128 {ar(r)}, v{vRX+T} offset:{(mt >> 1)*PWS + (mt & 1)*2048 + (k % NXB)*4096}", ('x', k, T, mt))
                            xdone.add((k, T, mt))
                        lds_q.append(('x', f))
                lds_q.sort(key=lambda o: o[0] != 'x')
    def wread(i, half):
        n, T, c = uses[i]
        fl, b = wbuf[i]; b += 2*half
        if i in wneed: assert wneed[i] in epiA_done, ('acc0 not free', i, st['j'])
        off = (n % NW) * 8192 + T * 4096 + (c & 1) * 1024 + 512*half
        g.ds(f"ds_read_b64_tr_b16 {fl}[{b}:{b+1}], v{vRW + (c >> 1)} offset:{off}", ('w', i))
    def pick(j):
        d = dorder[st['dnext']] if st['dnext'] < args.x_nd else None
        can_d = d is not None and dblocks and j >= dstart_
        for idx, (dl, kind, n, where) in enumerate(rest[:3]):
            ok = wfree[n] if kind == 'W' else xfree[n]
            lead = bpos[dl] - j
            extra = 16 if any(r_[0] == dl for r_ in rest[idx+1:idx+2]) else 0
            minl = max(minlead_, args.latelead) if dl >= args.latefrom else minlead_
            maxl = max(maxlead_, args.latelead + 16) if dl >= args.latefrom else maxlead_
            urgent = lead < minl + 16 + extra
            if ok and lead <= maxl + extra and (urgent or not can_d):
                rest.pop(idx); log.append(f"{kind}{n}@{j}(-{lead})")
                assert lead > 20, ("late", R, kind, n, j)
                return kind, n, where
            if not ok and lead < 48: return None
            if ok: break
        if can_d:
            blk = dblocks.pop(0 if d in early_ok else -1); st['dnext'] += 1; dplace[d] = blk; log.append(f"D{d}@{j}")
            return 'D', d, blk
        return None
    barrier(0)
    g.stamp(3)
    for j in range(START, NM):
        n0 = len(g.L)
        if j >= 0:
            i, mt = mseq[j]
            n, T, c = uses[i]
            s_, k = steps[n]
            assert (k, T, mt) in xdone, ("x read late", j)
            tg = [('w', i), ('x', k, T, mt)]
            if j == first_use[i] and i % args.wgrp == 0:
                tg += [('w', i_) for i_ in range(i, min(i + args.wgrp, NU)) if g.lg.count(('w', i_)) == 2]
            if mt == 0: tg += [('x', k, T, m_) for m_ in range(4)]
            g.need_lg(tg)
            acc = accr(ACC0 if s_ == 0 else ACC1, c, mt)
            cc = "0" if (k == 0 and T == 0) else vr(acc)
            e(f"{MF} {vr(acc)}, {wbuf[i][0]}[{wbuf[i][1]}:{wbuf[i][1]+3}], {ar(((k % NXK)*8 + T*4 + mt)*4)}, {cc}")
            if i == last_u[n] and j == first_use[i]: pending.append(('W', n))
            if args.fine:
                f0, fs = map(int, args.fine.split(","))
                if j >= f0 and (j - f0) % fs == 0 and (j - f0)//fs < 8: g.stamp(4 + (j - f0)//fs, True)
            elif args.stepstamps and j % 64 == 63: g.stamp(4 + j // 64, True)
            nxt_wait = j + 1 < NM and first_use[mseq[j+1][0]] == j + 1 and ('w', mseq[j+1][0]) in g.lg
            n0 = len(g.L) - (1 if nxt_wait else 0)
        used = lambda: len(g.L) - n0
        for i_, h_ in rsched.get(j, []): wread(i_, h_)
        if j in bar_at and bar_at[j] > 0: barrier(bar_at[j])
        if j == args.pollA_at: poll(vP1, vFl, sH, 0, 'pa')
        if j == args.chkA_at:
            assert not rest
            while misc_q: g.L += misc_q.pop(0)
            check_or_spin(f"L_pa{R}", vP1, 'pa', vFl, sH, 0)
            g.stamp(8)
        if j >= args.chkA_at and st['nh'] < args.hpre and not dma_q and (j - args.chkA_at) % 4 == 1:
            h_load(st['nh']); st['nh'] += 1
        if args.touch2 and j == int(args.touch2): touch(8 - tk0, tn)
        if j == args.mkat and not args.x_nomk: poll(vP1, vMk, sB, 0, 'mk')
        if j == args.flagA_at:
            assert not any(t_ == 'A' for _, t_, _ in epi_q)
            if not args.x_nomk: check_or_spin(f"L_mk{R}", vP1, 'mk', vMk, sB, 0)
            g.need_vm([('hs', 0)])
            flag_store(0)
            g.stamp(4)
        while dland and dland[0][0] <= j and not any(o[0] == 'd' for o in lds_q) and j < NM - 40 and not (args.mergeA and j <= endA and homes[dland[0][1]][0] == 'a' and homes[dland[0][1]][1] >= 192):
            _, it = dland.pop(0)
            ops = d_reads(it, dplace[it]); inreg.append(it)
            lds_q.append(('d', lambda it=it, f=ops[0]: (g.need_vm([('D', it)]), f())))
            for f in ops[1:-1]: lds_q.append(('d', f))
            lds_q.append(('d', lambda it=it, f=ops[-1]: (f(), dread_done.append((st['j'] + 8, it)))))
        st['j'] = j
        while dread_done and dread_done[0][0] <= j:
            _, it = dread_done.pop(0)
            g.need_lg([('Dr', it)]); dblocks.insert(0, dplace[it])
        if j in slotc: st['credit'] = min(st['credit'] + 1, 2)
        if lds_q and lds_q[0][0] == 'x' and used() < args.cap + 1: lds_q.pop(0)[1]()
        if not dma_q and (st['credit'] or any(j + q_ in slotc for q_ in (1, 2, 3))) and j < min(args.chkA_at - 12, args.dstop):
            p_ = pick(j)
            if p_: dma_q = dma_item(*p_); st['cur'] = p_
        while dma_q and dma_q[0][0] == 's' and used() < args.cap + (1 if st['credit'] >= 2 else 0): dma_q.pop(0)[1]()
        if dma_q and dma_q[0][0] == 'v' and st['credit'] and (used() + args.vcost <= args.cap or (st['credit'] >= 2 and used() <= args.cap)) and j < NM - 4 and not g.L[-1].strip().startswith("s_add_u32 m0"):
            dma_q.pop(0)[1](); st['credit'] -= 1
            n0 -= args.vcost - 1
            if not dma_q:
                issued.add(st['cur'][:2])
                if st['cur'][0] == 'D' and st['cur'][1] in early_ok: dland.append((j + (args.dlat if st['dnext'] <= 4 else args.dlat2), st['cur'][1]))
                if st['cur'][:2] == ('X', 7): rd2_setup()
                if st['cur'][0] == 'W' and not any(r_[1] == 'W' for r_ in rest):
                    n1 = len(g.L); rh_setup(); tl = g.L[n1:]; del g.L[n1:]
                    for q_ in range(0, len(tl), 3): misc_q.append(tl[q_:q_+3])
        if lds_q and len(g.lg) < 13 and used() < args.cap and j % 2: lds_q.pop(0)[1]()
        while epi_q and epi_q[0][0] <= j and used() < args.ecap: epi_q.pop(0)[2]()
        while lds_q and len(g.lg) < 13 and used() < args.cap: lds_q.pop(0)[1]()
        if misc_q and used() == 0: g.L += misc_q.pop(0)
    g.stamp(5)
    for t_ in misc_q: g.L += t_
    assert not rest
    for _, f in lds_q: f()
    for _, _, f in epi_q: f()
    e("s_nop 7")
    for f in epi_ops(ACC1, 1, 3, True): f()
    g.stamp(6)
    g.need_lg(g.lg[:])
    for _, it in dread_done: dblocks.append(dplace[it])
    e("s_barrier")
    assert not xrel
    for kind, i in pending: release(kind, i)
    for _, f in dma_q: f()
    post = dorder[st['dnext']:args.x_nd]
    sys.stderr.write(f"{R}: " + " ".join(log) + f"\n   inreg {inreg} post {post} nh {st['nh']}\n")
    lateops = []
    for n in post:
        dplace[n] = dblocks.pop(0)
        lateops += dma4('D', n, dplace[n])
    stay = [j for j in range(14) if j not in inreg and j in dorder[:args.x_nd]]
    assert len(set(dplace[j] for j in stay)) == len(stay)
    def do_flagB():
        g.need_vm([('hs', 1)])
        flag_store(1)
        g.stamp(7)
    extra = {1: [tail_setup]}
    nfirst = min(args.dfirst*4, len(lateops))
    fbd = False
    for i_ in range(nfirst):
        if i_ == args.pa2: poll(vP2, vFl, sH, 0, 'pa2')
        if args.flagB_i < 0 and i_ == -args.flagB_i:
            if args.pa3 >= 0:
                g.need_vm([('hs', 1)]); poll(vMk, vFl, sH, 0, 'pa3')
            do_flagB(); fbd = True
        lateops.pop(0)()
    post = post[nfirst//4:]
    if args.flagB_i < 0 and not fbd: do_flagB()
    if args.chkA_at >= NM:
        chain = [(vP1, 'pa')] + ([(vP2, 'pa2')] if args.pa2 >= 0 else []) + ([(vMk, 'pa3')] if args.pa3 >= 0 else [])
        svm = None
        for r_, t_ in chain[:-1]:
            g.need_vm([t_])
            if svm is None: svm = list(g.vm)
            test(r_, vFl, f"L_pa{R}_ok")
        check_or_spin(f"L_pa{R}", chain[-1][0], chain[-1][1], vFl, sH, 0, pre=(lambda: (g.need_vm([('hs', 1)]), flag_store(1))) if args.flagB_i >= 0 else None)
        if svm is not None: g.vm = svm
        g.stamp(8)
        while st['nh'] < args.hpre: h_load(st['nh']); st['nh'] += 1
    if args.flagB_i >= 0: extra.setdefault(args.flagB_i, []).append(do_flagB)
    phase2A(R, stay, dplace, lateops, post, st['nh'], extra)
    e("s_branch L_B")

xrel_log = {}
if args.lf:
    if args.lfsel == "x":
        e(f"s_lshr_b32 s{s_a}, s{s_xcd}, 1")
        e(f"s_cmp_lg_u32 s{s_w}, s{s_a}")
    else:
        e(f"s_cmp_lg_u32 s{s_w}, s{s_c}")
    e("s_cbranch_scc1 L_follow")
    main_path("L")
    g.lab("L_follow")
main_path("F")
stay = sorted(reuse); inreg = [j for j in range(14) if j not in stay]; dplace = {j: ('P', q_) for q_, j in enumerate(stay)}

g.lab("L_spare")
g.vm = []; g.lg = []
setup2()
after_kernarg()
g.stamp(1)
e(f"s_cmp_lg_u32 s{s_w}, 0")
e("s_cbranch_scc1 L_sp1")
e(f"s_lshl_b32 s{s_a}, s{s_m64}, 13")
e(f"s_add_u32 s{s_a}, s{s_a}, {FBASE}")
e(f"v_lshlrev_b32 v240, {10 if args.bits else 7}, v0")
e("v_mov_b32 v241, 0")
if args.bits: e("s_mov_b64 exec, 0xff")
e(f"buffer_store_dword v241, v240, {sr(sH)}, s{s_a} offen sc1")
if args.bits: e("s_mov_b64 exec, -1")
g.lab("L_sp1")
def sp_touch():
    e("v_min_u32 v240, 55, v0")
    e(f"s_lshl_b32 s{s_a}, s{s_m64}, 2")
    e(f"s_add_u32 s{s_a}, s{s_a}, s{s_w}")
    e(f"s_and_b32 s{s_b}, s{s_a}, 63")
    e(f"s_lshr_b32 s{s_a}, s{s_a}, 6")
    e(f"s_lshl_b32 s{s_a}, s{s_a}, 7")
    e(f"s_add_u32 s{s_a}, s{s_a}, s{s_b}")
    e(f"s_lshl_b32 s{s_a}, s{s_a}, 10")
    e("v_lshrrev_b32 v242, 3, v240")
    e("v_lshlrev_b32 v242, 18, v242")
    e("v_and_b32 v247, 7, v240")
    e("v_lshl_add_u32 v242, v247, 7, v242")
    g.vmem(f"buffer_load_dword v249, v242, {sr(sD)}, s{s_a} offen", "pf")
    e(f"s_add_u32 s{s_a}, s{s_a}, 65536")
    g.vmem(f"buffer_load_dword v250, v242, {sr(sD)}, s{s_a} offen", "pf")
npf = 0
if args.sppf >= 0:
    e(f"s_lshl_b32 s{s_a}, s{s_mb}, 2")
    e(f"s_add_u32 s{s_a}, s{s_a}, s{s_w}")
    e(f"s_add_u32 s{s_a}, s{s_a}, {64*args.sppf}")
    e(f"s_mul_i32 s{s_a}, s{s_a}, 3584")
    e(f"s_and_b32 s{s_b}, s{s_xcd}, 1")
    e(f"s_mul_i32 s{s_b}, s{s_b}, 1792")
    e(f"s_add_u32 s{s_a}, s{s_a}, s{s_b}")
    e(f"s_lshl_b32 s{s_b}, s{s_m64}, 2")
    e(f"s_add_u32 s{s_b}, s{s_b}, s{s_w}")
    e(f"s_lshl_b32 s{s_b}, s{s_b}, 14")
    e(f"s_add_u32 s{s_b}, s{s_b}, {128*args.sppf - 28*1024 + (1 << 32)}")
    e("v_lshlrev_b32 v243, 10, v0")
    e(f"v_add_u32 v243, s{s_b}, v243")
    e(f"v_mov_b32 v252, s{sX}")
    e(f"v_mov_b32 v253, s{sX+1}")
    e("v_mov_b32 v254, 128")
    e("s_mov_b64 exec, 0xfffffff")
    e("v_lshlrev_b32 v243, 7, v0")
    e(f"s_sub_u32 s{s_b}, s{s_a}, {14*128 - 1024}")
    e(f"v_add_u32 v243, s{s_b}, v243")
    e(f"v_mov_b32 v252, s{sU}")
    e(f"v_mov_b32 v253, s{sU+1}")
    e(f"v_mov_b32 v254, {64*3584}")
    e("s_mov_b64 exec, 0x3fff")
    e("v_lshlrev_b32 v243, 7, v0")
    e(f"v_add_u32 v243, s{s_a}, v243")
    e(f"v_mov_b32 v252, s{sG}")
    e(f"v_mov_b32 v253, s{sG+1}")
    e("s_mov_b32 exec_lo, -1")
    e("s_mov_b32 exec_hi, 0xfff")
    e("v_add_co_u32 v252, vcc, v252, v243")
    e("v_addc_co_u32 v253, vcc, 0, v253, vcc")
    for kb in range(args.sppf, 8):
        if kb == args.sppfd:
            e("s_mov_b64 exec, -1"); sp_touch(); npf += 2
            e("s_mov_b32 exec_hi, 0xfff")
        g.vmem("global_load_dword v251, v[252:253], off", "pf"); npf += 1
        if kb < 7:
            e("v_add_co_u32 v252, vcc, v252, v254")
            e("v_addc_co_u32 v253, vcc, 0, v253, vcc")
    e("s_mov_b64 exec, -1")
def s3_touch():
    e(f"s_lshl_b32 s{s_a}, s{s_c}, 2")
    e(f"s_add_u32 s{s_a}, s{s_a}, s{s_w}")
    e(f"s_and_b32 s{s_b}, s{s_xcd}, 1")
    e(f"s_mul_i32 s{s_b}, s{s_b}, 3")
    e("v_bfe_u32 v243, v0, 1, 2")
    e(f"v_add_u32 v243, s{s_b}, v243")
    e("v_and_b32 v244, 1, v243")
    e("v_lshrrev_b32 v245, 3, v0")
    e("v_lshl_add_u32 v244, v245, 6, v244")
    e("v_and_b32 v245, 1, v0")
    e("v_lshl_add_u32 v244, v245, 1, v244")
    e("v_mul_u32_u24 v244, 3584, v244")
    e("v_lshl_add_u32 v244, v243, 9, v244")
    e(f"s_mul_i32 s{s_b}, s{s_a}, {4*3584}")
    g.vmem(f"buffer_load_dword v251, v244, {sr(sG)}, s{s_b} offen offset:384", "pf")
    g.vmem(f"buffer_load_dword v252, v244, {sr(sU)}, s{s_b} offen offset:{384+1024}", "pf")
    e(f"s_lshr_b32 s{s_b}, s{s_xcd}, 1")
    e(f"s_lshl_b32 s{s_b}, s{s_b}, 4")
    e(f"s_add_u32 s{s_b}, s{s_b}, s{s_a}")
    e(f"s_lshl_b32 s{s_b}, s{s_b}, 15")
    e("v_lshlrev_b32 v244, 10, v0")
    e("s_mov_b32 exec_hi, 0")
    g.vmem(f"buffer_load_dword v253, v244, {sr(sX)}, s{s_b} offen offset:384", "pf")
    e("s_mov_b64 exec, -1")
def s3_late(p0, np_):
    e(f"s_lshl_b32 s{s_a}, s{s_c}, 2")
    e(f"s_add_u32 s{s_a}, s{s_a}, s{s_w}")
    e(f"s_and_b32 s{s_b}, s{s_xcd}, 1")
    e(f"s_mul_i32 s{s_b}, s{s_b}, 3")
    e("v_bfe_u32 v243, v0, 1, 2")
    e(f"v_add_u32 v243, s{s_b}, v243")
    e("v_and_b32 v244, 1, v243")
    e("v_lshrrev_b32 v245, 3, v0")
    e("v_lshlrev_b32 v245, 2, v245")
    e(f"v_add_u32 v245, {4*p0}, v245")
    e(f"v_bfe_u32 v245, s{s_kr}, v245, 3")
    e("v_lshl_add_u32 v244, v245, 6, v244")
    e("v_and_b32 v245, 1, v0")
    e("v_lshl_add_u32 v244, v245, 1, v244")
    e("v_mul_u32_u24 v244, 3584, v244")
    e("v_lshl_add_u32 v244, v243, 9, v244")
    e(f"s_mul_i32 s{s_b}, s{s_a}, {4*3584}")
    mk = (1 << (8*np_)) - 1
    e(f"s_mov_b32 exec_lo, {mk & 0xffffffff}")
    e(f"s_mov_b32 exec_hi, {mk >> 32}")
    g.vmem(f"buffer_load_dword v251, v244, {sr(sG)}, s{s_b} offen offset:384", "pf")
    g.vmem(f"buffer_load_dword v252, v244, {sr(sU)}, s{s_b} offen offset:{384+1024}", "pf")
    e("s_mov_b64 exec, -1")
s3l = {}
for t_ in args.s3late.split(";"):
    if t_:
        q0, p0, np_ = map(int, t_.split(",")); s3l[q0] = (p0, np_)
if args.s3pf == 1: s3_touch(); npf += 3
if not args.nomall and args.spt == 0:
    if not (args.sppf <= args.sppfd < 8): sp_touch(); npf += 2
    if args.s3pf == 2: s3_touch(); npf += 3
    e(f"s_waitcnt vmcnt({npf})")
else:
    e("s_waitcnt vmcnt(0)")
e(f"s_cmp_lg_u32 s{s_w}, 0")
e("s_cbranch_scc1 L_sp2")
e(f"s_lshl_b32 s{s_a}, s{s_m64}, 2")
e(f"v_mov_b32 v247, s{s_a}")
e("v_mov_b32 v248, 1")
e("s_mov_b64 exec, 1")
e(f"buffer_store_dword v248, v247, {sr(sB)}, 0 offen sc1")
e("s_mov_b64 exec, -1")
g.lab("L_sp2")
g.stamp(4)
late_addr_setup(True)
rh_setup()
free2 = [('P', NP - 1), ('P', NP - 2)]
assert len(stay) <= NP - 2
prev = None
for q_, j in enumerate(dorder):
    if q_ >= args.x_nd and j not in stay: continue
    if not args.nomall and args.spt and q_ == args.spt: sp_touch()
    if q_ in s3l: s3_late(*s3l[q_])
    blk = dplace[j] if j in stay else free2[q_ % 2]
    for f in dma4('D', j, blk):
        f()
        if len(g.vm) > args.sppace:
            e(f"s_waitcnt vmcnt({args.sppace})"); g.vm = g.vm[-args.sppace:] if args.sppace else []
    if prev is not None:
        g.need_vm([('D', prev[0])])
        for f in d_reads(*prev): f()
        g.need_lg(g.lg[:])
    prev = (j, blk) if j in inreg else None
if prev is not None:
    g.need_vm([('D', prev[0])])
    for f in d_reads(*prev): f()
    g.need_lg(g.lg[:])
e(f"s_lshl_b32 s{s_a}, s{s_m64}, 2")
e(f"v_mov_b32 v{vMk}, s{s_a}")
if args.x_spdelay:
    e("s_waitcnt vmcnt(0)")
    e(f"s_mov_b32 s{s_spin}, {args.x_spdelay}")
    g.lab("L_xd")
    if args.x_spkind == "sleep": e("s_sleep 8")
    e(f"s_sub_u32 s{s_spin}, s{s_spin}, 1")
    e(f"s_cmp_lg_u32 s{s_spin}, 0")
    e("s_cbranch_scc1 L_xd")
if args.spbar:
    e("s_waitcnt vmcnt(0)")
    e("s_barrier")
    g.vm = []
else:
    spin("L_smk", vMk, sB, 0, sleep=8)
g.stamp(5)
spin("L_spa", vFl, sH, 0, sleep=args.spsleep)
g.stamp(8)
for i in range(HD): h_load(i)
g.lg = []
phase2A("S", stay, dplace, [], [], HD, {0: [tail_setup]})

g.lab("L_B")
g.stamp(9)
g.vm = [('h', i) for i in range(28, 28 + HD)]; g.lg = []
def wr(lam, a):
    r = ACC2 + lam*16 + a*4
    g.ds(f"ds_write_b128 v{vTW}, {vr(r)} offset:{(lam-1)*4096 + a*1024}", ('wr', lam))
def rd(sl, a):
    g.ds(f"ds_read_b128 {vr(ACC2 + 16 + 4*(sl*4+a))}, v{vTR+sl} offset:{a*1024}", ('rd', sl*4+a))
def padd(d, t):
    e(f"v_pk_add_f32 v[{d}:{d+1}], v[{d}:{d+1}], v[{t}:{t+1}]")
    e(f"v_pk_add_f32 v[{d+2}:{d+3}], v[{d+2}:{d+3}], v[{t+2}:{t+3}]")
def sync():
    g.need_lg(g.lg[:]); e("s_barrier")
    for a in range(4):
        for sl in range(3): rd(sl, a)
def sum_(a):
    g.need_lg([('rd', 8 + a)])
    padd(ACC2 + 16 + 4*a, ACC2 + 32 + 4*a); padd(ACC2 + 16 + 4*a, ACC2 + 48 + 4*a)
side = {}
for lam in (1, 2):
    for a in range(4): side.setdefault((28 + 7*lam + 2 + a, 1), []).append(lambda lam=lam, a=a: wr(lam, a))
for a in range(4): side.setdefault((51, a), []).append(lambda a=a: wr(3, a))
side.setdefault((53, 1), []).append(sync)
nxt = 28 + HD
for i in range(28, 56):
    for nt in range(4):
        mf(i, nt)
        if nt == 0 and nxt < 56: h_load(nxt); nxt += 1
        for f in side.get((i, nt), []): f()
g.stamp(10)
for a in range(4): sum_(a)
for a in range(4): padd(ACC2 + 4*a, ACC2 + 16 + 4*a)
for i in range(8):
    e(f"v_cvt_pk_bf16_f32 v{EPI+i}, v{ACC2+2*i}, v{ACC2+2*i+1}")
e("s_nop 1")
e(f"v_permlane16_swap_b32 v{EPI}, v{EPI+2}")
e(f"v_permlane16_swap_b32 v{EPI+1}, v{EPI+3}")
e(f"v_permlane16_swap_b32 v{EPI+4}, v{EPI+6}")
e(f"v_permlane16_swap_b32 v{EPI+5}, v{EPI+7}")
e(f"buffer_store_dwordx4 {vr(EPI)}, v{vTO}, {sr(sO)}, s{s_oadr} offen {args.outflags}")
e(f"buffer_store_dwordx4 {vr(EPI+4)}, v{vTO}, {sr(sO)}, s{s_oadr} offen offset:64 {args.outflags}")
if args.stamps:
    g.stamp(11)
    e("s_waitcnt vmcnt(0)")
    g.stamp(12)
    e("s_waitcnt lgkmcnt(0)")
if args.diag:
    a_, b_, K_, wg_ = map(int, args.diag.split(","))
    if wg_ >= 0: e(f"s_cmp_lg_u32 s2, {wg_}")
    else: e(f"s_cmp_eq_u32 s{s_col}, 0")
    e("s_cbranch_scc1 L_end")
    e(f"s_sub_u32 s46, s{s_st+2*b_}, s{s_st+2*a_}")
    e(f"s_mul_i32 s46, s46, {K_}")
    e(f"s_add_u32 s46, s46, 5000")
    e(f"s_min_u32 s46, s46, 100000")
    g.lab("L_diag")
    e("s_memrealtime s[48:49]")
    e("s_waitcnt lgkmcnt(0)")
    e(f"s_sub_u32 s47, s48, s{s_st}")
    e("s_cmp_lt_u32 s47, s46")
    e("s_cbranch_scc1 L_diag")
elif args.stamps:
    NS = 14
    for i in range(2*NS): e(f"v_mov_b32 v{64+i}, s{s_st+i}")
    e(f"s_lshl_b32 s46, s2, 2")
    e(f"s_add_u32 s46, s46, s{s_w}")
    e(f"s_mul_i32 s46, s46, {NS*8}")
    e(f"s_add_u32 s46, s46, {STAMP_OFF}")
    e("v_mov_b32 v5, 0")
    e("s_mov_b64 exec, 1")
    for i in range(NS//2): e(f"buffer_store_dwordx4 {vr(64+4*i)}, v5, {sr(sH)}, s46 offen offset:{16*i}")
g.lab("L_end")
e("s_endpgm")
g.lab("L_codeend")

hdr = f"""; Fused bilinear GLU: out = ((x Wg) * (x Wu)) Wd   (generated)
; @launch grid=(256,1,1) block=(256,1,1) lds={LDS}
.amdgcn_target "amdgcn-amd-amdhsa--gfx950"
.text
""" + (f".p2align {args.talign}\n" if args.talign else "") + (f"    s_endpgm\n.fill {args.tpad//4 - 1}, 4, 0xbf800000\n" if args.tpad else "") + f""".globl {KN}
.p2align 8
.type {KN},@function
{KN}:"""
tail = f""".section .rodata,"a"
.p2align {args.kdalign}
.amdhsa_kernel {KN}
  .amdhsa_next_free_vgpr 512
  .amdhsa_next_free_sgpr 102
  .amdhsa_accum_offset 256
  .amdhsa_group_segment_fixed_size 0
  .amdhsa_kernarg_size 56
  .amdhsa_user_sgpr_count 2
  .amdhsa_user_sgpr_kernarg_segment_ptr 1
  .amdhsa_system_sgpr_workgroup_id_x 1
""" + ("  .amdhsa_float_denorm_mode_32 3\n" if args.denorm else "") + """.end_amdhsa_kernel"""
print(hdr); print("\n".join(g.L)); print(tail)
```

```python
import sys, argparse

ap = argparse.ArgumentParser()
A = ap.add_argument
A("--stamps", action="store_true"); A("--stepstamps", action="store_true"); A("--cycstamps", action="store_true")
A("--st2", action="store_true"); A("--diag", default="")
A("--la", type=int, default=16)
A("--cap", type=int, default=2); A("--ecap", type=int, default=4)
A("--outflags", default=""); A("--noprefetch", action="store_true"); A("--nomall", action="store_true")
A("--order", default="0101001010001111"); A("--nxk", type=int, default=4)
A("--merge", type=int, default=2); A("--mtm", type=int, default=8)
A("--hdepth", type=int, default=12); A("--pollB", type=int, default=12); A("--chkB_i", type=int, default=20)
A("--mkat", type=int, default=256); A("--spsleep", type=int, default=8); A("--sppace", type=int, default=4)
A("--flagA_at", type=int, default=442); A("--pollA_at", type=int, default=508); A("--chkA_at", type=int, default=512)
A("--hpre", type=int, default=10); A("--dfirst", type=int, default=3); A("--flagB_i", type=int, default=-10)
A("--quiet", type=int, default=0); A("--dstop", type=int, default=496); A("--npoll", type=int, default=3); A("--per", type=int, default=2)
A("--nw", type=int, default=5); A("--nxb", type=int, default=3)
A("--rates", default="7,7,7,8,8,8,8,8,8,8,8,8,7,7,7,7"); A("--pre", type=int, default=4)
A("--minlead", type=int, default=56); A("--dstart", type=int, default=120); A("--dlat", type=int, default=64)
A("--latelead", type=int, default=80); A("--latefrom", type=int, default=13)
A("--spt", type=int, default=0)
A("--early", type=int, default=16)
A("--dorder", default="0,1,7,8,2,3,4,5,6,9,10,11,12,13")
A("--oldmerge", action="store_true")
A("--dlat2", type=int, default=28)
A("--vcost", type=int, default=2)
A("--wgrp", type=int, default=2)
A("--sppf", type=int, default=-1)
A("--sppfd", type=int, default=99)
A("--perm", default="01234567,23016745,45670123,67452301")
A("--pfq", type=int, default=0)
A("--mergeA", type=int, default=0)
A("--s3pf", type=int, default=0)
A("--lf", action="store_true")
A("--l_rates", default=""); A("--l_pre", type=int, default=6); A("--l_minlead", type=int, default=100); A("--l_dstart", type=int, default=100)
A("--maxlead", type=int, default=999)
A("--touch", default="")
A("--tpos", type=int, default=0)
A("--touch2", default="")
A("--x_nd", type=int, default=14)
A("--fine", default="")
A("--rotc", type=int, default=2)
A("--pk", action="store_true")
A("--lfsel", default="c")
A("--swap", type=int, default=0)
A("--x_spdelay", type=int, default=0)
A("--x_spkind", default="")
A("--x_nomk", action="store_true")
A("--spbar", action="store_true")
A("--nt", default="")
A("--hnt", action="store_true")
A("--map", type=int, default=4)
A("--nosl", action="store_true")
A("--denorm", action="store_true")
A("--s3late", default="")
A("--talign", type=int, default=0)
A("--tpad", type=int, default=0)
A("--kdalign", type=int, default=6)
A("--pa2", type=int, default=-1)
A("--pa3", type=int, default=-1)
A("--ldtags", default="")
A("--bits", action="store_true")
A("--tlb", type=int, default=-999)
A("--sp1", default="")
A("--pollmode", default="atomic"); A("--krot", type=int, default=1); A("--nos3", action="store_true")
args = ap.parse_args()
if args.diag: args.stamps = True
assert args.pollA_at > args.flagA_at > args.mkat

KN = "standalone__glu_gated_bilinear__prompt_kernel"
NW = args.nw; NP = 10 - NW; NXB = args.nxb
HFS = NW * 8192; PB = 2 * HFS; PWS = NP * 4096; LDS = PB + 4 * PWS
assert LDS == 163840 and NP >= 3
FBASE = 0x1000000; STAMP_OFF = 0x8000000; FS = 1024
HM, HQ, HS, HP = 458752, 114688, 57344, 8192
LA = args.la; NBUF = 8; NM = 512

sX, sG, sU, sD, sH, sO, sB = 8, 12, 16, 20, 24, 28, 32
s_w, s_mb, s_fb, s_m64, s_n64 = 36, 37, 38, 39, 40
s_xoff, s_woff, s_doff = 41, 42, 43
s_mP, s_mW = 44, 45
s_t0, s_t1, s_t2, s_t3 = 46, 47, 48, 49
s_hst, s_spin, s_hld, s_flag = 50, 51, 52, 53
s_oadr, s_xcd, s_col, s_c = 54, 55, 56, 57
s_a, s_b = 58, 59
s_st = 60
s_rh, s_rd = 88, 95
s_kr = 6
s_bit = 5
s_mX = 7
wtab = [88, 89, 90, 91, 92, 93, 94, 49]
vX, vW, vD = 1, 5, 9
vRW, vRX, vRD, vH = 13, 15, 17, 21
vL16, vFl, vMk, vT, vT2, vP1, vP2 = 25, 26, 27, 28, 29, 30, 31
vRD2 = 1
vTR, vTW, vTO = 5, 8, 13
WBUF = 32
ACC0, ACC1 = 64, 128
ACC2 = ACC0
HB = 128
EPI = 240
NXK = args.nxk
NREG = 3 + (256 - 32*NXK)//16

class G:
    def __init__(s): s.L = []; s.lg = []; s.vm = []
    def e(s, t): s.L.append("    " + t)
    def lab(s, t): s.L.append(t + ":")
    def ds(s, t, tag):
        if len(s.lg) >= 14:
            s.e("s_waitcnt lgkmcnt(12)"); s.lg = s.lg[-12:]
        s.e(t); s.lg.append(tag)
    def vmem(s, t, tag): s.e(t); s.vm.append(tag); assert len(s.vm) <= 63, "vm overflow"
    def need_lg(s, tags):
        idx = max((i for i, t in enumerate(s.lg) if t in tags), default=-1)
        if idx >= 0:
            s.e(f"s_waitcnt lgkmcnt({len(s.lg)-1-idx})"); s.lg = s.lg[idx+1:]
    def need_vm(s, tags):
        idx = max((i for i, t in enumerate(s.vm) if t in tags), default=-1)
        if idx >= 0:
            s.e(f"s_waitcnt vmcnt({len(s.vm)-1-idx})"); s.vm = s.vm[idx+1:]
    def stamp(s, k, force=False):
        if args.stepstamps and 4 <= k <= 11 and not force: return
        if args.stamps: s.e(("s_memtime" if args.cycstamps else "s_memrealtime") + f" s[{s_st+2*k}:{s_st+2*k+1}]")
g = G(); e = g.e
def vr(b, n=4): return f"v[{b}:{b+n-1}]"
def ar(b, n=4): return f"a[{b}:{b+n-1}]"
def sr(b, n=4): return f"s[{b}:{b+n-1}]"
MF = "v_mfma_f32_16x16x32_bf16"

order = [int(c) for c in args.order]
assert len(order) == 16 and sum(order) == 8
steps = []; cnt = [0, 0]
for s_ in order: steps.append((s_, cnt[s_])); cnt[s_] += 1
first_k = {}
for n, (s_, k) in enumerate(steps): first_k.setdefault(k, n)
last_k = {k: max(n for n, (s_, kk) in enumerate(steps) if kk == k) for k in range(8)}
uses = []
mseq = []
nm = 16 - args.merge
lastA = max(n for n in range(16) if steps[n][0] == 0)
regA = list(range(lastA + 1 - args.mergeA, lastA + 1)); regB = list(range(nm, 16))
assert all(steps[n][0] == 0 for n in regA) and all(steps[n][0] == 1 for n in regB) and args.merge <= 2 and args.mergeA <= 2
def accr(acc, c, mt): return acc + (c*4 + mt)*4
wbuf = {}; wneed = {}; region_of = {}; ringprev = {}; ring = []
n = 0
while n < 16:
    reg = regA if regA and n == regA[0] else (regB if regB and n == regB[0] else None)
    if reg:
        b0 = len(uses)
        for n_ in reg:
            for T in range(2):
                for c in range(4):
                    q_ = len(uses) - b0; i_ = len(uses); uses.append((n_, T, c)); region_of[i_] = (b0, 8*len(reg))
                    if reg is regB: wbuf[i_] = ("v", accr(ACC0, q_ % 4, q_ // 4)); wneed[i_] = q_ // 4
                    else: wbuf[i_] = ("a", 192 + 4*q_)
        mseq += [(i, mt) for mt in range(4) for i in range(b0, len(uses))]
        n = reg[-1] + 1
    else:
        for T in range(2):
            for c in range(4):
                i_ = len(uses); uses.append((n, T, c)); mseq += [(i_, mt) for mt in range(4)]
                wbuf[i_] = ("v", WBUF + (len(ring) % NBUF)*4)
                if len(ring) >= NBUF: ringprev[i_] = ring[-NBUF]
                ring.append(i_)
        n += 1
assert len(mseq) == NM
NU = len(uses)
first_use = {}
for j_, (i_, mt_) in enumerate(mseq): first_use.setdefault(i_, j_)
last_use = {i_: j_ for j_, (i_, mt_) in enumerate(mseq)}
rsched = {}; rpos = {}
for i_ in range(NU):
    p_ = first_use[i_] - LA
    if i_ in region_of:
        b0, ln = region_of[i_]
        p_ = first_use[b0] - LA - args.early + ((i_ - b0)*(ln + args.early))//ln
    if i_ in ringprev: p_ = max(p_, last_use[ringprev[i_]] + 1)
    p2 = p_ + (2 if i_ not in region_of else 1)
    assert p2 <= first_use[i_] - 5, ("w read late", i_)
    rsched.setdefault(p_, []).append((i_, 0)); rsched.setdefault(p2, []).append((i_, 1)); rpos[i_] = p_
endA = max(last_use[i] for i in range(NU) if uses[i][0] == lastA)
xlast = {k: max(j_ for j_, (i, mt) in enumerate(mseq) if steps[uses[i][0]][1] == k) for k in range(8)}
first_u = {n: min(i for i, u in enumerate(uses) if u[0] == n) for n in range(16)}
last_u = {n: max(i for i, u in enumerate(uses) if u[0] == n) for n in range(16)}
bpos = {n: rpos[first_u[n]] - 1 for n in range(16)}
START = -LA
def done_at(s_, mt): return max(j for j, (i, m_) in enumerate(mseq) if m_ == mt and steps[uses[i][0]][0] == s_)
busy = sorted({steps[uses[i][0]][1] % NXK for j_, (i, mt) in enumerate(mseq) if j_ >= min(args.chkA_at, NM - 1) - 4})
slots_order = [s_ for s_ in range(NXK) if s_ not in busy] + busy
xregs = [32*s_ + 4*q for s_ in slots_order for q in range(8)]
hreg = xregs[:28]
NFREE = 8*(NXK - len(busy))
spare16 = xregs[28:]
dorder = [int(x) for x in args.dorder.split(",")]
assert sorted(dorder) == list(range(14))
ahomes = [("a", 32*NXK + 16*j) for j in range(NREG - 3)]
phomes = []
for j in range(len(spare16)//4):
    grp = spare16[4*j:4*j+4]
    assert grp == [grp[0] + 4*q for q in range(4)]
    phomes.append(("a", grp[0]))
homes = {j: ("v", 192 + 16*j) for j in range(3)}
early_ok = {0, 1, 2}
reuse = {}; rq = []
for j in dorder:
    if j < 3: continue
    if ahomes: homes[j] = ahomes.pop(0); early_ok.add(j)
    elif phomes: homes[j] = phomes.pop(0)
    else: rq.append(j)
for q_, j in enumerate(sorted(rq)):
    assert j >= 7 and 3 + q_ in homes
    reuse[j] = 3 + q_; homes[j] = homes[3 + q_]
assert args.hpre <= NFREE or args.chkA_at >= NM

g.stamp(0)
for b_, o_ in ((sX, 0), (sG, 8), (sU, 16), (sD, 24), (sO, 32), (sB, 40), (sH, 48)):
    e(f"s_load_dwordx2 s[{b_}:{b_+1}], s[0:1], {o_}")
e("s_cmp_ge_u32 s2, 256")
e("s_cbranch_scc1 L_end")
if not args.noprefetch and args.pfq == 3:
    assert not args.lf
    e("s_getpc_b64 s[4:5]")
    e("s_and_b32 s4, s4, 0xffffff00")
    e("v_lshlrev_b32 v30, 7, v0")
    e("v_mov_b32 v29, s5")
    e("v_add_co_u32 v28, vcc, s4, v30")
    e("v_addc_co_u32 v29, vcc, 0, v29, vcc")
    e(f"v_cmp_gt_u32 vcc, L_codeend-{KN}, v30")
    e("s_and_saveexec_b64 s[4:5], vcc")
    e("s_cbranch_execz L_nopf")
    e("global_load_dword v31, v[28:29], off")
    g.lab("L_nopf")
    e("s_mov_b64 exec, -1")
elif not args.noprefetch:
    e("s_getpc_b64 s[4:5]")
    e("s_and_b32 s4, s4, 0xffffff00")
    e(f"s_mov_b32 s6, L_codeend-{KN}")
    e("s_mov_b32 s7, 0x20000")
    if args.pfq == 1:
        e("s_bfe_u32 s3, s2, 0x20003")
        e("s_lshl_b32 s3, s3, 7")
        e("v_lshrrev_b32 v30, 6, v0")
        e("v_and_b32 v29, 15, v0")
        e("v_lshl_add_u32 v30, v30, 4, v29")
        e("v_lshlrev_b32 v30, 9, v30")
        e("s_mov_b64 exec, 0xffff")
        g.vmem("buffer_load_dword v31, v30, s[4:7], s3 offen", "pf")
        e("s_mov_b64 exec, -1")
    elif args.pfq == 2:
        e("s_cmp_lt_u32 s2, 32")
        e("s_cselect_b32 s6, s6, 0")
        e("v_lshlrev_b32 v30, 7, v0")
        g.vmem("buffer_load_dword v31, v30, s[4:7], 0 offen", "pf")
    else:
        e("v_lshlrev_b32 v30, 7, v0")
        g.vmem("buffer_load_dword v31, v30, s[4:7], 0 offen", "pf")
        if args.lf:
            e("v_add_u32 v30, 0x8000, v30")
            g.vmem("buffer_load_dword v31, v30, s[4:7], 0 offen", "pf")
e("v_lshrrev_b32 v30, 6, v0")
e("v_and_b32 v0, 63, v0")
e(f"v_readfirstlane_b32 s{s_w}, v30")
e(f"s_and_b32 s{s_xcd}, s2, 7")
e(f"s_bfe_u32 s{s_c}, s2, 0x20003")
e(f"s_lshr_b32 s{s_col}, s2, 5")
if args.map == 2:
    e(f"s_lshl_b32 s{s_mb}, s{s_xcd}, 1")
    e(f"s_and_b32 s{s_fb}, s{s_c}, 1")
    e(f"s_add_u32 s{s_mb}, s{s_mb}, s{s_fb}")
    e(f"s_lshr_b32 s{s_fb}, s{s_c}, 1")
else:
    e(f"s_lshr_b32 s{s_mb}, s{s_xcd}, 1")
    e(f"s_lshl_b32 s{s_mb}, s{s_mb}, 2")
    e(f"s_add_u32 s{s_mb}, s{s_mb}, s{s_c}")
    e(f"s_and_b32 s{s_fb}, s{s_xcd}, 1")
e(f"s_mul_i32 s{s_fb}, s{s_fb}, 7")
e(f"s_add_u32 s{s_fb}, s{s_fb}, s{s_col}")
e(f"s_sub_u32 s{s_fb}, s{s_fb}, 1")
e("v_lshrrev_b32 v240, 3, v0")
e("v_and_b32 v241, 7, v0")
e("v_lshrrev_b32 v242, 4, v0")
e(f"s_xor_b32 s{s_b}, s{s_w}, s{s_col}")
e(f"s_and_b32 s{s_b}, s{s_b}, 3")
e(f"s_mul_i32 s{s_mX}, s{s_b}, {PWS}")
e(f"s_add_u32 s{s_mX}, s{s_mX}, {PB}")
e(f"s_lshl_b32 s{s_a}, s{s_b}, 15")
e("v_xor_b32 v243, v241, v242")
e("v_lshlrev_b32 v243, 4, v243")
e(f"v_lshl_add_u32 v{vX}, v240, 10, v243")
e(f"v_add_u32 v{vX}, s{s_a}, v{vX}")
e(f"v_xor_b32 v{vX+1}, 64, v{vX}")
e(f"v_add_u32 v{vX+1}, {7*1024}, v{vX+1}")
e(f"v_add_u32 v{vX+2}, {14*1024}, v{vX}")
e(f"v_add_u32 v{vX+3}, {14*1024}, v{vX+1}")
e(f"s_lshr_b32 s{s_a}, s{s_w}, 1")
e(f"s_lshl_b32 s{s_a}, s{s_a}, 5")
e(f"s_and_b32 s{s_b}, s{s_w}, 1")
e(f"s_lshl_b32 s{s_t0}, s{s_b}, 3")
e(f"s_add_u32 s{s_a}, s{s_a}, s{s_t0}")
e(f"s_mul_i32 s{s_a}, s{s_a}, 3584")
e(f"s_lshl_b32 s{s_b}, s{s_b}, 6")
e(f"v_mul_u32_u24 v{vW}, 3584, v240")
e("v_and_b32 v244, 1, v242")
e("v_lshlrev_b32 v245, 4, v241")
e("v_lshlrev_b32 v246, 5, v244")
e("v_xor_b32 v246, v245, v246")
e(f"v_xor_b32 v246, s{s_b}, v246")
if args.swap:
    if args.swap == 1:
        e(f"s_lshr_b32 s{s_t0}, s{s_fb}, 1")
        e(f"s_and_b32 s{s_t0}, s{s_t0}, s{s_fb}")
    else: e(f"s_mov_b32 s{s_t0}, s{s_fb}")
    e(f"s_and_b32 s{s_t0}, s{s_t0}, 1")
    e(f"s_lshl_b32 s{s_t0}, s{s_t0}, 7")
    e(f"s_add_u32 s{s_a}, s{s_a}, s{s_t0}")
e(f"v_add3_u32 v{vW}, v{vW}, v246, s{s_a}")
e(f"v_add_u32 v{vW+2}, {16*3584-2048}, v{vW}")
e(f"s_and_b32 s{s_b}, s{s_w}, 1")
e(f"s_mul_i32 s{s_mW}, s{s_b}, {HFS}")
e(f"s_lshr_b32 s{s_a}, s{s_w}, 1")
e(f"s_lshl_b32 s{s_a}, s{s_a}, 12")
e(f"s_add_u32 s{s_mW}, s{s_mW}, s{s_a}")
perms = [[int(c) for c in p] for p in args.perm.split(",")]
assert all(sorted(p) == list(range(8)) for p in perms) and len(perms) in (4, 8)
pk = [sum(v << (4*i) for i, v in enumerate(p)) for p in perms]
if len(perms) == 4:
    e(f"s_lshr_b32 s{s_a}, s{s_xcd}, 1")
    e(f"s_and_b32 s{s_b}, s{s_xcd}, 1")
    e(f"s_lshl_b32 s{s_b}, s{s_b}, 1")
    e(f"s_xor_b32 s{s_a}, s{s_a}, s{s_b}")
else:
    e(f"s_mov_b32 s{s_a}, s{s_xcd}")
e(f"s_mov_b32 s{s_kr}, {pk[0]}")
for q_ in range(1, len(perms)):
    e(f"s_cmp_eq_u32 s{s_a}, {q_}")
    e(f"s_cselect_b32 s{s_kr}, {pk[q_]}, s{s_kr}")
e(f"s_lshl_b32 s{s_xoff}, s{s_mb}, 17")
e(f"s_lshl_b32 s{s_woff}, s{s_fb}, 8")
e(f"s_and_b32 s{s_t2}, s{s_kr}, 7")
e(f"s_mul_i32 s{s_t2}, s{s_t2}, {64*3584}")
e(f"s_add_u32 s{wtab[0]}, s{s_t2}, s{s_woff}")
for b, n in ((sX, 2048*1024), (sG, 512*3584), (sU, 512*3584+1024)):
    e(f"s_mov_b32 s{b+2}, {n}")
    e(f"s_mov_b32 s{b+3}, 0x20000")
e(f"s_cmp_eq_u32 s{s_col}, 0")
e("s_cbranch_scc1 L_spare")
def after_kernarg():
    e("s_waitcnt lgkmcnt(0)")
    e(f"s_sub_u32 s{sU}, s{sU}, 1024")
    e(f"s_subb_u32 s{sU+1}, s{sU+1}, 0")
def setup2():
    if args.stamps:
        for i in range(2, 14): e(f"s_mov_b64 s[{s_st+2*i}:{s_st+2*i+1}], 0")
    e(f"s_lshl_b32 s{s_m64}, s{s_xcd}, 2")
    e(f"s_add_u32 s{s_m64}, s{s_m64}, s{s_c}")
    e(f"s_xor_b32 s{s_n64}, s{s_col}, 3")
    e(f"v_xor_b32 v{vW+1}, 128, v{vW}")
    e(f"v_xor_b32 v{vW+3}, 128, v{vW+2}")
    e(f"s_lshr_b32 s{s_a}, s{s_w}, 1")
    e(f"s_lshl_b32 s{s_a}, s{s_a}, 17")
    e(f"s_and_b32 s{s_b}, s{s_w}, 1")
    e(f"s_lshl_b32 s{s_b}, s{s_b}, 15")
    e(f"s_add_u32 s{s_a}, s{s_a}, s{s_b}")
    e("v_lshlrev_b32 v246, 5, v242")
    e("v_xor_b32 v246, v245, v246")
    e(f"v_lshl_add_u32 v{vD}, v240, 10, v246")
    e(f"v_add_u32 v{vD}, s{s_a}, v{vD}")
    for i in range(1, 4): e(f"v_add_u32 v{vD+i}, {7*1024*i}, v{vD}")
    e(f"s_mul_i32 s{s_mP}, s{s_w}, {PWS}")
    e(f"s_add_u32 s{s_mP}, s{s_mP}, {PB}")
    e(f"s_lshl_b32 s{s_doff}, s{s_n64}, 7")

    for b, n in ((sD, 1792*1024), (sH, 0x10000000), (sO, 2048*1024), (sB, 256)):
        e(f"s_mov_b32 s{b+2}, {n}")
        e(f"s_mov_b32 s{b+3}, 0x20000")
def wtab_setup():
    for k in range(1, 8):
        e(f"s_bfe_u32 s{s_a}, s{s_kr}, {0x30000 + 4*k}")
        e(f"s_mul_i32 s{s_a}, s{s_a}, {64*3584}")
        e(f"s_add_u32 s{wtab[k]}, s{s_a}, s{s_woff}")
def rh_setup():
    for jj in range(7):
        e(f"s_lshr_b32 s{s_a}, s{s_rd+jj}, 18")
        e(f"s_lshl_b32 s{s_a}, s{s_a}, 13")
        e(f"s_add_u32 s{s_rh+jj}, s{s_a}, s{s_hld}")

def dma_item(kind, n, where):
    m0 = (s_mX if kind == 'X' else s_mP, where[1] * 4096) if where[0] == 'P' else (s_mW, where[1] * 8192)
    ops = []
    sc = [f"s_add_u32 m0, s{m0[0]}, {m0[1]}"]
    so = s_t0
    if kind == 'X':
        srd = [sX]*4; vb = [vX, vX+1, vX+2, vX+3]; sc = [f"s_bfe_u32 s{s_t0}, s{s_kr}, {0x30000 + 4*n}", f"s_lshl_b32 s{s_t0}, s{s_t0}, 7"] + sc + [f"s_add_u32 s{s_t0}, s{s_t0}, s{s_xoff}"]
    elif kind == 'W':
        o_ = steps[n][0]; srd = [sG, sU, sG, sU]; vb = [vW+o_, vW+o_, vW+2+o_, vW+2+o_]; so = wtab[steps[n][1]]
    else:
        srd = [sD]*4; vb = [vD, vD+1, vD+2, vD+3]
        if n < 7: so = s_rd + n
        else: sc.append(f"s_xor_b32 s{s_t0}, s{s_rd + n % 7}, 65536")
    for t in sc: ops.append(('s', lambda t=t: e(t)))
    for i in range(4):
        off = f" offset:{1024*i}" if i else ""
        def ld(i=i, off=off):
            if g.L[-1].strip().startswith("s_add_u32 m0"): e("s_nop 0")
            nt_ = " nt" if f"{kind}{n}" in args.nt.split(",") else ""
            g.vmem(f"buffer_load_dwordx4 v{vb[i]}, {sr(srd[i])}, s{so} offen{off}{nt_} lds", (kind, n))
        ops.append(('v', ld))
    return ops
def dma4(kind, n, where):
    ops = dma_item(kind, n, where); pre = [f for k, f in ops if k == 's']; ld = [f for k, f in ops if k == 'v']
    return [lambda: ([f() for f in pre], ld[0]())] + ld[1:]

def h_pattern(vdst, s_idx):
    e(f"v_lshlrev_b32 v{vdst}, 4, v0")
    if args.nos3: return
    e(f"s_and_b32 s{s_idx}, s{s_idx}, 3")
    e(f"s_cmp_eq_u32 s{s_idx}, 3")
    e(f"s_cselect_b32 s{s_idx}, 4, s{s_idx}")
    e(f"s_lshl_b32 s{s_idx}, s{s_idx}, 7")
    e(f"s_add_u32 s{s_idx}, s{s_idx}, {4096 - 384}")
    e("s_mov_b32 exec_lo, 0xff000000")
    e("s_mov_b32 exec_hi, 0")
    e(f"v_add_u32 v{vdst}, s{s_idx}, v{vdst}")
    e("s_mov_b64 exec, -1")

def late_addr_setup(spare_=False):
    e("v_lshrrev_b32 v240, 5, v0")
    e("v_bfe_u32 v241, v0, 4, 1")
    e("v_bfe_u32 v242, v0, 2, 2")
    e("v_and_b32 v243, 3, v0")
    e("v_bfe_u32 v244, v0, 3, 1")
    e("v_lshlrev_b32 v243, 3, v243")
    e("v_lshl_add_u32 v243, v242, 7, v243")
    e("v_lshl_or_b32 v245, v241, 1, v244")
    e("v_lshl_add_u32 v243, v245, 5, v243")
    e(f"v_mul_u32_u24 v{vRW}, {HFS}, v241")
    e(f"v_lshl_add_u32 v{vRW}, v240, 11, v{vRW}")
    e(f"v_add_u32 v{vRW}, v{vRW}, v243")
    e(f"s_and_b32 s{s_a}, s{s_w}, 1")
    e(f"s_lshl_b32 s{s_a}, s{s_a}, 6")
    e(f"v_xor_b32 v{vRW}, s{s_a}, v{vRW}")
    e(f"v_xor_b32 v{vRW+1}, 32, v{vRW}")
    e("v_lshrrev_b32 v246, 4, v0")
    e("v_lshl_add_u32 v245, v246, 9, v243")
    e(f"v_add_u32 v{vRD}, s{s_mP}, v245")
    for nt in range(1, 4): e(f"v_xor_b32 v{vRD+nt}, {32*nt}, v{vRD}")
    e("v_and_b32 v245, 15, v0")
    e("v_bfe_u32 v247, v0, 1, 3")
    e("v_xor_b32 v247, v247, v246")
    e("v_lshlrev_b32 v247, 4, v247")
    e("v_lshl_add_u32 v245, v245, 7, v247")
    e(f"s_lshr_b32 s{s_a}, s{s_w}, 1")
    e(f"s_mul_i32 s{s_a}, s{s_a}, {2*PWS}")
    e(f"s_add_u32 s{s_a}, s{s_a}, {PB}")
    e(f"v_add_u32 v{vRX}, s{s_a}, v245")
    e(f"v_xor_b32 v{vRX+1}, 64, v{vRX}")
    e(f"s_add_u32 s{s_a}, s{s_m64}, s{s_w}")
    h_pattern(vH, s_a)
    e(f"s_lshl_b32 s{s_a}, s{s_w}, 10")
    e(f"v_add_u32 v{vH}, s{s_a}, v{vH}")
    for lam in range(1, 4): e(f"v_xor_b32 v{vH+lam}, {1024*lam}, v{vH}")
    e(f"s_mul_i32 s{s_hld}, s{s_m64}, {HM}")
    e(f"s_mul_i32 s{s_a}, s{s_w}, {HQ}")
    e(f"s_add_u32 s{s_hld}, s{s_hld}, s{s_a}")
    e(f"v_add_u32 v{vFl}, 5, v0")
    e(f"v_lshrrev_b32 v{vFl}, 3, v{vFl}")
    e(f"v_add_u32 v{vFl}, v{vFl}, v0")
    e(f"v_min_u32 v{vFl}, 7, v{vFl}")
    e(f"v_lshlrev_b32 v{vFl}, 7, v{vFl}")
    e(f"s_lshl_b32 s{s_a}, s{s_m64}, 13")
    e(f"s_lshl_b32 s{s_b}, s{s_w}, 11")
    e(f"s_add_u32 s{s_a}, s{s_a}, s{s_b}")
    e(f"s_add_u32 s{s_a}, s{s_a}, {FBASE}")
    e(f"v_add_u32 v{vFl}, s{s_a}, v{vFl}")
    if args.rotc == 4:
        e(f"s_and_b32 s{s_a}, s{s_c}, 1")
        e(f"s_lshl_b32 s{s_a}, s{s_a}, 2")
    else:
        e(f"s_mul_i32 s{s_a}, s{s_c}, {args.rotc}")
    if spare_: e(f"s_lshl_b32 s{s_a}, s{s_c}, 1")
    e(f"s_add_u32 s{s_a}, s{s_a}, s{s_col}")
    e(f"s_sub_u32 s{s_b}, s{s_a}, 7")
    e(f"s_cmp_ge_u32 s{s_a}, 7")
    e(f"s_cselect_b32 s{s_a}, s{s_b}, s{s_a}")
    for jj in range(7):
        e(f"s_lshl_b32 s{s_b}, s{s_a}, 18")
        e(f"s_add_u32 s{s_rd+jj}, s{s_b}, s{s_doff}")
        if args.swap:
            e(f"s_lshr_b32 s{s_b}, s{s_w}, 1")
            if args.swap == 1: e(f"s_and_b32 s{s_b}, s{s_b}, s{s_a}")
            e(f"s_lshl_b32 s{s_b}, s{s_b}, 16")
            e(f"s_add_u32 s{s_rd+jj}, s{s_rd+jj}, s{s_b}")
        if jj < 6:
            e(f"s_add_u32 s{s_a}, s{s_a}, 1")
            e(f"s_cmp_eq_u32 s{s_a}, 7")
            e(f"s_cselect_b32 s{s_a}, 0, s{s_a}")
    e(f"s_lshl_b32 s{s_a}, s{s_m64}, 16")
    e(f"s_lshl_b32 s{s_b}, s{s_w}, 14")
    e(f"s_add_u32 s{s_a}, s{s_a}, s{s_b}")
    e(f"s_add_u32 s{s_oadr}, s{s_a}, s{s_doff}")

def rd2_setup():
    e(f"s_sub_u32 s{s_a}, s{s_mW}, s{s_mP}")
    for nt in range(4): e(f"v_add_u32 v{vRD2+nt}, s{s_a}, v{vRD+nt}")

def d_reads(item, where):
    dfile, dstbase = homes[item]
    ops = []
    for nt in range(4):
        for p in range(2):
            def f(nt=nt, p=p):
                if where[0] == 'P': va = vRD + nt; off = where[1]*4096
                else: va = vRD2 + nt; off = where[1]*8192
                off += p*2048
                r = dstbase + nt*4 + 2*p
                g.ds(f"ds_read_b64_tr_b16 {dfile}[{r}:{r+1}], v{va} offset:{off}", ('Dr', item))
            ops.append(f)
    return ops

def pmask(vaddr): return 3 if vaddr == vMk else (1 if args.bits else 0x7f)
def poll(vdst, vaddr, srd, off, tag):
    o = f" offset:{off}" if off else ""
    e(f"s_mov_b64 exec, {pmask(vaddr)}")
    if args.pollmode == "atomic" and vaddr != vMk and tag not in args.ldtags.split(","):
        e(f"v_mov_b32 v{vdst}, 0")
        g.vmem(f"buffer_atomic_add v{vdst}, v{vaddr}, {sr(srd)}, 0 offen{o} sc0 sc1", tag)
    else:
        g.vmem(f"buffer_load_dword v{vdst}, v{vaddr}, {sr(srd)}, 0 offen{o} sc1", tag)
    e("s_mov_b64 exec, -1")
def test(vres, vaddr, target):
    if args.bits and vaddr != vMk: e(f"v_cmp_ne_u32 vcc, 0x7f, v{vres}")
    else: e(f"v_cmp_eq_u32 vcc, 0, v{vres}")
    e(f"s_and_b32 s{s_t1}, vcc_lo, {pmask(vaddr)}")
    e(f"s_cbranch_scc0 {target}")
def spin(label, vaddr, srd, off, sleep=0):
    e(f"s_mov_b32 s{s_spin}, 0x40000")
    g.lab(label)
    poll(vT, vaddr, srd, off, 'sp')
    e("s_waitcnt vmcnt(0)")
    test(vT, vaddr, f"{label}_ok")
    if sleep: e(f"s_sleep {sleep}")
    e(f"s_sub_u32 s{s_spin}, s{s_spin}, 1")
    e(f"s_cmp_lg_u32 s{s_spin}, 0")
    e(f"s_cbranch_scc1 {label}")
    g.lab(label + "_ok")
    g.vm = []
def check_or_spin(label, vres, tag, vaddr, srd, off, pre=None):
    g.need_vm([tag])
    test(vres, vaddr, f"{label}_ok")
    save = list(g.vm)
    if pre: pre()
    spin(label, vaddr, srd, off)
    g.vm = save

def epi_ops(acc, s, mt, packed):
    ops = []; d = EPI + 4*mt
    for ql in range(2):
        a = accr(acc, 2*ql, mt); b = accr(acc, 2*ql + 1, mt)
        if packed:
            for i in range(2): ops.append(lambda a=a, b=b, i=i: e(f"v_pk_mul_f32 v[{a+2*i}:{a+2*i+1}], v[{a+2*i}:{a+2*i+1}], v[{b+2*i}:{b+2*i+1}]"))
        else:
            for i in range(4): ops.append(lambda a=a, b=b, i=i: e(f"v_mul_f32 v{a+i}, v{a+i}, v{b+i}"))
    for ql in range(2):
        a = accr(acc, 2*ql, mt)
        for i in range(2): ops.append(lambda a=a, i=i, ql=ql: e(f"v_cvt_pk_bf16_f32 v{d+2*ql+i}, v{a+2*i}, v{a+2*i+1}"))
    if mt == 0 and s == 1: ops.append(lambda: e(f"s_add_u32 s{s_hst}, s{s_hst}, {HS}"))
    off = f" offset:{1024*mt}" if mt else ""
    ops.append(lambda: g.vmem(f"buffer_store_dwordx4 {vr(d)}, v{vL16}, {sr(sH)}, s{s_hst} offen{off} sc1", ('hs', s)))
    return ops

def flag_store(s):
    e(f"v_mov_b32 v{vT2}, s{s_flag}")
    e(f"v_mov_b32 v{vT}, s{s_bit}" if args.bits else f"v_mov_b32 v{vT}, 1")
    e("s_mov_b64 exec, 1")
    op = "buffer_atomic_or" if args.pollmode == "atomic" else "buffer_store_dword"
    g.vmem(f"{op} v{vT}, v{vT2}, {sr(sH)}, 0 offen offset:{FS*s} sc1", ('fl', s))
    e("s_mov_b64 exec, -1")

def hidx(i):
    s, r_ = divmod(i, 28)
    if s == 0: jj, lam = divmod(r_, 4)
    else: jj, lam = r_ % 7, (r_ // 7 + 1) % 4
    return s, jj, lam, r_
def h_load(i):
    s, jj, lam, r_ = hidx(i)
    dst = ar(hreg[r_]) if s == 0 else vr(HB + r_*4)
    if i == 28:
        for q in range(7): e(f"s_add_u32 s{s_rh+q}, s{s_rh+q}, {HS}")
    g.vmem(f"buffer_load_dwordx4 {dst}, v{vH+lam}, {sr(sH)}, s{s_rh+jj} offen sc1", ('h', i))
def mf(i, nt):
    s, jj, lam, r_ = hidx(i)
    g.need_vm([('h', i)])
    g.need_lg([('Dr', s*7 + jj)])
    f_, base = homes[s*7 + jj]
    r = base + nt*4
    acc = ACC2 + (lam*4 + nt)*4
    c = "0" if i < 4 else vr(acc)
    h = ar(hreg[r_]) if s == 0 else vr(HB + r_*4)
    e(f"{MF} {vr(acc)}, {f_}[{r}:{r+3}], {h}, {c}")
def tail_setup():
    e(f"v_lshlrev_b32 v{vL16}, 4, v0")
    for lam in range(1, 4):
        e(f"s_xor_b32 s{s_a}, s{s_w}, {lam}")
        e(f"s_mul_i32 s{s_a}, s{s_a}, {PWS}")
        e(f"s_add_u32 s{s_a}, s{s_a}, {PB + (lam-1)*4096}")
        e(f"v_add_u32 v{vTR+lam-1}, s{s_a}, v{vL16}")
    e(f"v_add_u32 v{vTW}, s{s_mP}, v{vL16}")
    e(f"v_and_b32 v{vTO}, 15, v0")
    e(f"v_lshlrev_b32 v{vTO}, 10, v{vTO}")
    e(f"v_bfe_u32 v{vTO+1}, v0, 4, 1")
    e(f"v_lshl_add_u32 v{vTO}, v{vTO+1}, 5, v{vTO}")
    e(f"v_lshrrev_b32 v{vTO+1}, 5, v0")
    e(f"v_lshl_add_u32 v{vTO}, v{vTO+1}, 4, v{vTO}")
HD = args.hdepth

mand = []
for n in range(16):
    for k in range(8):
        if first_k[k] == n: mand.append((n, 'X', k, ('P', k % NXB)))
    mand.append((n, 'W', n, ('W', n % NW)))
ops0 = dma_item(*mand[0][1:])
for k_, f in ops0:
    if k_ == 's': f()
after_kernarg()
g.stamp(1)
for k_, f in ops0:
    if k_ == 'v': f()
for f in dma4(*mand[1][1:]): f()
setup2()
def touch_setup(k0):
    e(f"s_lshl_b32 s{s_a}, s{s_mb}, 2")
    e(f"s_add_u32 s{s_a}, s{s_a}, s{s_w}")
    e(f"s_add_u32 s{s_a}, s{s_a}, {64*k0}")
    e(f"s_mul_i32 s{s_a}, s{s_a}, 3584")
    e(f"s_add_u32 s{s_a}, s{s_a}, s{s_woff}")
    e("v_lshrrev_b32 v242, 3, v0")
    e("v_and_b32 v243, 7, v0")
    e("v_and_b32 v240, 1, v0")
    e("v_lshlrev_b32 v240, 7, v240")
    e(f"v_mul_u32_u24 v244, {64*3584}, v242")
    e(f"v_add3_u32 v240, v240, v244, s{s_a}")
    e(f"s_lshl_b32 s{s_a}, s{s_fb}, 2")
    e(f"s_add_u32 s{s_a}, s{s_a}, s{s_w}")
    e(f"s_mul_i32 s{s_a}, s{s_a}, 3")
    e(f"s_sub_u32 s{s_a}, s{s_a}, 4")
    e("v_max_u32 v241, 4, v243")
    e(f"v_add_u32 v241, s{s_a}, v241")
    e("v_min_u32 v241, 127, v241")
    e("v_lshlrev_b32 v241, 10, v241")
    e("v_lshl_add_u32 v241, v242, 7, v241")
    e(f"s_add_u32 s{s_a}, s{s_xoff}, {128*k0}")
    e(f"v_add_u32 v241, s{s_a}, v241")
def touch(n, n0=0):
    m = sum(1 << (8*j_) for j_ in range(n0, n))
    for bits, srd, v_, off in ((3, sG, 240, 0), (12, sU, 240, 1024), (0x70, sX, 241, 0)):
        mk = m * bits
        e(f"s_mov_b32 exec_lo, {mk & 0xffffffff}")
        e(f"s_mov_b32 exec_hi, {mk >> 32}")
        g.vmem(f"buffer_load_dword v250, v{v_+8}, {sr(srd)}, 0 offen offset:{off}", "pf")
    e("s_mov_b64 exec, -1")
if args.touch:
    tk0, tn = map(int, args.touch.split(","))
    touch_setup(tk0)
    e("v_mov_b32 v248, v240"); e("v_mov_b32 v249, v241")
    if args.tpos == 0: touch(tn)
wtab_setup()
late_addr_setup()
e(f"s_lshr_b32 s{s_a}, s{s_w}, 1")
e(f"s_lshl_b32 s{s_b}, s{s_mb}, 1")
e(f"s_add_u32 s{s_a}, s{s_a}, s{s_b}")
e(f"s_and_b32 s{s_b}, s{s_fb}, 1")
e(f"s_lshl_b32 s{s_b}, s{s_b}, 1")
e(f"s_and_b32 s{s_t1}, s{s_w}, 1")
e(f"s_add_u32 s{s_b}, s{s_b}, s{s_t1}")
e(f"s_mul_i32 s{s_hst}, s{s_a}, {HM}")
e(f"s_mul_i32 s{s_t1}, s{s_b}, {HQ}")
e(f"s_add_u32 s{s_hst}, s{s_hst}, s{s_t1}")
e(f"s_lshr_b32 s{s_t2}, s{s_fb}, 1")
e(f"s_lshl_b32 s{s_t1}, s{s_t2}, 13")
e(f"s_add_u32 s{s_hst}, s{s_hst}, s{s_t1}")
e(f"s_add_u32 s{s_t1}, s{s_a}, s{s_b}")
h_pattern(vL16, s_t1)
if args.bits:
    assert args.pollmode == "atomic"
    e(f"s_lshl_b32 s{s_bit}, 1, s{s_t2}")
    e(f"s_mov_b32 s{s_t2}, 0")
else:
    e(f"s_cmp_ge_u32 s{s_t2}, 3")
    e(f"s_addc_u32 s{s_t2}, s{s_t2}, 0")
    e(f"s_lshl_b32 s{s_t2}, s{s_t2}, 7")
e(f"s_lshl_b32 s{s_b}, s{s_b}, 11")
e(f"s_add_u32 s{s_b}, s{s_b}, s{s_t2}")
e(f"s_lshl_b32 s{s_t1}, s{s_a}, 13")
e(f"s_add_u32 s{s_b}, s{s_b}, s{s_t1}")
e(f"s_add_u32 s{s_flag}, s{s_b}, {FBASE}")
e(f"s_lshl_b32 s{s_a}, s{s_a}, 2")
e(f"s_lshl_b32 s{s_b}, s{s_m64}, 2")
e(f"v_mov_b32 v{vMk}, s{s_a}")
e(f"v_mov_b32 v240, s{s_b}")
e("v_cmp_lt_u32 vcc, 0, v0")
e("s_nop 1")
e(f"v_cndmask_b32 v{vMk}, v{vMk}, v240, vcc")

def phase2A(R, stay, dplace, lateops, late, nh, extra):
    dmove = {}; slot_ = 0
    plan = {}; q = [('h', i) for i in range(nh, 28)]; lo = list(lateops); it = args.quiet if R != "S" else 0
    late_done = {}
    def takeD(c):
        c.append(('d', lo.pop(0)))
        if len(lo) % 4 == 0: late_done[late[len(late) - 1 - len(lo)//4]] = it
    while q or lo:
        c = []
        behind = q and q[0][1] - it < 8
        if q: c.append(q.pop(0))
        while len(c) < args.per and (q or lo):
            if q and (behind or not lo):
                if not behind and not lo and it >= 4 + args.quiet: break
                c.append(q.pop(0))
            else: takeD(c)
        for o in c:
            if o[0] == 'h': assert o[1] > it, ("h load late", o, it)
        plan[it] = c; it += 1
    for j in stay:
        p_ = slot_ if j not in reuse else max(4*reuse[j] + 3 + 2, slot_)
        if j in late_done: p_ = max(p_, late_done[j] + 8)
        p_ = min(p_, 26)
        dmove.setdefault(p_, []).append(j); slot_ = p_ + 2
        assert p_ + 1 < min(i for i in range(56) if hidx(i)[0]*7 + hidx(i)[1] == j), ("D move too late", j, p_)
    CB = args.chkB_i
    assert it <= CB, ("issue plan too long", it)
    pend = []
    def vm_(o):
        if o[0] == 'h': h_load(o[1])
        else: o[1]()
    def body(i, loads):
        for j in dmove.get(i, []):
            ops = d_reads(j, dplace[j])
            pend.append(lambda j=j, f=ops[0]: (g.need_vm([('D', j)]), f()))
            pend.extend(ops[1:])
        side = [lambda o=o: vm_(o) for o in loads] + list(extra.get(i, []))
        for nt in range(4):
            mf(i, nt)
            if args.st2 and nt == 0 and i in (0, 8): g.stamp(4 if i == 0 else 6)
            if side: side.pop(0)()
            elif pend: pend.pop(0)()
            if pend: pend.pop(0)()
        for f in side: f()
    def flush():
        while pend: pend.pop(0)()
        g.need_lg(g.lg[:])
    for i in range(CB):
        body(i, plan.get(i, []))
        if i == args.pollB: poll(vP2, vFl, sH, FS, 'pb')
    if args.st2: g.stamp(1)
    g.need_vm(['pb'])
    if args.st2: g.stamp(2)
    test(vP2, vFl, f"L_fastB{R}")
    sv = list(g.vm), list(g.lg), list(pend)
    poll(vP2, vFl, sH, FS, 'pb2')
    for i in range(CB, 28): body(i, [])
    flush()
    g.need_vm(['pb2'])
    test(vP2, vFl, f"L_pb{R}_ok")
    pr = [vT, vT2, vP1, vP2][:args.npoll]
    e(f"s_mov_b32 s{s_spin}, 0x20000")
    for r_ in pr[:-1]:
        poll(r_, vFl, sH, FS, 'x')
        if not args.nosl: e("s_sleep 1")
    g.lab(f"L_pb{R}")
    for k_ in range(len(pr)):
        poll(pr[k_ - 1], vFl, sH, FS, 'x')
        e(f"s_waitcnt vmcnt({len(pr) - 1})")
        test(pr[k_], vFl, f"L_pb{R}_ok")
    e(f"s_sub_u32 s{s_spin}, s{s_spin}, 1")
    e(f"s_cmp_lg_u32 s{s_spin}, 0")
    e(f"s_cbranch_scc1 L_pb{R}")
    g.lab(f"L_pb{R}_ok")
    g.vm = []
    g.stamp(13)
    for i in range(28, 28 + HD): h_load(i)
    e("s_branch L_B")
    g.lab(f"L_fastB{R}")
    g.vm, g.lg = sv[0], sv[1]; pend[:] = sv[2]
    q = list(range(28, 28 + HD)); per = -(-HD // (28 - CB))
    for i in range(CB, 28):
        body(i, [('h', q.pop(0)) for _ in range(min(per, len(q)))])
    assert not q
    flush()
    assert [t for t in g.vm if t[0] != 'h' or t[1] < 28] == [], g.vm

vm0 = list(g.vm)
def main_path(R):
    g.vm = list(vm0); g.lg = []
    L_ = R == "L"
    pre_ = args.l_pre if L_ else args.pre
    minlead_ = args.l_minlead if L_ else args.minlead
    maxlead_ = 999 if L_ else args.maxlead
    dstart_ = args.l_dstart if L_ else args.dstart
    issued = {m[1:3] for m in mand[:2]}
    rest = list(mand[2:])
    for (_, kind, n, where) in rest[:pre_ - 2]:
        assert (n < NW if kind == 'W' else n < NXB)
        for f in dma4(kind, n, where): f()
        issued.add((kind, n))
    rest = rest[pre_ - 2:]
    if args.touch and args.tpos == 1: touch(tn)
    g.stamp(2)
    rates = [int(x) for x in (args.l_rates if L_ and args.l_rates else args.rates).split(",")]
    slotc = {}
    for n in range(16):
        for i in range(rates[n]): slotc[32*n + START + (32*i)//rates[n]] = 1
    st = dict(credit=0, dnext=0, cur=None, nh=0, j=START)
    dma_q = []; lds_q = []; epi_q = []; misc_q = []
    wfree = {n: n < NW for n in range(16)}; xfree = {k: k < NXB for k in range(8)}
    dblocks = [('P', b_) for b_ in range(NXB, NP)]
    pending = []; dplace = {}; dland = []; dread_done = []; log = []; xdone = set(); xrel = []; inreg = []
    epiA_done = set()
    for mt in range(4):
        ops_ = epi_ops(ACC0, 0, mt, args.pk)
        ops_[-1] = (lambda f=ops_[-1], mt=mt: (f(), epiA_done.add(mt)))
        for f in ops_: epi_q.append(((done_at(0, mt) + 8) if args.mergeA else (done_at(0, 3) + 6), 'A', f))
    for mt in range(3):
        for f in epi_ops(ACC1, 1, mt, args.pk): epi_q.append((done_at(1, mt) + 8, 'B', f))
    bar_at = {p: n for n, p in bpos.items()}
    def release(kind, i):
        if kind == 'W':
            if i + NW < 16: wfree[i + NW] = True
            else: dblocks.append(('W', i % NW))
        else:
            if i + NXB < 8: xfree[i + NXB] = True
            else: dblocks.append(('P', i % NXB))
        dblocks.sort(key=lambda b_: b_[0] != 'P')
    def barrier(n):
        tags = [('W', n)] + [('X', k) for k in range(8) if first_k[k] == n]
        assert all(t in issued for t in tags), (R, n)
        g.need_vm(tags)
        for k in list(xrel):
            if args.lf: assert all((k, T, mt) in xdone for T in range(2) for mt in range(4))
            if args.lf or (all((k, T, mt) in xdone for T in range(2) for mt in range(4)) and not any(t_[0] == 'x' and t_[1] == k for t_ in g.lg[-6:])):
                g.need_lg([('x', k, T, mt) for T in range(2) for mt in range(4)])
                pending.append(('X', k)); xrel.remove(k)
        e("s_barrier")
        for kind, i in pending: release(kind, i)
        pending.clear()
        for k in range(8):
            if first_k[k] == n:
                xrel.append(k)
                for T, mt in sorted(((T, mt) for T in range(2) for mt in range(4)), key=lambda tm: min(j_ for j_, (i, m_) in enumerate(mseq) if m_ == tm[1] and uses[i][:2] == (n, tm[0]))):
                    if True:
                        def f(k=k, T=T, mt=mt):
                            assert k < NXK or st['j'] > xlast[k - NXK], ("x slot busy", k, st['j'])
                            r = ((k % NXK)*8 + T*4 + mt)*4
                            g.ds(f"ds_read_b128 {ar(r)}, v{vRX+T} offset:{(mt >> 1)*PWS + (mt & 1)*2048 + (k % NXB)*4096}", ('x', k, T, mt))
                            xdone.add((k, T, mt))
                        lds_q.append(('x', f))
                lds_q.sort(key=lambda o: o[0] != 'x')
    def wread(i, half):
        n, T, c = uses[i]
        fl, b = wbuf[i]; b += 2*half
        if i in wneed: assert wneed[i] in epiA_done, ('acc0 not free', i, st['j'])
        off = (n % NW) * 8192 + T * 4096 + (c & 1) * 1024 + 512*half
        g.ds(f"ds_read_b64_tr_b16 {fl}[{b}:{b+1}], v{vRW + (c >> 1)} offset:{off}", ('w', i))
    def pick(j):
        d = dorder[st['dnext']] if st['dnext'] < args.x_nd else None
        can_d = d is not None and dblocks and j >= dstart_
        for idx, (dl, kind, n, where) in enumerate(rest[:3]):
            ok = wfree[n] if kind == 'W' else xfree[n]
            lead = bpos[dl] - j
            extra = 16 if any(r_[0] == dl for r_ in rest[idx+1:idx+2]) else 0
            minl = max(minlead_, args.latelead) if dl >= args.latefrom else minlead_
            maxl = max(maxlead_, args.latelead + 16) if dl >= args.latefrom else maxlead_
            urgent = lead < minl + 16 + extra
            if ok and lead <= maxl + extra and (urgent or not can_d):
                rest.pop(idx); log.append(f"{kind}{n}@{j}(-{lead})")
                assert lead > 20, ("late", R, kind, n, j)
                return kind, n, where
            if not ok and lead < 48: return None
            if ok: break
        if can_d:
            blk = dblocks.pop(0 if d in early_ok else -1); st['dnext'] += 1; dplace[d] = blk; log.append(f"D{d}@{j}")
            return 'D', d, blk
        return None
    barrier(0)
    g.stamp(3)
    for j in range(START, NM):
        n0 = len(g.L)
        if j >= 0:
            i, mt = mseq[j]
            n, T, c = uses[i]
            s_, k = steps[n]
            assert (k, T, mt) in xdone, ("x read late", j)
            tg = [('w', i), ('x', k, T, mt)]
            if j == first_use[i] and i % args.wgrp == 0:
                tg += [('w', i_) for i_ in range(i, min(i + args.wgrp, NU)) if g.lg.count(('w', i_)) == 2]
            if mt == 0: tg += [('x', k, T, m_) for m_ in range(4)]
            g.need_lg(tg)
            acc = accr(ACC0 if s_ == 0 else ACC1, c, mt)
            cc = "0" if (k == 0 and T == 0) else vr(acc)
            e(f"{MF} {vr(acc)}, {wbuf[i][0]}[{wbuf[i][1]}:{wbuf[i][1]+3}], {ar(((k % NXK)*8 + T*4 + mt)*4)}, {cc}")
            if i == last_u[n] and j == first_use[i]: pending.append(('W', n))
            if args.fine:
                f0, fs = map(int, args.fine.split(","))
                if j >= f0 and (j - f0) % fs == 0 and (j - f0)//fs < 8: g.stamp(4 + (j - f0)//fs, True)
            elif args.stepstamps and j % 64 == 63: g.stamp(4 + j // 64, True)
            nxt_wait = j + 1 < NM and first_use[mseq[j+1][0]] == j + 1 and ('w', mseq[j+1][0]) in g.lg
            n0 = len(g.L) - (1 if nxt_wait else 0)
        used = lambda: len(g.L) - n0
        for i_, h_ in rsched.get(j, []): wread(i_, h_)
        if j in bar_at and bar_at[j] > 0: barrier(bar_at[j])
        if j == args.pollA_at: poll(vP1, vFl, sH, 0, 'pa')
        if j == args.chkA_at:
            assert not rest
            while misc_q: g.L += misc_q.pop(0)
            check_or_spin(f"L_pa{R}", vP1, 'pa', vFl, sH, 0)
            g.stamp(8)
        if j >= args.chkA_at and st['nh'] < args.hpre and not dma_q and (j - args.chkA_at) % 4 == 1:
            h_load(st['nh']); st['nh'] += 1
        if args.touch2 and j == int(args.touch2): touch(8 - tk0, tn)
        if j == args.tlb:
            assert not args.nos3
            e(f"v_mov_b32 v{vT}, 0")
            e("s_mov_b64 exec, 1")
            g.vmem(f"buffer_load_dword v{vT2}, v{vT}, {sr(sH)}, s{s_hld} offen offset:384", "pf")
            g.vmem(f"buffer_load_dword v{vT2}, v{vT}, {sr(sH)}, s{s_hst} offen offset:384", "pf")
            g.vmem(f"buffer_load_dword v{vT2}, v{vT}, {sr(sH)}, s{s_flag} offen offset:384", "pf")
            g.vmem(f"buffer_load_dword v{vT2}, v{vT}, {sr(sO)}, s{s_oadr} offen", "pf")
            e("s_mov_b64 exec, -1")
        if j == args.mkat and not args.x_nomk: poll(vP1, vMk, sB, 0, 'mk')
        if j == args.flagA_at:
            assert not any(t_ == 'A' for _, t_, _ in epi_q)
            if not args.x_nomk: check_or_spin(f"L_mk{R}", vP1, 'mk', vMk, sB, 0)
            g.need_vm([('hs', 0)])
            flag_store(0)
            g.stamp(4)
        while dland and dland[0][0] <= j and not any(o[0] == 'd' for o in lds_q) and j < NM - 40 and not (args.mergeA and j <= endA and homes[dland[0][1]][0] == 'a' and homes[dland[0][1]][1] >= 192):
            _, it = dland.pop(0)
            ops = d_reads(it, dplace[it]); inreg.append(it)
            lds_q.append(('d', lambda it=it, f=ops[0]: (g.need_vm([('D', it)]), f())))
            for f in ops[1:-1]: lds_q.append(('d', f))
            lds_q.append(('d', lambda it=it, f=ops[-1]: (f(), dread_done.append((st['j'] + 8, it)))))
        st['j'] = j
        while dread_done and dread_done[0][0] <= j:
            _, it = dread_done.pop(0)
            g.need_lg([('Dr', it)]); dblocks.insert(0, dplace[it])
        if j in slotc: st['credit'] = min(st['credit'] + 1, 2)
        if lds_q and lds_q[0][0] == 'x' and used() < args.cap + 1: lds_q.pop(0)[1]()
        if not dma_q and (st['credit'] or any(j + q_ in slotc for q_ in (1, 2, 3))) and j < min(args.chkA_at - 12, args.dstop):
            p_ = pick(j)
            if p_: dma_q = dma_item(*p_); st['cur'] = p_
        while dma_q and dma_q[0][0] == 's' and used() < args.cap + (1 if st['credit'] >= 2 else 0): dma_q.pop(0)[1]()
        if dma_q and dma_q[0][0] == 'v' and st['credit'] and (used() + args.vcost <= args.cap or (st['credit'] >= 2 and used() <= args.cap)) and j < NM - 4 and not g.L[-1].strip().startswith("s_add_u32 m0"):
            dma_q.pop(0)[1](); st['credit'] -= 1
            n0 -= args.vcost - 1
            if not dma_q:
                issued.add(st['cur'][:2])
                if st['cur'][0] == 'D' and st['cur'][1] in early_ok: dland.append((j + (args.dlat if st['dnext'] <= 4 else args.dlat2), st['cur'][1]))
                if st['cur'][:2] == ('X', 7): rd2_setup()
                if st['cur'][0] == 'W' and not any(r_[1] == 'W' for r_ in rest):
                    n1 = len(g.L); rh_setup(); tl = g.L[n1:]; del g.L[n1:]
                    for q_ in range(0, len(tl), 3): misc_q.append(tl[q_:q_+3])
        if lds_q and len(g.lg) < 13 and used() < args.cap and j % 2: lds_q.pop(0)[1]()
        while epi_q and epi_q[0][0] <= j and used() < args.ecap: epi_q.pop(0)[2]()
        while lds_q and len(g.lg) < 13 and used() < args.cap: lds_q.pop(0)[1]()
        if misc_q and used() == 0: g.L += misc_q.pop(0)
    g.stamp(5)
    for t_ in misc_q: g.L += t_
    assert not rest
    for _, f in lds_q: f()
    for _, _, f in epi_q: f()
    e("s_nop 7")
    for f in epi_ops(ACC1, 1, 3, True): f()
    g.stamp(6)
    g.need_lg(g.lg[:])
    for _, it in dread_done: dblocks.append(dplace[it])
    e("s_barrier")
    assert not xrel
    for kind, i in pending: release(kind, i)
    for _, f in dma_q: f()
    post = dorder[st['dnext']:args.x_nd]
    sys.stderr.write(f"{R}: " + " ".join(log) + f"\n   inreg {inreg} post {post} nh {st['nh']}\n")
    lateops = []
    for n in post:
        dplace[n] = dblocks.pop(0)
        lateops += dma4('D', n, dplace[n])
    stay = [j for j in range(14) if j not in inreg and j in dorder[:args.x_nd]]
    assert len(set(dplace[j] for j in stay)) == len(stay)
    def do_flagB():
        g.need_vm([('hs', 1)])
        flag_store(1)
        g.stamp(7)
    extra = {1: [tail_setup]}
    nfirst = min(args.dfirst*4, len(lateops))
    fbd = False
    for i_ in range(nfirst):
        if i_ == args.pa2: poll(vP2, vFl, sH, 0, 'pa2')
        if args.flagB_i < 0 and i_ == -args.flagB_i:
            if args.pa3 >= 0:
                g.need_vm([('hs', 1)]); poll(vMk, vFl, sH, 0, 'pa3')
            do_flagB(); fbd = True
        lateops.pop(0)()
    post = post[nfirst//4:]
    if args.flagB_i < 0 and not fbd: do_flagB()
    if args.chkA_at >= NM:
        chain = [(vP1, 'pa')] + ([(vP2, 'pa2')] if args.pa2 >= 0 else []) + ([(vMk, 'pa3')] if args.pa3 >= 0 else [])
        svm = None
        for r_, t_ in chain[:-1]:
            g.need_vm([t_])
            if svm is None: svm = list(g.vm)
            test(r_, vFl, f"L_pa{R}_ok")
        check_or_spin(f"L_pa{R}", chain[-1][0], chain[-1][1], vFl, sH, 0, pre=(lambda: (g.need_vm([('hs', 1)]), flag_store(1))) if args.flagB_i >= 0 else None)
        if svm is not None: g.vm = svm
        g.stamp(8)
        while st['nh'] < args.hpre: h_load(st['nh']); st['nh'] += 1
    if args.flagB_i >= 0: extra.setdefault(args.flagB_i, []).append(do_flagB)
    phase2A(R, stay, dplace, lateops, post, st['nh'], extra)
    e("s_branch L_B")

xrel_log = {}
if args.lf:
    if args.lfsel == "x":
        e(f"s_lshr_b32 s{s_a}, s{s_xcd}, 1")
        e(f"s_cmp_lg_u32 s{s_w}, s{s_a}")
    else:
        e(f"s_cmp_lg_u32 s{s_w}, s{s_c}")
    e("s_cbranch_scc1 L_follow")
    main_path("L")
    g.lab("L_follow")
main_path("F")
stay = sorted(reuse); inreg = [j for j in range(14) if j not in stay]; dplace = {j: ('P', q_) for q_, j in enumerate(stay)}

g.lab("L_spare")
g.vm = []; g.lg = []
setup2()
after_kernarg()
g.stamp(1)
e(f"s_cmp_lg_u32 s{s_w}, 0")
e("s_cbranch_scc1 L_sp1")
e(f"s_lshl_b32 s{s_a}, s{s_m64}, 13")
e(f"s_add_u32 s{s_a}, s{s_a}, {FBASE}")
e(f"v_lshlrev_b32 v240, {10 if args.bits else 7}, v0")
e("v_mov_b32 v241, 0")
if args.bits: e("s_mov_b64 exec, 0xff")
e(f"buffer_store_dword v241, v240, {sr(sH)}, s{s_a} offen sc1")
if args.bits: e("s_mov_b64 exec, -1")
g.lab("L_sp1")
def sp_touch(parts=(0, 1)):
    e("v_min_u32 v240, 55, v0")
    e(f"s_lshl_b32 s{s_a}, s{s_m64}, 2")
    e(f"s_add_u32 s{s_a}, s{s_a}, s{s_w}")
    e(f"s_and_b32 s{s_b}, s{s_a}, 63")
    e(f"s_lshr_b32 s{s_a}, s{s_a}, 6")
    e(f"s_lshl_b32 s{s_a}, s{s_a}, 7")
    e(f"s_add_u32 s{s_a}, s{s_a}, s{s_b}")
    e(f"s_lshl_b32 s{s_a}, s{s_a}, 10")
    e("v_lshrrev_b32 v242, 3, v240")
    e("v_lshlrev_b32 v242, 18, v242")
    e("v_and_b32 v247, 7, v240")
    e("v_lshl_add_u32 v242, v247, 7, v242")
    if 0 in parts: g.vmem(f"buffer_load_dword v249, v242, {sr(sD)}, s{s_a} offen", "pf")
    if 1 in parts:
        e(f"s_add_u32 s{s_a}, s{s_a}, 65536")
        g.vmem(f"buffer_load_dword v250, v242, {sr(sD)}, s{s_a} offen", "pf")
npf = 0
if args.sppf >= 0:
    e(f"s_lshl_b32 s{s_a}, s{s_mb}, 2")
    e(f"s_add_u32 s{s_a}, s{s_a}, s{s_w}")
    e(f"s_add_u32 s{s_a}, s{s_a}, {64*args.sppf}")
    e(f"s_mul_i32 s{s_a}, s{s_a}, 3584")
    e(f"s_and_b32 s{s_b}, s{s_xcd}, 1")
    e(f"s_mul_i32 s{s_b}, s{s_b}, 1792")
    e(f"s_add_u32 s{s_a}, s{s_a}, s{s_b}")
    e(f"s_lshl_b32 s{s_b}, s{s_m64}, 2")
    e(f"s_add_u32 s{s_b}, s{s_b}, s{s_w}")
    e(f"s_lshl_b32 s{s_b}, s{s_b}, 14")
    e(f"s_add_u32 s{s_b}, s{s_b}, {128*args.sppf - 28*1024 + (1 << 32)}")
    e("v_lshlrev_b32 v243, 10, v0")
    e(f"v_add_u32 v243, s{s_b}, v243")
    e(f"v_mov_b32 v252, s{sX}")
    e(f"v_mov_b32 v253, s{sX+1}")
    e("v_mov_b32 v254, 128")
    e("s_mov_b64 exec, 0xfffffff")
    e("v_lshlrev_b32 v243, 7, v0")
    e(f"s_sub_u32 s{s_b}, s{s_a}, {14*128 - 1024}")
    e(f"v_add_u32 v243, s{s_b}, v243")
    e(f"v_mov_b32 v252, s{sU}")
    e(f"v_mov_b32 v253, s{sU+1}")
    e(f"v_mov_b32 v254, {64*3584}")
    e("s_mov_b64 exec, 0x3fff")
    e("v_lshlrev_b32 v243, 7, v0")
    e(f"v_add_u32 v243, s{s_a}, v243")
    e(f"v_mov_b32 v252, s{sG}")
    e(f"v_mov_b32 v253, s{sG+1}")
    e("s_mov_b32 exec_lo, -1")
    e("s_mov_b32 exec_hi, 0xfff")
    e("v_add_co_u32 v252, vcc, v252, v243")
    e("v_addc_co_u32 v253, vcc, 0, v253, vcc")
    for kb in range(args.sppf, 8):
        if kb == args.sppfd:
            e("s_mov_b64 exec, -1"); sp_touch(); npf += 2
            e("s_mov_b32 exec_hi, 0xfff")
        g.vmem("global_load_dword v251, v[252:253], off", "pf"); npf += 1
        if kb < 7:
            e("v_add_co_u32 v252, vcc, v252, v254")
            e("v_addc_co_u32 v253, vcc, 0, v253, vcc")
    e("s_mov_b64 exec, -1")
def s3_touch():
    e(f"s_lshl_b32 s{s_a}, s{s_c}, 2")
    e(f"s_add_u32 s{s_a}, s{s_a}, s{s_w}")
    e(f"s_and_b32 s{s_b}, s{s_xcd}, 1")
    e(f"s_mul_i32 s{s_b}, s{s_b}, 3")
    e("v_bfe_u32 v243, v0, 1, 2")
    e(f"v_add_u32 v243, s{s_b}, v243")
    e("v_and_b32 v244, 1, v243")
    e("v_lshrrev_b32 v245, 3, v0")
    e("v_lshl_add_u32 v244, v245, 6, v244")
    e("v_and_b32 v245, 1, v0")
    e("v_lshl_add_u32 v244, v245, 1, v244")
    e("v_mul_u32_u24 v244, 3584, v244")
    e("v_lshl_add_u32 v244, v243, 9, v244")
    e(f"s_mul_i32 s{s_b}, s{s_a}, {4*3584}")
    g.vmem(f"buffer_load_dword v251, v244, {sr(sG)}, s{s_b} offen offset:384", "pf")
    g.vmem(f"buffer_load_dword v252, v244, {sr(sU)}, s{s_b} offen offset:{384+1024}", "pf")
    e(f"s_lshr_b32 s{s_b}, s{s_xcd}, 1")
    e(f"s_lshl_b32 s{s_b}, s{s_b}, 4")
    e(f"s_add_u32 s{s_b}, s{s_b}, s{s_a}")
    e(f"s_lshl_b32 s{s_b}, s{s_b}, 15")
    e("v_lshlrev_b32 v244, 10, v0")
    e("s_mov_b32 exec_hi, 0")
    g.vmem(f"buffer_load_dword v253, v244, {sr(sX)}, s{s_b} offen offset:384", "pf")
    e("s_mov_b64 exec, -1")
def s3_late(p0, np_):
    e(f"s_lshl_b32 s{s_a}, s{s_c}, 2")
    e(f"s_add_u32 s{s_a}, s{s_a}, s{s_w}")
    e(f"s_and_b32 s{s_b}, s{s_xcd}, 1")
    e(f"s_mul_i32 s{s_b}, s{s_b}, 3")
    e("v_bfe_u32 v243, v0, 1, 2")
    e(f"v_add_u32 v243, s{s_b}, v243")
    e("v_and_b32 v244, 1, v243")
    e("v_lshrrev_b32 v245, 3, v0")
    e("v_lshlrev_b32 v245, 2, v245")
    e(f"v_add_u32 v245, {4*p0}, v245")
    e(f"v_bfe_u32 v245, s{s_kr}, v245, 3")
    e("v_lshl_add_u32 v244, v245, 6, v244")
    e("v_and_b32 v245, 1, v0")
    e("v_lshl_add_u32 v244, v245, 1, v244")
    e("v_mul_u32_u24 v244, 3584, v244")
    e("v_lshl_add_u32 v244, v243, 9, v244")
    e(f"s_mul_i32 s{s_b}, s{s_a}, {4*3584}")
    mk = (1 << (8*np_)) - 1
    e(f"s_mov_b32 exec_lo, {mk & 0xffffffff}")
    e(f"s_mov_b32 exec_hi, {mk >> 32}")
    g.vmem(f"buffer_load_dword v251, v244, {sr(sG)}, s{s_b} offen offset:384", "pf")
    g.vmem(f"buffer_load_dword v252, v244, {sr(sU)}, s{s_b} offen offset:{384+1024}", "pf")
    e("s_mov_b64 exec, -1")
s3l = {}
for t_ in args.s3late.split(";"):
    if t_:
        q0, p0, np_ = map(int, t_.split(",")); s3l[q0] = (p0, np_)
def pos_touch(p, what):
    n_ = 0
    e(f"s_bfe_u32 s{s_t0}, s{s_kr}, {0x30000 + 4*p}")
    e(f"s_lshl_b32 s{s_a}, s{s_c}, 2")
    e(f"s_add_u32 s{s_a}, s{s_a}, s{s_w}")
    if "x" in what:
        e(f"s_lshr_b32 s{s_b}, s{s_xcd}, 1")
        e(f"s_lshl_b32 s{s_b}, s{s_b}, 4")
        e(f"s_add_u32 s{s_b}, s{s_b}, s{s_a}")
        e(f"s_lshl_b32 s{s_b}, s{s_b}, 15")
        e(f"s_lshl_b32 s{s_t1}, s{s_t0}, 7")
        e(f"s_add_u32 s{s_b}, s{s_b}, s{s_t1}")
        e("v_lshlrev_b32 v244, 10, v0")
        e("s_mov_b32 exec_hi, 0")
        g.vmem(f"buffer_load_dword v253, v244, {sr(sX)}, s{s_b} offen", "pf"); n_ += 1
        e("s_mov_b64 exec, -1")
    if "w" in what:
        e("v_min_u32 v243, 55, v0")
        e("v_mul_u32_u24 v244, 147, v243")
        e("v_lshrrev_b32 v244, 11, v244")
        e("v_mul_u32_u24 v245, 14, v244")
        e("v_sub_u32 v245, v243, v245")
        e("v_mul_u32_u24 v244, 3584, v244")
        e("v_lshl_add_u32 v244, v245, 7, v244")
        e(f"s_lshl_b32 s{s_t0}, s{s_t0}, 4")
        e(f"s_add_u32 s{s_a}, s{s_a}, s{s_t0}")
        e(f"s_mul_i32 s{s_a}, s{s_a}, {4*3584}")
        e(f"s_and_b32 s{s_b}, s{s_xcd}, 1")
        e(f"s_mul_i32 s{s_b}, s{s_b}, 1792")
        e(f"s_add_u32 s{s_a}, s{s_a}, s{s_b}")
        g.vmem(f"buffer_load_dword v251, v244, {sr(sG)}, s{s_a} offen", "pf")
        g.vmem(f"buffer_load_dword v252, v244, {sr(sU)}, s{s_a} offen offset:1024", "pf"); n_ += 2
    return n_
for t_ in args.sp1.split(","):
    if t_ in ("a", "b"): sp_touch((0,) if t_ == "a" else (1,)); npf += 1
    elif t_: npf += pos_touch(int(t_[0]), t_[1:])
if args.s3pf == 1: s3_touch(); npf += 3
if not args.nomall and args.spt == 0:
    if not (args.sppf <= args.sppfd < 8) and "a" not in args.sp1.split(","): sp_touch(); npf += 2
    if args.s3pf == 2: s3_touch(); npf += 3
    e(f"s_waitcnt vmcnt({npf})")
else:
    e("s_waitcnt vmcnt(0)")
e(f"s_cmp_lg_u32 s{s_w}, 0")
e("s_cbranch_scc1 L_sp2")
e(f"s_lshl_b32 s{s_a}, s{s_m64}, 2")
e(f"v_mov_b32 v247, s{s_a}")
e("v_mov_b32 v248, 1")
e("s_mov_b64 exec, 1")
e(f"buffer_store_dword v248, v247, {sr(sB)}, 0 offen sc1")
e("s_mov_b64 exec, -1")
g.lab("L_sp2")
g.stamp(4)
late_addr_setup(True)
rh_setup()
free2 = [('P', NP - 1), ('P', NP - 2)]
assert len(stay) <= NP - 2
prev = None
for q_, j in enumerate(dorder):
    if q_ >= args.x_nd and j not in stay: continue
    if not args.nomall and args.spt and q_ == args.spt: sp_touch()
    if q_ in s3l: s3_late(*s3l[q_])
    blk = dplace[j] if j in stay else free2[q_ % 2]
    for f in dma4('D', j, blk):
        f()
        if len(g.vm) > args.sppace:
            e(f"s_waitcnt vmcnt({args.sppace})"); g.vm = g.vm[-args.sppace:] if args.sppace else []
    if prev is not None:
        g.need_vm([('D', prev[0])])
        for f in d_reads(*prev): f()
        g.need_lg(g.lg[:])
    prev = (j, blk) if j in inreg else None
if prev is not None:
    g.need_vm([('D', prev[0])])
    for f in d_reads(*prev): f()
    g.need_lg(g.lg[:])
e(f"s_lshl_b32 s{s_a}, s{s_m64}, 2")
e(f"v_mov_b32 v{vMk}, s{s_a}")
if args.x_spdelay:
    e("s_waitcnt vmcnt(0)")
    e(f"s_mov_b32 s{s_spin}, {args.x_spdelay}")
    g.lab("L_xd")
    if args.x_spkind == "sleep": e("s_sleep 8")
    e(f"s_sub_u32 s{s_spin}, s{s_spin}, 1")
    e(f"s_cmp_lg_u32 s{s_spin}, 0")
    e("s_cbranch_scc1 L_xd")
if args.spbar:
    e("s_waitcnt vmcnt(0)")
    e("s_barrier")
    g.vm = []
else:
    spin("L_smk", vMk, sB, 0, sleep=8)
g.stamp(5)
spin("L_spa", vFl, sH, 0, sleep=args.spsleep)
g.stamp(8)
for i in range(HD): h_load(i)
g.lg = []
phase2A("S", stay, dplace, [], [], HD, {0: [tail_setup]})

g.lab("L_B")
g.stamp(9)
g.vm = [('h', i) for i in range(28, 28 + HD)]; g.lg = []
def wr(lam, a):
    r = ACC2 + lam*16 + a*4
    g.ds(f"ds_write_b128 v{vTW}, {vr(r)} offset:{(lam-1)*4096 + a*1024}", ('wr', lam))
def rd(sl, a):
    g.ds(f"ds_read_b128 {vr(ACC2 + 16 + 4*(sl*4+a))}, v{vTR+sl} offset:{a*1024}", ('rd', sl*4+a))
def padd(d, t):
    e(f"v_pk_add_f32 v[{d}:{d+1}], v[{d}:{d+1}], v[{t}:{t+1}]")
    e(f"v_pk_add_f32 v[{d+2}:{d+3}], v[{d+2}:{d+3}], v[{t+2}:{t+3}]")
def sync():
    g.need_lg(g.lg[:]); e("s_barrier")
    for a in range(4):
        for sl in range(3): rd(sl, a)
def sum_(a):
    g.need_lg([('rd', 8 + a)])
    padd(ACC2 + 16 + 4*a, ACC2 + 32 + 4*a); padd(ACC2 + 16 + 4*a, ACC2 + 48 + 4*a)
side = {}
for lam in (1, 2):
    for a in range(4): side.setdefault((28 + 7*lam + 2 + a, 1), []).append(lambda lam=lam, a=a: wr(lam, a))
for a in range(4): side.setdefault((51, a), []).append(lambda a=a: wr(3, a))
side.setdefault((53, 1), []).append(sync)
nxt = 28 + HD
for i in range(28, 56):
    for nt in range(4):
        mf(i, nt)
        if nt == 0 and nxt < 56: h_load(nxt); nxt += 1
        for f in side.get((i, nt), []): f()
g.stamp(10)
for a in range(4): sum_(a)
for a in range(4): padd(ACC2 + 4*a, ACC2 + 16 + 4*a)
for i in range(8):
    e(f"v_cvt_pk_bf16_f32 v{EPI+i}, v{ACC2+2*i}, v{ACC2+2*i+1}")
e("s_nop 1")
e(f"v_permlane16_swap_b32 v{EPI}, v{EPI+2}")
e(f"v_permlane16_swap_b32 v{EPI+1}, v{EPI+3}")
e(f"v_permlane16_swap_b32 v{EPI+4}, v{EPI+6}")
e(f"v_permlane16_swap_b32 v{EPI+5}, v{EPI+7}")
e(f"buffer_store_dwordx4 {vr(EPI)}, v{vTO}, {sr(sO)}, s{s_oadr} offen {args.outflags}")
e(f"buffer_store_dwordx4 {vr(EPI+4)}, v{vTO}, {sr(sO)}, s{s_oadr} offen offset:64 {args.outflags}")
if args.stamps:
    g.stamp(11)
    e("s_waitcnt vmcnt(0)")
    g.stamp(12)
    e("s_waitcnt lgkmcnt(0)")
if args.diag:
    a_, b_, K_, wg_ = map(int, args.diag.split(","))
    if wg_ >= 0: e(f"s_cmp_lg_u32 s2, {wg_}")
    else: e(f"s_cmp_eq_u32 s{s_col}, 0")
    e("s_cbranch_scc1 L_end")
    e(f"s_sub_u32 s46, s{s_st+2*b_}, s{s_st+2*a_}")
    e(f"s_mul_i32 s46, s46, {K_}")
    e(f"s_add_u32 s46, s46, 5000")
    e(f"s_min_u32 s46, s46, 100000")
    g.lab("L_diag")
    e("s_memrealtime s[48:49]")
    e("s_waitcnt lgkmcnt(0)")
    e(f"s_sub_u32 s47, s48, s{s_st}")
    e("s_cmp_lt_u32 s47, s46")
    e("s_cbranch_scc1 L_diag")
elif args.stamps:
    NS = 14
    for i in range(2*NS): e(f"v_mov_b32 v{64+i}, s{s_st+i}")
    e(f"s_lshl_b32 s46, s2, 2")
    e(f"s_add_u32 s46, s46, s{s_w}")
    e(f"s_mul_i32 s46, s46, {NS*8}")
    e(f"s_add_u32 s46, s46, {STAMP_OFF}")
    e("v_mov_b32 v5, 0")
    e("s_mov_b64 exec, 1")
    for i in range(NS//2): e(f"buffer_store_dwordx4 {vr(64+4*i)}, v5, {sr(sH)}, s46 offen offset:{16*i}")
g.lab("L_end")
e("s_endpgm")
g.lab("L_codeend")

hdr = f"""; Fused bilinear GLU: out = ((x Wg) * (x Wu)) Wd   (generated)
; @launch grid=(256,1,1) block=(256,1,1) lds={LDS}
.amdgcn_target "amdgcn-amd-amdhsa--gfx950"
.text
""" + (f".p2align {args.talign}\n" if args.talign else "") + (f"    s_endpgm\n.fill {args.tpad//4 - 1}, 4, 0xbf800000\n" if args.tpad else "") + f""".globl {KN}
.p2align 8
.type {KN},@function
{KN}:"""
tail = f""".section .rodata,"a"
.p2align {args.kdalign}
.amdhsa_kernel {KN}
  .amdhsa_next_free_vgpr 512
  .amdhsa_next_free_sgpr 102
  .amdhsa_accum_offset 256
  .amdhsa_group_segment_fixed_size 0
  .amdhsa_kernarg_size 56
  .amdhsa_user_sgpr_count 2
  .amdhsa_user_sgpr_kernarg_segment_ptr 1
  .amdhsa_system_sgpr_workgroup_id_x 1
""" + ("  .amdhsa_float_denorm_mode_32 3\n" if args.denorm else "") + """.end_amdhsa_kernel"""
print(hdr); print("\n".join(g.L)); print(tail)
```
